```python
import torch

def _softmax(x, axis=-1):
    return torch.softmax(x, dim=axis)
def _gelu(x):
    return torch.nn.functional.gelu(x, approximate="tanh")
def _silu(x):
    return torch.nn.functional.silu(x)
def _sigmoid(x):
    return torch.sigmoid(x)
def _layernorm(x, axis=-1, eps=1e-5):
    m = x.mean(dim=axis, keepdim=True)
    v = x.var(dim=axis, keepdim=True, unbiased=False)
    return (x - m) / torch.sqrt(v + eps)
def _scatter_add(tgt, idx, src, axis=0):
    return tgt.clone().index_add_(axis, idx, src)
def _segment_sum(src, seg, n):
    out = torch.zeros((n,) + src.shape[1:], dtype=src.dtype)
    return out.index_add_(0, seg, src)
def _pad(x, pw):
    flat = tuple(v for pair in reversed(pw) for v in pair)
    return torch.nn.functional.pad(x, flat)

kernel_name = 'interleave_layers__sliding_local_dilated__ssm_conv_h3__prompt'

def setup_inputs():

    _w = (lambda a: (lambda t: t.to(torch.bfloat16) if t.is_floating_point() else t)(torch.as_tensor(a)))
    def _A_setup():
        B, S, D = 1, 2048, 576
        return {
            "x": _w((lambda *s: torch.randn(*s, dtype=torch.bfloat16) * 0.05)(B, S, D)),
            "wqkv": _w((lambda *s: torch.randn(*s, dtype=torch.bfloat16) * 0.05)(D, 3 * D)),
            "wo": _w((lambda *s: torch.randn(*s, dtype=torch.bfloat16) * 0.05)(D, D)),
        }
    _A_in = _A_setup()

    def _B_setup():
        B, S, D = 1, 2048, 576
        ks = 4
        return {
            "q": _w((lambda *s: torch.randn(*s, dtype=torch.bfloat16) * 0.05)(B, S, D)),
            "k": _w((lambda *s: torch.randn(*s, dtype=torch.bfloat16) * 0.4)(B, S, D)),
            "v": _w((lambda *s: torch.randn(*s, dtype=torch.bfloat16) * 0.4)(B, S, D)),
            "shift_k": _w((lambda *s: torch.randn(*s, dtype=torch.bfloat16) * 0.4)(D, ks) * 0.5),
            "ssm_k": _w((lambda *s: torch.randn(*s, dtype=torch.bfloat16) * 0.8)(D, S) * (1.0 / S ** 0.5)),
            "ssm_D": _w((lambda *s: torch.randn(*s, dtype=torch.bfloat16) * 0.4)(D)),
        }
    _B_in = _B_setup()

    return {
        "A_x": _A_in["x"],
        "A_wqkv": _A_in["wqkv"],
        "A_wo": _A_in["wo"],
        "B_q": _B_in["q"],
        "B_k": _B_in["k"],
        "B_v": _B_in["v"],
        "B_shift_k": _B_in["shift_k"],
        "B_ssm_k": _B_in["ssm_k"],
        "B_ssm_D": _B_in["ssm_D"],
    }

def reference(A_x, A_wqkv, A_wo, B_q, B_k, B_v, B_shift_k, B_ssm_k, B_ssm_D):
    def _A_ref(x, wqkv, wo):
        B, S, D = x.shape
        H = 32; Dh = D // H
        W, dil = 8, 2
        qkv = (lambda x, *d: x.permute(*d))((x @ wqkv).reshape(B, S, 3, H, Dh), 2, 0, 3, 1, 4)
        q, k, v = qkv[0], qkv[1], qkv[2]
        scale = Dh ** -0.5
        pos = torch.arange(S)
        off = torch.arange(W) * dil
        idx = pos[:, None] - off[None, :]
        mask = idx >= 0
        idx_c = torch.where(mask, idx, 0).reshape(-1)
        kg = k[:, :, idx_c, :].reshape(B, H, S, W, Dh)
        vg = v[:, :, idx_c, :].reshape(B, H, S, W, Dh)
        logits = torch.einsum("bhsd,bhswd->bhsw", q, kg) * scale
        logits = torch.where(mask[None, None, :, :], logits, -1e9)
        attn = _softmax(logits, axis=-1)
        o = torch.einsum("bhsw,bhswd->bhsd", attn, vg)
        return (lambda x, *d: x.permute(*d))(o, 0, 2, 1, 3).reshape(B, S, D) @ wo

    def _B_ref(q, k, v, shift_k, ssm_k, ssm_D):
        B, S, D = q.shape
        ks = shift_k.shape[-1]
        k_pad = _pad(k, ((0, 0), (ks - 1, 0), (0, 0)))
        k_shift = torch.zeros_like(k)
        for t in range(ks):
            k_shift = k_shift + k_pad[:, t:t + S, :] * shift_k[:, ks - 1 - t][None, None, :]
        kv = k_shift * v
        L = 2 * S
        kv_pad = _pad(kv, ((0, 0), (0, S), (0, 0)))
        kf_pad = _pad(ssm_k, ((0, 0), (0, S)))
        kv_f = (lambda x, axes=(-2,-1): torch.fft.rfft2(x.float(), dim=axes))(kv_pad[:, None, :, :], axes=(1, 2))
        kf_f = (lambda x, axes=(-2,-1): torch.fft.rfft2(x.float(), dim=axes))(kf_pad[:, None, :], axes=(1, 2))
        kf_f = (lambda x, *d: x.permute(*d))(kf_f, 1, 2, 0)
        y_f = kv_f * kf_f[None, :, :, :]
        y = (lambda x, s, axes=(-2,-1): torch.fft.irfft2(x, s=s, dim=axes).to(torch.bfloat16))(y_f, (1, L), axes=(1, 2))[:, 0, :S, :]
        y = y + kv * ssm_D[None, None, :]
        return q * y

    x = A_x
    x = x + _A_ref(_layernorm(x, axis=-1), A_wqkv, A_wo)
    x = x + _B_ref(_layernorm(x, axis=-1), B_k, B_v, B_shift_k, B_ssm_k, B_ssm_D)
    x = x + _A_ref(_layernorm(x, axis=-1), A_wqkv, A_wo)
    x = x + _B_ref(_layernorm(x, axis=-1), B_k, B_v, B_shift_k, B_ssm_k, B_ssm_D)
    return x
```

```python
import re

TRANS = ("v_exp_f32", "v_log_f32", "v_rcp_f32", "v_rsq_f32", "v_sqrt_f32", "v_sin_f32", "v_cos_f32", "v_rcp_iflag_f32")

def regs_of(op):
    op = op.strip()
    op = op.lstrip("-")
    m = re.match(r"^abs\((.*)\)$", op)
    if m: op = m.group(1)
    m = re.match(r"^\|(.*)\|$", op)
    if m: op = m.group(1)
    m = re.match(r"^([vas])(\d+)$", op)
    if m: return {(m.group(1), int(m.group(2)))}
    m = re.match(r"^([vas])\[(\d+):(\d+)\]$", op)
    if m: return {(m.group(1), i) for i in range(int(m.group(2)), int(m.group(3)) + 1)}
    if op in ("vcc", "vcc_lo", "vcc_hi"): return {("vcc", 0)}
    if op in ("exec", "exec_lo", "exec_hi"): return {("exec", 0)}
    if op == "m0": return {("m0", 0)}
    return set()

class Ins:
    __slots__ = ("text", "mn", "ops", "mods", "dst", "src", "kind", "passes", "srcC", "srcAB", "isdpp", "wide_store_data", "sdwa")
    def __init__(self, text):
        self.text = text
        t = text.split(";")[0].strip()
        parts = t.split(None, 1)
        self.mn = parts[0]
        rest = parts[1] if len(parts) > 1 else ""
        ops = []; cur = ""; depth = 0
        for ch in rest:
            if ch in "[(": depth += 1
            if ch in "])": depth -= 1
            if ch == "," and depth == 0:
                ops.append(cur.strip()); cur = ""
            else:
                cur += ch
        if cur.strip(): ops.append(cur.strip())
        mods = ""
        if ops:
            sp = ops[-1].split(None, 1)
            if len(sp) > 1:
                ops[-1] = sp[0]; mods = sp[1]
        self.ops = ops; self.mods = mods
        mn = self.mn
        self.dst = set(); self.src = set(); self.srcC = set(); self.srcAB = set()
        self.passes = 0; self.isdpp = False; self.wide_store_data = set(); self.sdwa = False
        R = [regs_of(o) for o in ops]
        if mn.startswith("v_mfma"):
            self.kind = "mfma"
            self.passes = 8 if "32x32x16" in mn else 4 if "16x16x32" in mn else 2 if "4x4x4" in mn else 16
            self.dst = R[0]; self.srcAB = R[1] | R[2]; self.srcC = R[3]; self.src = self.srcAB | self.srcC
        elif mn.startswith("v_"):
            self.kind = "trans" if any(mn.startswith(x) for x in TRANS) else "valu"
            self.isdpp = ("dpp" in mn) or ("quad_perm" in mods or "row_" in mods)
            self.sdwa = "sdwa" in mn
            if mn.startswith("v_permlane") and "swap" in mn:
                self.dst = R[0] | R[1]; self.src = R[0] | R[1]; self.kind = "permlane"
            elif mn.startswith("v_cmp"):
                self.dst = R[0]; self.src = set().union(*R[1:])
                if mn.startswith("v_cmpx"): self.dst |= {("exec", 0)}
            elif mn.startswith(("v_add_co", "v_sub_co", "v_addc_co", "v_subb_co", "v_subrev_co")):
                self.dst = R[0] | R[1]; self.src = set().union(*R[2:])
            else:
                self.dst = R[0]; self.src = set().union(*R[1:]) if len(R) > 1 else set()
                if mn.startswith(("v_fmac", "v_dot2c", "v_pk_fmac", "v_writelane")) or self.isdpp or "d16" in mn:
                    self.src |= R[0]
                if mn.startswith("v_cndmask") and len(ops) == 3:
                    self.src |= {("vcc", 0)}
        elif mn.startswith(("buffer_", "global_", "flat_")):
            self.kind = "vmem"
            islds = (" lds" in (" " + mods)) or "_lds_" in mn
            if "load" in mn and not islds:
                self.dst = R[0]; self.src = set().union(*R[1:])
                if "d16" in mn: self.src |= R[0]
            elif "atomic" in mn:
                self.src = set().union(*R)
                if "sc0" in mods: self.dst = R[0]
            else:
                self.src = set().union(*R) if R else set()
                if islds: self.src |= {("m0", 0)}
                if "store" in mn and ("x4" in mn or "x3" in mn):
                    self.wide_store_data = R[0] if mn.startswith("buffer_") else R[1]
        elif mn.startswith("ds_"):
            self.kind = "ds"
            if mn.startswith(("ds_read", "ds_bpermute", "ds_permute", "ds_swizzle")):
                self.dst = R[0]; self.src = set().union(*R[1:])
                if "d16" in mn: self.src |= R[0]
            else:
                self.src = set().union(*R) if R else set()
        elif mn.startswith("s_"):
            self.kind = "salu"
            if mn.startswith(("s_cmp", "s_cbranch", "s_branch", "s_waitcnt", "s_barrier", "s_nop", "s_endpgm", "s_sleep", "s_setprio")):
                self.src = set().union(*R) if R else set()
            else:
                self.dst = R[0] if R else set(); self.src = set().union(*R[1:]) if len(R) > 1 else set()
                if "saveexec" in mn: self.dst |= {("exec", 0)}
        else:
            self.kind = "other"

    def states(self):
        if self.mn == "s_nop": return int(self.ops[0], 0) + 1
        return 1

def need(prod, cons):
    n = 0
    pk, ck = prod.kind, cons.kind
    pvalu = pk in ("valu", "trans", "permlane")
    cvalu = ck in ("valu", "trans", "permlane")
    vec = lambda S: {r for r in S if r[0] in ("v", "a")}
    sca = lambda S: {r for r in S if r[0] in ("s", "vcc")}
    if pvalu:
        if ck == "mfma" and vec(prod.dst) & cons.src: n = max(n, 2)
        if ck == "vmem" and sca(prod.dst) & cons.src: n = max(n, 5)
        if cvalu and sca(prod.dst) & cons.src:
            n = max(n, 4 if cons.mn.startswith(("v_readlane", "v_writelane")) else 2)
        if cons.mn.startswith(("v_readlane", "v_readfirstlane")) and vec(prod.dst) & cons.src: n = max(n, 1)
        if cvalu and cons.isdpp and vec(prod.dst) & cons.src: n = max(n, 2)
        if ck == "permlane" and vec(prod.dst) & cons.src: n = max(n, 2)
        if pk == "trans" and cvalu and ck != "trans" and vec(prod.dst) & cons.src: n = max(n, 1)
        if prod.sdwa and cvalu and vec(prod.dst) & (cons.src | cons.dst): n = max(n, 1)
        if ("exec", 0) in prod.dst and (cvalu or ck == "mfma"): n = max(n, 5)
        if ck == "salu" and sca(prod.dst) & cons.src: n = max(n, 1)
    if prod.mn.startswith("v_dot") and (prod.dst & (cons.src | cons.dst)):
        same_c = cons.mn == prod.mn and not (prod.dst & (regs_of(cons.ops[1]) | regs_of(cons.ops[2])))
        if not same_c: n = max(n, 3)
    if pk == "mfma":
        P = prod.passes
        big = {2: 5, 4: 8, 8: 12, 16: 20}[P]
        if ck == "mfma":
            if prod.dst & cons.srcAB: n = max(n, big)
            if prod.dst & cons.srcC:
                if not (prod.dst == cons.srcC and prod.passes == cons.passes):
                    n = max(n, {2: 4, 4: 6, 8: 10, 16: 18}[P])
                elif P == 2: n = max(n, 2)
            if prod.dst & cons.dst and not (prod.dst & cons.srcC): n = max(n, big)
        elif ck in ("valu", "trans", "permlane", "vmem", "ds"):
            if prod.dst & (cons.src | cons.dst): n = max(n, big)
            if cvalu and prod.srcC & cons.dst: n = max(n, {2: 1, 4: 3, 8: 7, 16: 15}[P])
    if pk == "salu" and ("m0", 0) in prod.dst and ck == "vmem" and ("m0", 0) in cons.src: n = max(n, 1)
    if prod.wide_store_data and prod.wide_store_data & cons.dst: n = max(n, 2 if cvalu else 1)
    return n

class Asm:
    def __init__(self):
        self.lines = []
    def __call__(self, text):
        for ln in text.strip("\n").split("\n"):
            s = ln.strip()
            if not s: continue
            if s.startswith(";") or s.startswith("."):
                self.lines.append(("raw", s))
            elif re.match(r"^[\w.$]+:$", s):
                self.lines.append(("label", s))
            else:
                self.lines.append(("i", Ins(s)))
    def raw(self, text):
        self.lines.append(("raw", text))
    def label(self, name):
        self.lines.append(("label", name + ":"))
    def finish(self):
        out = []
        win = []
        nnop = 0
        for kind, obj in self.lines:
            if kind == "raw":
                out.append(obj if obj.startswith(".") or obj.startswith(";") else "    " + obj); continue
            if kind == "label":
                out.append(obj); continue
            ins = obj
            req = 0
            for p, dist in win:
                r = need(p, ins) - dist
                if r > req: req = r
            while req > 0:
                k = min(req, 16)
                out.append(f"    s_nop {k-1}")
                nnop += 1
                for w in win: w[1] += k
                req -= k
            out.append("    " + ins.text)
            st = ins.states()
            for w in win: w[1] += st
            win = [w for w in win if w[1] < 21]
            win.append([ins, 0])
        self.nnop = nnop
        return "\n".join(out) + "\n"
```

```python
import sys
from gen_common import *
from k_prep import gen_prep
from k_conv import gen_conv
from k_qkv import gen_qkv
from k_oproj import gen_oproj, gen_gate

HEADER = open("cdna_kernels/" + NAME + ".s.ref").read().split("; Override launch")[0]

def build(kerns, launches, path):
    a = Asm()
    infos = {}
    for g in kerns:
        inf = g(a)
        infos[inf["name"]] = inf
    body = a.finish()
    s = HEADER
    for n in launches:
        i = infos[n]
        s += f"; @launch kernel={n} grid=({i['grid']},1,1) block=({i['block']},1,1) lds={i['lds']}\n"
    s += '.amdgcn_target "amdgcn-amd-amdhsa--gfx950"\n.text\n'
    s += body
    s += '.section .rodata,"a"\n'
    for n, i in infos.items():
        s += kernel_desc(n, i["vgpr"], i.get("accum"))
    open(path, "w").write(s)
    print("wrote", path, len(s), "bytes; nops inserted:", a.nnop)

if __name__ == "__main__":
    out = sys.argv[1] if len(sys.argv) > 1 else "cdna_kernels/" + NAME + ".s"
    build([gen_prep, gen_conv, gen_qkv(0), gen_oproj(0), gen_gate(0), gen_qkv(1), gen_oproj(1), gen_gate(1)],
          ["prep_kernel", "conv_kernel", "qkv0_kernel", "oproj0_kernel", "gate0_kernel", "qkv1_kernel", "oproj1_kernel", "gate1_kernel"], out)
```

```python
from asmlib import Asm, Ins, regs_of

NAME = "interleave_layers__sliding_local_dilated__ssm_conv_h3__prompt"
KA_X, KA_WQKV, KA_WO, KA_BQ, KA_K, KA_V, KA_SHK, KA_SSMK, KA_SSMD, KA_OUT, KA_DBG, KA_WS = [8 * i for i in range(12)]
S, D = 2048, 576
ROWB = 1152
XB = S * ROWB
GS = 4224
WS_G = 0x0
WS_G_SZ = 576 * 2 * GS
WS_YT = 0x500000
WS_O = 0x800000
WS_X1 = 0xB00000
WS_X2 = 0xE00000
WS_X3 = 0x1100000
WS_ST = 0x1400000
ST_SZ = 0x20000
WS_XF = 0xB00000
WS_WQ = 0x1500000
WQ_SZ = 16 * 18 * 7 * 1024
WS_WO = 0x1700000
WO_SZ = 8 * 18 * 4608
WS_CS = 0x17C0000
TILEB = 18432

def srd(a, sd, sp, size, off=0):
    if off:
        a(f"s_add_u32 s{sd}, s{sp}, {off}")
        a(f"s_addc_u32 s{sd+1}, s{sp+1}, 0")
    else:
        a(f"s_mov_b32 s{sd}, s{sp}")
        a(f"s_mov_b32 s{sd+1}, s{sp+1}")
    a(f"s_mov_b32 s{sd+2}, {size}")
    a(f"s_mov_b32 s{sd+3}, 0x00020000")

def kernel_head(a, name):
    a.raw(f".globl {name}")
    a.raw(".p2align 8")
    a.raw(f".type {name},@function")
    a.label(name)

def kernel_desc(name, vgpr, accum=None, sgpr=102):
    vg = vgpr
    if accum is None:
        accum = (vgpr + 3) // 4 * 4
    return f""".p2align 6
.amdhsa_kernel {name}
  .amdhsa_next_free_vgpr {vg}
  .amdhsa_next_free_sgpr {sgpr}
  .amdhsa_accum_offset {accum}
  .amdhsa_group_segment_fixed_size 0
  .amdhsa_kernarg_size 96
  .amdhsa_user_sgpr_count 2
  .amdhsa_user_sgpr_kernarg_segment_ptr 1
  .amdhsa_system_sgpr_workgroup_id_x 1
.end_amdhsa_kernel
"""

class Cnt:
    def __init__(self, a, name, maxv):
        self.a = a; self.name = name; self.maxv = maxv
        self.q = []
    def issue(self, text, tag=None):
        self.a(text)
        if tag is None:
            tag = Ins(text).dst
        self.q.append(tag)
    def wait(self, want):
        last = -1
        for i, t in enumerate(self.q):
            hit = (t & want) if isinstance(t, (set, frozenset)) and isinstance(want, (set, frozenset)) else (t == want)
            if hit: last = i
        if last < 0: return
        n = len(self.q) - 1 - last
        n = min(n, self.maxv)
        self.a(f"s_waitcnt {self.name}({n})")
        self.q = self.q[len(self.q) - n:] if n else []
    def wait_all(self):
        if self.q:
            self.a(f"s_waitcnt {self.name}(0)")
            self.q = []

def vr(b, n=1, k="v"):
    return f"{k}{b}" if n == 1 else f"{k}[{b}:{b+n-1}]"
def rset(b, n=1, k="v"):
    return {(k, i) for i in range(b, b + n)}

import os
PROF = bool(int(os.environ.get("PROF", "0")))
WS_PROF = 0x1800000
def stamp(a, i):
    if not PROF: return
    if i == 0: a("s_memrealtime s[76:77]")
    a(f"s_memtime s[{78+2*i}:{79+2*i}]")
def stamp_end(a, kidx, n, vt=1, wsp=12, swave=3):
    if not PROF: return
    a("s_mov_b64 exec, -1")
    a("s_waitcnt vmcnt(0)")
    a(f"s_memtime s[{78+2*n}:{79+2*n}]")
    a("s_memrealtime s[94:95]")
    srd(a, 96, wsp, 0x80000, WS_PROF + kidx * 0x80000)
    a(f"""
    s_lshl_b32 s75, s2, 3
    s_add_u32 s75, s75, s{swave}
    s_lshl_b32 s75, s75, 6
    v_mov_b32 v{vt}, s75
    s_waitcnt lgkmcnt(0)
    s_mov_b64 exec, 1
    """)
    vals = [76, 94] + [78 + 2 * i for i in range(n + 1)]
    for j, sreg in enumerate(vals):
        a(f"v_mov_b32 v{vt+1}, s{sreg}")
        a(f"buffer_store_dword v{vt+1}, v{vt}, s[96:99], 0 offen offset:{4*j}")
    a("s_mov_b64 exec, -1")
```

```python
from gen_common import *
from k_prep import round_pairs

CS = 4160
FREG = 4 * CS
CH = 24576
NCH = 3
NCONV = 576 // NCH
CONV_LDS = NCH * CH

def conv_body(a, L, sid=2, kidx=1):
    stamp(a, 0)
    a(f"""
    s_load_dwordx2 s[4:5], s[0:1], {KA_SSMK}
    s_load_dwordx2 s[6:7], s[0:1], {KA_SSMD}
    s_load_dwordx2 s[12:13], s[0:1], {KA_WS}
    v_lshrrev_b32 v1, 6, v0
    v_and_b32 v2, 63, v0
    s_mul_i32 s32, s{sid}, {NCH}
    v_readfirstlane_b32 s3, v1
    v_lshlrev_b32 v3, 4, v2
    """)
    a(f"""
    s_mul_i32 s34, s32, {2*GS}
    s_and_b32 s36, s3, 1
    s_mul_i32 s36, s36, {GS}
    s_add_u32 s34, s34, s36
    s_lshr_b32 s36, s3, 1
    s_lshl_b32 s36, s36, 2
    s_add_u32 s34, s34, s36
    s_mul_i32 s35, s3, {CS}
    s_lshl_b32 s37, s32, 12
    s_lshl_b32 s38, s3, 10
    s_add_u32 s39, s37, s38
    s_waitcnt lgkmcnt(0)
    """)
    srd(a, 16, 4, XB)
    srd(a, 20, 6, 1152)
    srd(a, 24, 12, WS_G_SZ, WS_G)
    srd(a, 28, 12, XB, WS_YT)
    vm = Cnt(a, "vmcnt", 63)
    for c in range(NCH):
        a(f"s_add_u32 s40, s39, {c*4096}")
        a(f"s_add_u32 m0, s38, {c*CH + FREG + 512}")
        vm.issue("buffer_load_dwordx4 v3, s[16:19], s40 offen lds", tag=f"ch{c}")
        for i in (3, 2, 1, 0):
            a(f"s_add_u32 s40, s34, {c*2*GS + 1024*i}")
            a(f"s_add_u32 m0, s35, {c*CH + 1024*i}")
            vm.issue("buffer_load_dwordx4 v3, s[24:27], s40 offen lds", tag=f"ch{c}")
    a("""
    s_lshl_b32 s40, s32, 1
    v_mov_b32 v11, s40
    """)
    for c in range(NCH):
        vm.issue(f"buffer_load_ushort v{8+c}, v11, s[20:23], 0 offen offset:{2*c}", tag="dv")
    a(f"""
    v_mov_b32 v12, 0
    v_mov_b32 v13, 0
    v_mov_b32 v14, 0
    v_mov_b32 v15, 0
    v_lshlrev_b32 v16, 4, v0
    v_add_u32 v16, {FREG}, v16
    v_subrev_u32 v17, 32, v0
    v_lshrrev_b32 v18, 2, v17
    v_mul_u32_u24 v18, {CS}, v18
    v_and_b32 v17, 3, v17
    v_lshl_add_u32 v17, v17, 4, v18
    v_add_u32 v17, 4096, v17
    v_cmp_gt_u32 vcc, 32, v0
    v_cndmask_b32 v16, v17, v16, vcc
    v_cmp_gt_u32 vcc, 48, v0
    s_and_saveexec_b64 s[42:43], vcc
    """)
    for c in range(NCH):
        a(f"ds_write_b128 v16, v[12:15] offset:{c*CH}")
    a("s_mov_b64 exec, s[42:43]")
    a(f"""
    v_and_b32 v18, 15, v2
    v_lshrrev_b32 v19, 4, v2
    v_and_b32 v20, 7, v18
    v_lshrrev_b32 v21, 3, v18
    v_lshl_add_u32 v20, v20, 1, v21
    v_sub_u32 v21, 3, v20
    v_and_b32 v21, 3, v21
    v_add_u32 v20, v20, v21
    v_and_b32 v22, 1, v19
    v_lshrrev_b32 v23, 1, v19
    v_lshlrev_b32 v16, 3, v22
    v_sub_u32 v16, v16, v20
    v_lshlrev_b32 v17, 4, v23
    v_sub_u32 v16, v16, v17
    v_lshlrev_b32 v16, 1, v16
    v_mul_u32_u24 v21, {CS}, v21
    v_add_u32 v16, v16, v21
    s_lshl_b32 s36, s3, 7
    s_sub_u32 s40, {2*2047 - 64 - 3584}, s36
    v_add_u32 v16, s40, v16
    v_sub_u32 v17, v18, v23
    v_lshlrev_b32 v17, 5, v17
    v_lshl_add_u32 v17, v22, 4, v17
    s_sub_u32 s40, {FREG + 512 - 64}, s36
    v_add_u32 v17, s40, v17
    """)
    a(f"""
    v_lshlrev_b32 v21, 5, v18
    v_lshl_add_u32 v21, v22, 4, v21
    s_lshl_b32 s36, s3, 10
    s_sub_u32 s40, {4080 - 512}, s36
    v_sub_u32 v21, s40, v21
    v_lshlrev_b32 v20, 4, v23
    v_lshlrev_b32 v22, 5, v18
    v_lshl_add_u32 v22, v19, 3, v22
    v_add_u32 v22, s36, v22
    """)
    VA, VB = 16, 17
    BF = 24
    AF = 88
    KV = 104
    lg = Cnt(a, "lgkmcnt", 15)
    steps = [(c, rp) for c in range(NCH) for rp in range(2)]
    acnt = [0]
    def bread(si, d):
        c, rp = steps[si]
        return f"ds_read_b128 {vr(BF+32*(si&1)+4*d,4)}, v{VB} offset:{c*CH + 512*d + 64*(1-rp)}"
    def areads(si, a_):
        c, rp = steps[si]
        slot = (si * 8 + (7 - a_)) % 4
        off = c * CH + 64 * (1 - rp) + 512 * (7 - a_)
        return [f"ds_read_b64 {vr(AF+4*slot,2)}, v{VA} offset:{off}", f"ds_read_b64 {vr(AF+4*slot+2,2)}, v{VA} offset:{off+8}"]
    started = set()
    for si, (c, rp) in enumerate(steps):
        if rp == 0:
            vm.wait(f"ch{c}")
            if c == 0: a("s_waitcnt lgkmcnt(0)")
            a("s_barrier")
            stamp(a, 1 + c)
            for t in areads(si, 7): lg.issue(t)
            lg.issue(bread(si, 0))
            for t in areads(si, 6): lg.issue(t)
            lg.issue(bread(si, 1))
            for t in areads(si, 5): lg.issue(t)
            q = [bread(si, d) for d in range(2, 8)]
        else:
            q = []
        nxt_same = (rp == 0)
        for a_ in range(7, -1, -1):
            slot = (si * 8 + (7 - a_)) % 4
            grp = []
            pa = a_ - 3
            if pa >= 0: grp += areads(si, pa)
            elif nxt_same: grp += areads(si + 1, 8 + pa)
            if nxt_same and a_ <= 5 and a_ >= 2:
                k = 5 - a_
                grp += [bread(si + 1, 2 * k), bread(si + 1, 2 * k + 1)]
            if rp == 1 and a_ == 3:
                grp += [f"ds_read_b128 {vr(KV+8*c,4)}, v21 offset:{c*CH + 512}", f"ds_read_b128 {vr(KV+8*c+4,4)}, v21 offset:{c*CH}"]
            for d in range(0, 8 - a_):
                n = a_ + d
                need_ = rset(AF + 4 * slot, 4) | rset(BF + 32 * (si & 1) + 4 * d, 4)
                while q and any(f"v[{BF+32*(si&1)+4*d}:" in t for t in q):
                    lg.issue(q.pop(0))
                lg.wait(need_)
                acc = vr(32 * c + 4 * n, 4, "a")
                cin = acc if (c, n) in started else "0"
                started.add((c, n))
                a(f"v_mfma_f32_16x16x32_bf16 {acc}, {vr(AF+4*slot,4)}, {vr(BF+32*(si&1)+4*d,4)}, {cin}")
                if d == 7 - a_:
                    for t in grp: lg.issue(t)
                    grp = []
                elif q: lg.issue(q.pop(0))
                elif grp and d >= 0: lg.issue(grp.pop(0))
    stamp(a, 4)
    lg.wait_all()
    for o in range(4):
        a(f"""
        s_sub_u32 s40, s3, {o+1}
        s_and_b32 s40, s40, 3
        s_cmp_lg_u32 s40, 3
        s_cselect_b64 s[{44+2*o}:{45+2*o}], -1, 0
        s_lshl_b32 s40, s40, 11
        s_add_u32 s40, s40, {o*6144}
        v_add_u32 v{24+o}, s40, v3
        """)
    a(f"""
    s_mul_i32 s40, s3, 6144
    v_add_u32 v28, s40, v3
    s_barrier
    """)
    for o in range(4):
        a(f"s_mov_b64 exec, s[{44+2*o}:{45+2*o}]")
        for c in range(NCH):
            for h in range(2):
                a(f"ds_write_b128 v{24+o}, {vr(32*c + 8*o + 4*h, 4, 'a')} offset:{c*CH + 1024*h}")
    a("s_mov_b64 exec, -1")
    OWN = 32
    a(f"""
    s_cmp_eq_u32 s3, 1
    s_cbranch_scc1 {L}_o1
    s_cmp_eq_u32 s3, 2
    s_cbranch_scc1 {L}_o2
    s_cmp_eq_u32 s3, 3
    s_cbranch_scc1 {L}_o3
    """)
    for o in range(4):
        if o: a.label(f"{L}_o{o}")
        for c in range(NCH):
            for r in range(8):
                a(f"v_accvgpr_read_b32 v{OWN+8*c+r}, a{32*c+8*o+r}")
        if o < 3: a(f"s_branch {L}_oj")
    a.label(f"{L}_oj")
    vm.wait("dv")
    T = [4, 5, 6, 7]
    U = 56
    for c in range(NCH):
        a(f"v_lshlrev_b32 v{8+c}, 16, v{8+c}")
        for h in range(2):
            for i in range(4):
                a(f"v_lshlrev_b32 v{U+8*c+4*h+i}, v20, v{KV+8*c+4*h+3-i}")
        for r in range(8):
            a(f"v_and_b32 v{U+8*c+r}, 0xffff0000, v{U+8*c+r}")
        for r in range(8):
            a(f"v_mul_f32 v{U+8*c+r}, v{U+8*c+r}, v{8+c}")
        round_pairs(a, [U + 8 * c + r for r in range(8)], T)
    a("""
    s_waitcnt lgkmcnt(0)
    s_barrier
    """)
    PR = 80
    def rd(c):
        for si in range(3):
            for h in range(2):
                lg.issue(f"ds_read_b128 {vr(PR + 24*(c&1) + 8*si + 4*h, 4)}, v28 offset:{c*CH + 2048*si + 1024*h}")
    rd(0); rd(1)
    for c in range(NCH):
        b = PR + 24 * (c & 1); o = OWN + 8 * c
        lg.wait(rset(b, 16))
        for r in range(8):
            a(f"v_add_f32 v{o+r}, v{o+r}, v{b+r}")
        lg.wait(rset(b + 16, 8))
        for r in range(8):
            a(f"v_add_f32 v{b+8+r}, v{b+8+r}, v{b+16+r}")
        for r in range(8):
            a(f"v_add_f32 v{o+r}, v{o+r}, v{b+8+r}")
        if c == 0: rd(2)
        round_pairs(a, [o + r for r in range(8)], T)
        for r in range(8):
            a(f"v_add_f32 v{o+r}, v{o+r}, v{U+8*c+r}")
        for k in range(4):
            a(f"v_cvt_pk_bf16_f32 v{o+k}, v{o+2*k}, v{o+2*k+1}")
        a(f"s_add_u32 s40, s37, {4096*c}")
        a(f"buffer_store_dwordx2 {vr(o,2)}, v22, s[28:31], s40 offen")
        a(f"buffer_store_dwordx2 {vr(o+2,2)}, v22, s[28:31], s40 offen offset:512")
    stamp_end(a, kidx, 5)

def gen_conv2(a, name="conv_kernel"):
    kernel_head(a, name)
    a(f"""
    s_cmp_ge_u32 s2, {NCONV}
    s_cbranch_scc1 L_conv_end
    """)
    conv_body(a, "L_conv")
    a.label("L_conv_end")
    a("s_endpgm")
    return dict(name=name, vgpr=128 + 96, accum=128, grid=NCONV, block=256, lds=CONV_LDS)
```

```python
from gen_common import *
from k_qkv import xlane_sum, ln_params, f2u
from k_prep import round_pairs
from k_oproj import tile_map, quarter_mask, y_addr, y_issue, y_read, tile_stats, gate_math, unpack_pk

WIMG_SZ = 18 * 4608
YOFF = WIMG_SZ
OP_LDS = YOFF + 80 * 128

def oproj_body(a, layer, L, kidx):
    stamp(a, 0)
    a(f"""
    s_load_dwordx2 s[8:9], s[0:1], {KA_OUT}
    s_load_dwordx2 s[12:13], s[0:1], {KA_WS}
    v_lshrrev_b32 v1, 6, v0
    v_and_b32 v2, 63, v0
    s_nop 0
    v_readfirstlane_b32 s3, v1
    """)
    tile_map(a)
    quarter_mask(a, 52, 3)
    a(f"""
    v_lshlrev_b32 v3, 4, v2
    s_lshl_b32 s36, s34, 2
    s_add_u32 s36, s36, s3
    s_mul_i32 s37, s36, {TILEB}
    s_mul_i32 s38, s35, {WIMG_SZ}
    s_lshl_b32 s46, s3, 10
    s_add_u32 s39, s38, s46
    v_and_b32 v13, 15, v2
    v_lshrrev_b32 v14, 4, v2
    v_lshrrev_b32 v9, 1, v14
    v_lshlrev_b32 v9, 8, v9
    v_lshl_add_u32 v9, v13, 4, v9
    v_and_b32 v10, 1, v14
    v_lshl_add_u32 v9, v10, 3, v9
    s_mul_i32 s44, s35, {9*256}
    s_add_u32 s44, s44, s37
    v_add_u32 v9, s44, v9
    v_and_b32 v7, 7, v2
    v_lshl_add_u32 v7, v14, 3, v7
    v_lshlrev_b32 v7, 4, v7
    v_add_u32 v7, 4096, v7
    s_mov_b32 s56, -1
    s_mov_b32 s57, 0
    s_mov_b32 s58, 0xffff
    s_mov_b32 s59, 0
    s_waitcnt lgkmcnt(0)
    """)
    srd(a, 16, 12, XB, WS_O)
    srd(a, 20, 12, WO_SZ, WS_WO)
    srd(a, 24, 12, XB, WS_XF if layer == 0 else WS_X2)
    srd(a, 60, 12, ST_SZ, WS_ST + (1 if layer == 0 else 3) * ST_SZ)
    srd(a, 64, 12, XB, WS_YT)
    if layer == 0:
        srd(a, 68, 12, XB, WS_X2)
        srd(a, 72, 12, ST_SZ, WS_ST + 2 * ST_SZ)
    else:
        srd(a, 68, 8, XB)
    vm = Cnt(a, "vmcnt", 63)
    OF = 24
    for cc in range(9):
        tag = f"c{cc}"
        a(f"s_add_u32 s40, s39, {cc*9216}")
        a(f"s_add_u32 m0, s46, {cc*9216}")
        vm.issue(f"buffer_load_dwordx4 v3, s[20:23], s40 offen lds", tag=tag)
        a(f"s_add_u32 s40, s39, {cc*9216+4096}")
        a(f"s_add_u32 m0, s46, {cc*9216+4096}")
        vm.issue(f"buffer_load_dwordx4 v3, s[20:23], s40 offen lds", tag=tag)
        a(f"s_add_u32 s40, s38, {cc*9216+8192}")
        a(f"s_mov_b32 m0, {cc*9216+8192}")
        a("s_mov_b64 exec, s[52:53]")
        vm.issue(f"buffer_load_dwordx4 v3, s[20:23], s40 offen lds", tag=tag)
        a("s_mov_b64 exec, -1")
        a(f"s_add_u32 s40, s37, {cc*2048}")
        for s in (2 * cc, 2 * cc + 1):
            vm.issue(f"buffer_load_dwordx4 {vr(OF+4*s,4)}, v3, s[16:19], s40 offen offset:{1024*(s&1)}", tag=tag)
    RES = 96
    for tl in range(5):
        vm.issue(f"buffer_load_dwordx2 {vr(RES+2*tl,2)}, v9, s[24:27], 0 offen offset:{512*tl}", tag="res")
    y_addr(a, 16, 20)
    y_issue(a, vm, 16, 64, 52, YOFF)
    WF = 108
    ACC = 148
    lg = Cnt(a, "lgkmcnt", 15)
    a("v_mov_b32 v6, v3")
    def reads(s):
        R = []
        for tl in range(5):
            off = (s % 9) * 4608 + (1024 * tl if tl < 4 else 0)
            R.append(f"ds_read_b128 {vr(WF+20*(s&1)+4*tl,4)}, v{6 if tl < 4 else 7} offset:{off}")
        return R
    stamp(a, 1)
    vm.wait("c0")
    a("s_barrier")
    stamp(a, 2)
    for t in reads(0): lg.issue(t)
    for s in range(18):
        if s % 2 == 1 and s + 1 < 18:
            vm.wait(f"c{(s+1)//2}")
            a("s_barrier")
        if s == 8:
            a(f"v_add_u32 v6, {9*4608}, v6")
            a(f"v_add_u32 v7, {9*4608}, v7")
        nxt = reads(s + 1) if s + 1 < 18 else []
        for tl in range(5):
            wf = WF + 20 * (s & 1) + 4 * tl
            lg.wait(rset(wf, 4))
            cin = "0" if s == 0 else vr(ACC + 4 * tl, 4)
            a(f"v_mfma_f32_16x16x32_bf16 {vr(ACC+4*tl,4)}, {vr(wf,4)}, {vr(OF+4*s,4)}, {cin}")
            if nxt: lg.issue(nxt[tl])
    stamp(a, 3)
    X = 24; T_ = 44; PK = 64; TT = [74, 75, 76, 77]; Y = 80
    vm.wait("y")
    a("s_barrier")
    y_read(a, lg, Y, 20, 21, YOFF)
    unpack_pk(a, X, RES)
    round_pairs(a, [ACC + i for i in range(20)], TT)
    for i in range(20): a(f"v_add_f32 v{X+i}, v{X+i}, v{ACC+i}")
    round_pairs(a, [X + i for i in range(20)], TT)
    tile_stats(a, X, 16, 17, 18, 56)
    a(f"""
    s_lshl_b32 s45, s36, 10
    s_lshr_b32 s40, s35, 1
    s_lshl_b32 s40, s40, 8
    s_and_b32 s41, s35, 1
    s_lshl_b32 s41, s41, 3
    s_add_u32 s40, s40, s41
    s_add_u32 s47, s40, s45
    s_mov_b64 exec, s[58:59]
    buffer_store_dwordx2 v[16:17], v3, s[60:63], s47 offen sc1
    s_mov_b64 exec, -1
    """)
    stamp(a, 4)
    a("s_mov_b32 s42, 0x40000")
    a.label(f"{L}_poll")
    a(f"""
    buffer_load_dwordx4 v[16:19], v3, s[60:63], s45 offen sc1
    s_sub_u32 s42, s42, 1
    s_cbranch_scc1 {L}_pollx
    s_waitcnt vmcnt(0)
    v_cmp_eq_u32 vcc, -1, v17
    v_cmp_eq_u32 s[40:41], -1, v19
    s_or_b64 vcc, vcc, s[40:41]
    s_cbranch_vccnz {L}_poll
    """)
    a.label(f"{L}_pollx")
    a("s_waitcnt vmcnt(0)")
    stamp(a, 5)
    vm.q = []
    a("v_add_f32 v16, v16, v18")
    a("v_add_f32 v17, v17, v19")
    xlane_sum(a, [16, 17], 18)
    ln_params(a, 16, 17, 18, 19)
    lg.wait(rset(Y, 10))
    gate_math(a, X, Y, T_, 16, 17, PK, TT)
    if layer == 0:
        for tl in range(4):
            a(f"buffer_store_dwordx2 {vr(PK+2*tl,2)}, v9, s[68:71], 0 offen offset:{512*tl}")
        a("s_mov_b64 exec, s[56:57]")
        a(f"buffer_store_dwordx2 {vr(PK+8,2)}, v9, s[68:71], 0 offen offset:2048")
        a("s_mov_b64 exec, -1")
        unpack_pk(a, X, PK)
        tile_stats(a, X, 16, 17, 18, 56)
        a("s_mov_b64 exec, s[58:59]")
        a(f"buffer_store_dwordx2 v[16:17], v3, s[72:75], s47 offen")
    else:
        a(f"""
        v_and_b32 v4, 7, v13
        v_lshrrev_b32 v5, 3, v13
        v_lshl_add_u32 v4, v4, 1, v5
        v_mul_u32_u24 v4, 144, v4
        v_lshl_add_u32 v4, v14, 3, v4
        s_mul_i32 s40, s3, 2560
        v_add_u32 v4, s40, v4
        v_add_u32 v5, s40, v3
        """)
        for tl in range(4):
            a(f"ds_write_b64 v4, {vr(PK+2*tl,2)} offset:{32*tl}")
        a("s_mov_b64 exec, s[56:57]")
        a(f"ds_write_b64 v4, {vr(PK+8,2)} offset:128")
        a("s_mov_b64 exec, -1")
        for j in range(3):
            a(f"""
            v_add_u32 v24, {64*j}, v2
            v_mul_u32_u24 v25, 7282, v24
            v_lshrrev_b32 v25, 16, v25
            v_mul_u32_u24 v25, {1152-144}, v25
            v_lshl_add_u32 v{28+j}, v24, 4, v25
            """)
        a(f"""
        s_mul_i32 s40, s35, 144
        s_add_u32 s40, s40, s37
        s_waitcnt lgkmcnt(0)
        ds_read_b128 v[32:35], v5
        ds_read_b128 v[36:39], v5 offset:1024
        ds_read_b128 v[40:43], v5 offset:2048
        s_waitcnt lgkmcnt(2)
        buffer_store_dwordx4 v[32:35], v28, s[68:71], s40 offen
        s_waitcnt lgkmcnt(1)
        buffer_store_dwordx4 v[36:39], v29, s[68:71], s40 offen
        s_waitcnt lgkmcnt(0)
        s_mov_b64 exec, s[58:59]
        buffer_store_dwordx4 v[40:43], v30, s[68:71], s40 offen
        """)
    stamp_end(a, kidx, 6)

def gen_oproj2(layer):
    def g(a):
        name = f"oproj{layer}_kernel"
        L = f"L_op{layer}"
        kernel_head(a, name)
        a(f"""
        s_cmp_ge_u32 s2, 256
        s_cbranch_scc1 {L}_end
        """)
        oproj_body(a, layer, L, 3 + 3 * layer)
        a.label(f"{L}_end")
        a("s_endpgm")
        return dict(name=name, vgpr=168, grid=256, block=256, lds=OP_LDS)
    return g
```

```python
from gen_common import *
from k_prep import round_pairs, unpack8
from k_qkv import xlane_sum

NG = 288; NWQ = 144; NWO = 72; NX = 64; NCS = 54
B_WQ = NG; B_WO = B_WQ + NWQ; B_X = B_WO + NWO; B_CS = B_X + NX; NPREP2 = B_CS + NCS

def slot_k(a, dst, slot, t):
    a(f"""
    v_and_b32 v{dst}, 0x38, v{slot}
    v_and_b32 v{t}, 1, v{slot}
    v_lshl_add_u32 v{dst}, v{t}, 2, v{dst}
    v_bfe_u32 v{t}, v{slot}, 1, 2
    v_add_u32 v{dst}, v{dst}, v{t}
    """)

def tr_rowbase(a, dst, t, rowb):
    a(f"""
    v_lshrrev_b32 v{dst}, 4, v2
    v_lshlrev_b32 v{dst}, 3, v{dst}
    v_bfe_u32 v{t}, v2, 2, 2
    v_lshl_add_u32 v{dst}, v{t}, 1, v{dst}
    s_and_b32 s40, s3, 1
    s_lshl_b32 s40, s40, 5
    v_add_u32 v{dst}, s40, v{dst}
    v_mul_u32_u24 v{dst}, {rowb}, v{dst}
    """)

def gen_prep2(a, name="prep_kernel"):
    kernel_head(a, name)
    a(f"""
    s_cmp_ge_u32 s2, {NPREP2}
    s_cbranch_scc1 L_prep_end
    """)
    stamp(a, 0)
    a(f"""
    s_load_dwordx2 s[4:5], s[0:1], {KA_K}
    s_load_dwordx2 s[6:7], s[0:1], {KA_V}
    s_load_dwordx2 s[8:9], s[0:1], {KA_SHK}
    s_load_dwordx2 s[10:11], s[0:1], {KA_X}
    s_load_dwordx2 s[12:13], s[0:1], {KA_WS}
    s_load_dwordx2 s[14:15], s[0:1], {KA_WQKV}
    s_load_dwordx2 s[46:47], s[0:1], {KA_WO}
    v_lshrrev_b32 v1, 6, v0
    v_and_b32 v2, 63, v0
    s_nop 0
    v_readfirstlane_b32 s3, v1
    s_waitcnt lgkmcnt(0)
    s_cmp_ge_u32 s2, {B_CS}
    s_cbranch_scc1 L_prep_cs
    s_cmp_ge_u32 s2, {B_X}
    s_cbranch_scc1 L_prep_x
    s_cmp_ge_u32 s2, {B_WO}
    s_cbranch_scc1 L_prep_wo
    s_cmp_ge_u32 s2, {B_WQ}
    s_cbranch_scc1 L_prep_wq
    """)
    srd(a, 16, 4, XB)
    srd(a, 20, 6, XB)
    srd(a, 24, 8, 576 * 8)
    srd(a, 28, 12, WS_G_SZ, WS_G)
    a("""
    s_mul_i32 s32, s2, 7282
    s_lshr_b32 s32, s32, 16
    s_mul_i32 s33, s32, 9
    s_sub_u32 s33, s2, s33
    s_lshl_b32 s34, s32, 6
    s_lshl_b32 s35, s33, 6
    v_and_b32 v1, 7, v0
    v_lshrrev_b32 v2, 3, v0
    """)
    a("""
    v_lshl_add_u32 v3, v2, 1, s34
    v_lshlrev_b32 v4, 3, v1
    v_add_u32 v4, s35, v4
    v_lshlrev_b32 v5, 3, v4
    v_lshlrev_b32 v4, 1, v4
    s_movk_i32 s36, 1152
    v_mul_lo_u32 v6, v3, s36
    v_add_u32 v6, v6, v4
    """)
    for i in range(6):
        a(f"v_add_u32 v{8+i}, {(i-4)*1152 & 0xffffffff:#x}, v6")
    vm = Cnt(a, "vmcnt", 63)
    KR = 16
    for i in range(1, 6):
        vm.issue(f"buffer_load_dwordx4 {vr(KR+4*i,4)}, v{8+i}, s[16:19], 0 offen")
    VR = 40
    for i in range(1, 3):
        vm.issue(f"buffer_load_dwordx4 {vr(VR+4*i,4)}, v{11+i}, s[20:23], 0 offen")
    WR = 52
    for i in range(4):
        vm.issue(f"buffer_load_dwordx4 {vr(WR+4*i,4)}, v5, s[24:27], 0 offen offset:{16*i}")
    vm.issue(f"buffer_load_dwordx4 {vr(KR,4)}, v8, s[16:19], 0 offen")
    vm.issue(f"buffer_load_dwordx4 {vr(VR,4)}, v11, s[20:23], 0 offen")
    WU = 68; KU = 100; P = 148; A_ = 156; VU = 164; TMP = [172, 173, 174, 175]; RES = [176, 184]
    vm.wait(rset(WR, 16))
    for i in range(16):
        a(f"v_lshlrev_b32 v{WU+2*i}, 16, v{WR+i}")
        a(f"v_and_b32 v{WU+2*i+1}, 0xffff0000, v{WR+i}")
    for i in range(1, 6):
        unpack8(a, KU + 8 * i, KR + 4 * i)
    def row(ki, vraw, res):
        for e in range(8):
            a(f"v_mul_f32 v{A_+e}, v{KU+8*(ki-3)+e}, v{WU+4*e+3}")
        round_pairs(a, [A_ + e for e in range(8)], TMP)
        for tap in (2, 1, 0):
            for e in range(8):
                a(f"v_mul_f32 v{P+e}, v{KU+8*(ki-tap)+e}, v{WU+4*e+tap}")
            round_pairs(a, [P + e for e in range(8)], TMP)
            for e in range(8):
                a(f"v_add_f32 v{A_+e}, v{A_+e}, v{P+e}")
            round_pairs(a, [A_ + e for e in range(8)], TMP)
        unpack8(a, VU, vraw)
        for e in range(8):
            a(f"v_mul_f32 v{res+e}, v{A_+e}, v{VU+e}")
    row(4, VR + 4, RES[0])
    row(5, VR + 8, RES[1])
    a("""
    v_mul_u32_u24 v7, 1056, v1
    v_lshlrev_b32 v14, 2, v2
    v_sub_u32 v14, 124, v14
    v_add_u32 v7, v7, v14
    """)
    for e in range(8):
        t = TMP[e % 4]
        a(f"v_cvt_pk_bf16_f32 v{t}, v{RES[1]+e}, v{RES[0]+e}")
        a(f"ds_write_b32 v7, v{t} offset:{132*e}")
    a("""
    v_cmp_gt_u32 vcc, 8, v0
    s_and_saveexec_b64 s[40:41], vcc
    s_cbranch_execz L_prep_nohalo
    """)
    a("s_waitcnt vmcnt(0)")
    unpack8(a, KU, KR)
    row(3, VR, RES[0])
    a("v_mul_u32_u24 v7, 1056, v1")
    for e in range(8):
        t = TMP[e % 4]
        a(f"v_cvt_pk_bf16_f32 v{t}, v{RES[0]+e}, v{RES[0]+e}")
        a(f"ds_write_b16 v7, v{t} offset:{132*e+128}")
    a.label("L_prep_nohalo")
    a("""
    s_mov_b64 exec, s[40:41]
    s_waitcnt vmcnt(0) lgkmcnt(0)
    s_barrier
    """)
    a(f"""
    v_mul_u32_u24 v7, 132, v2
    v_lshl_add_u32 v7, v1, 4, v7
    v_add_u32 v8, s35, v2
    s_movk_i32 s36, {2*GS}
    v_mul_lo_u32 v8, v8, s36
    s_sub_u32 s37, 1984, s34
    s_lshl_b32 s37, s37, 1
    v_lshl_add_u32 v8, v1, 4, v8
    v_add_u32 v8, s37, v8
    v_add_u32 v9, {32*2*GS}, v8
    """)
    for p in range(2):
        b = 16 + 16 * p
        o = 32 * 132 * p
        a(f"ds_read2_b32 v[{b}:{b+1}], v7 offset0:{0} offset1:{1}" if p == 0 else f"v_add_u32 v7, {o}, v7")
        if p == 1:
            a(f"ds_read2_b32 v[{b}:{b+1}], v7 offset0:0 offset1:1")
        a(f"ds_read2_b32 v[{b+2}:{b+3}], v7 offset0:2 offset1:3")
        a(f"ds_read_b32 v{b+4}, v7 offset:16")
    a("s_waitcnt lgkmcnt(0)")
    for p in range(2):
        b = 16 + 16 * p
        for i in range(4):
            a(f"v_alignbit_b32 v{b+8+i}, v{b+i+1}, v{b+i}, 16")
        a(f"buffer_store_dwordx4 v[{b}:{b+3}], v{8+p}, s[28:31], 0 offen")
        a(f"v_add_u32 v10, {GS}, v{8+p}")
        a(f"buffer_store_dwordx4 v[{b+8}:{b+11}], v10, s[28:31], 0 offen")
    a(f"""
    s_cmp_lg_u32 s34, 0
    s_cbranch_scc1 L_prep_fin
    v_cmp_gt_u32 vcc, 128, v0
    s_and_saveexec_b64 s[40:41], vcc
    s_cbranch_execz L_prep_fin
    v_lshrrev_b32 v1, 1, v0
    v_add_u32 v1, s35, v1
    v_lshlrev_b32 v1, 1, v1
    v_and_b32 v2, 1, v0
    v_add_u32 v1, v1, v2
    s_movk_i32 s36, {GS}
    v_mul_lo_u32 v1, v1, s36
    v_add_u32 v1, 4096, v1
    v_mov_b32 v4, 0
    v_mov_b32 v5, 0
    v_mov_b32 v6, 0
    v_mov_b32 v7, 0
    buffer_store_dwordx4 v[4:7], v1, s[28:31], 0 offen
    s_branch L_prep_fin
    """)

    a.label("L_prep_wq")
    srd(a, 16, 14, 576 * 3456)
    srd(a, 20, 12, WQ_SZ, WS_WQ)
    a(f"""
    s_sub_u32 s32, s2, {B_WQ}
    s_and_b32 s33, s32, 15
    s_lshr_b32 s34, s32, 4
    s_mul_i32 s37, s33, 72
    s_mul_i32 s38, s34, {64*3456}
    s_add_u32 s37, s37, s38
    """)
    for m in range(4):
        a(f"""
        s_add_u32 s40, s3, {4*m}
        s_min_u32 s40, s40, 14
        s_lshl_b32 s41, s40, 10
        s_lshl_b32 s40, s40, 6
        v_add_u32 v8, s40, v2
        v_mul_u32_u24 v9, 4370, v8
        v_lshrrev_b32 v9, 16, v9
        v_mul_u32_u24 v10, 15, v9
        v_sub_u32 v10, v8, v10
        v_mul_u32_u24 v11, 52, v10
        v_lshrrev_b32 v11, 8, v11
        v_mul_u32_u24 v12, 5, v11
        v_sub_u32 v12, v10, v12
        """)
        slot_k(a, 13, 9, 14)
        a(f"""
        v_mul_u32_u24 v13, 3456, v13
        v_mul_u32_u24 v11, 1152, v11
        v_lshl_add_u32 v12, v12, 4, v11
        v_add_u32 v4, v13, v12
        s_mov_b32 m0, s41
        s_nop 0
        buffer_load_dwordx4 v4, s[16:19], s37 offen lds
        """)
    tr_rowbase(a, 8, 9, 240)
    a(f"""
    v_and_b32 v9, 3, v2
    v_lshlrev_b32 v10, 3, v9
    v_mul_u32_u24 v11, 80, v9
    v_add_u32 v11, 32, v11
    v_cmp_eq_u32 vcc, 3, v9
    v_mov_b32 v12, 72
    v_cndmask_b32 v11, v11, v12, vcc
    s_cmp_lt_u32 s3, 2
    s_cselect_b64 s[42:43], -1, 0
    s_movk_i32 s50, 200
    s_cselect_b32 s44, 40, 160
    s_cselect_b32 s45, 80, s50
    s_cselect_b32 s48, 120, s50
    v_cndmask_b32 v11, v11, v10, s[42:43]
    v_add_u32 v10, v10, v8
    v_add_u32 v16, v11, v8
    v_add_u32 v17, s44, v10
    v_add_u32 v18, s45, v10
    v_add_u32 v19, s48, v10
    s_mul_i32 s40, s33, 18
    s_lshl_b32 s41, s34, 1
    s_add_u32 s40, s40, s41
    s_and_b32 s41, s3, 1
    s_add_u32 s40, s40, s41
    s_mul_i32 s40, s40, 7
    s_lshr_b32 s41, s3, 1
    s_lshl_b32 s41, s41, 2
    s_add_u32 s40, s40, s41
    s_lshl_b32 s40, s40, 10
    s_cmp_lt_u32 s3, 2
    s_movk_i32 s50, 2048
    s_cselect_b32 s49, 3072, s50
    s_add_u32 s49, s49, s40
    v_lshlrev_b32 v3, 4, v2
    s_waitcnt vmcnt(0)
    s_barrier
    """)
    for f in range(4):
        a(f"ds_read_b64_tr_b16 v[{24+4*f}:{25+4*f}], v{16+f}")
        a(f"ds_read_b64_tr_b16 v[{26+4*f}:{27+4*f}], v{16+f} offset:240")
    for f in range(4):
        a(f"s_waitcnt lgkmcnt({6-2*f})")
        if f < 3: a(f"buffer_store_dwordx4 v[{24+4*f}:{27+4*f}], v3, s[20:23], s40 offen offset:{1024*f}")
        else: a(f"buffer_store_dwordx4 v[{24+4*f}:{27+4*f}], v3, s[20:23], s49 offen")
    a("s_branch L_prep_fin")
    a.label("L_prep_wo")
    srd(a, 16, 46, 576 * 1152)
    srd(a, 20, 12, WO_SZ, WS_WO)
    a(f"""
    s_sub_u32 s32, s2, {B_WO}
    s_and_b32 s33, s32, 7
    s_lshr_b32 s34, s32, 3
    s_mul_i32 s37, s33, 144
    s_mul_i32 s38, s34, {64*1152}
    s_add_u32 s37, s37, s38
    """)
    for m in range(3):
        a(f"""
        s_add_u32 s40, s3, {4*m}
        s_min_u32 s40, s40, 8
        s_lshl_b32 s41, s40, 10
        s_lshl_b32 s40, s40, 6
        v_add_u32 v8, s40, v2
        v_mul_u32_u24 v9, 7282, v8
        v_lshrrev_b32 v9, 16, v9
        v_mul_u32_u24 v10, 9, v9
        v_sub_u32 v10, v8, v10
        """)
        slot_k(a, 13, 9, 14)
        a(f"""
        v_mul_u32_u24 v13, 1152, v13
        v_lshl_add_u32 v4, v10, 4, v13
        s_mov_b32 m0, s41
        s_nop 0
        buffer_load_dwordx4 v4, s[16:19], s37 offen lds
        """)
    tr_rowbase(a, 8, 9, 144)
    a(f"""
    v_and_b32 v9, 3, v2
    v_lshl_add_u32 v8, v9, 3, v8
    s_cmp_lt_u32 s3, 2
    s_cselect_b32 s44, 0, 96
    s_cselect_b32 s45, 64, 128
    v_add_u32 v16, s44, v8
    v_add_u32 v18, s45, v8
    s_mul_i32 s40, s33, 18
    s_lshl_b32 s41, s34, 1
    s_add_u32 s40, s40, s41
    s_and_b32 s41, s3, 1
    s_add_u32 s40, s40, s41
    s_mul_i32 s40, s40, 4608
    v_lshlrev_b32 v3, 4, v2
    v_lshrrev_b32 v5, 4, v2
    v_and_b32 v6, 7, v2
    v_lshl_add_u32 v5, v5, 3, v6
    v_lshlrev_b32 v5, 4, v5
    s_waitcnt vmcnt(0)
    s_barrier
    ds_read_b64_tr_b16 v[24:25], v16
    ds_read_b64_tr_b16 v[26:27], v16 offset:144
    ds_read_b64_tr_b16 v[28:29], v16 offset:32
    ds_read_b64_tr_b16 v[30:31], v16 offset:176
    ds_read_b64_tr_b16 v[32:33], v18
    ds_read_b64_tr_b16 v[34:35], v18 offset:144
    s_cmp_lt_u32 s3, 2
    s_cbranch_scc0 L_prep_wo_hi
    s_waitcnt lgkmcnt(4)
    buffer_store_dwordx4 v[24:27], v3, s[20:23], s40 offen
    s_waitcnt lgkmcnt(2)
    buffer_store_dwordx4 v[28:31], v3, s[20:23], s40 offen offset:1024
    s_waitcnt lgkmcnt(0)
    buffer_store_dwordx4 v[32:35], v3, s[20:23], s40 offen offset:2048
    s_branch L_prep_fin
    L_prep_wo_hi:
    s_add_u32 s41, s40, 4096
    s_mov_b32 s42, 0x00ff00ff
    s_mov_b32 s43, 0x00ff00ff
    s_waitcnt lgkmcnt(4)
    buffer_store_dwordx4 v[24:27], v3, s[20:23], s40 offen offset:3072
    s_waitcnt lgkmcnt(2)
    s_mov_b64 exec, s[42:43]
    buffer_store_dwordx4 v[28:31], v5, s[20:23], s41 offen
    s_branch L_prep_fin
    """)
    a.label("L_prep_x")
    srd(a, 16, 10, XB)
    srd(a, 20, 12, XB, WS_XF)
    srd(a, 24, 12, 4 * ST_SZ, WS_ST)
    a(f"""
    s_sub_u32 s32, s2, {B_X}
    s_lshl_b32 s32, s32, 1
    s_lshr_b32 s33, s3, 1
    s_add_u32 s32, s32, s33
    s_and_b32 s33, s3, 1
    v_and_b32 v4, 7, v2
    v_bfe_u32 v5, v2, 3, 1
    v_lshl_add_u32 v4, v4, 1, v5
    v_mul_u32_u24 v4, 1152, v4
    v_lshrrev_b32 v5, 4, v2
    v_lshl_add_u32 v4, v5, 4, v4
    s_mul_i32 s34, s32, {TILEB}
    s_mul_i32 s35, s33, 576
    s_add_u32 s35, s35, s34
    s_mul_i32 s36, s33, 9216
    s_add_u32 s36, s36, s34
    v_lshlrev_b32 v3, 4, v2
    """)
    for j in range(9):
        a(f"buffer_load_dwordx4 {vr(8+4*j,4)}, v4, s[16:19], s35 offen offset:{64*j}")
    a(f"""
    v_mov_b32 v48, -1
    v_mov_b32 v49, -1
    v_mov_b32 v50, -1
    v_mov_b32 v51, -1
    s_lshl_b32 s37, s32, 10
    s_lshl_b32 s38, s33, {18}
    s_add_u32 s38, s38, s37
    s_add_u32 s38, s38, {ST_SZ}
    buffer_store_dwordx4 v[48:51], v3, s[24:27], s38 offen
    v_mov_b32 v6, 0
    v_mov_b32 v7, 0
    s_mov_b32 s39, 0x3f803f80
    """)
    for j in range(9):
        a(f"s_waitcnt vmcnt({9})")
        if j % 4 == 0 and j: a(f"s_add_u32 s36, s36, 4096")
        a(f"buffer_store_dwordx4 {vr(8+4*j,4)}, v3, s[20:23], s36 offen offset:{1024*(j%4)}")
        for i in range(4):
            r = 8 + 4 * j + i
            a(f"v_dot2_f32_bf16 v6, v{r}, s39, v6")
            a(f"v_dot2_f32_bf16 v7, v{r}, v{r}, v7")
    xlane_sum(a, [6, 7], 44)
    a(f"""
    v_cmp_gt_u32 vcc, 16, v2
    v_cndmask_b32 v6, 0, v6, vcc
    v_cndmask_b32 v7, 0, v7, vcc
    v_mov_b32 v8, 0
    v_mov_b32 v9, 0
    v_and_b32 v4, 15, v2
    v_lshlrev_b32 v4, 4, v4
    v_lshl_add_u32 v4, v5, 9, v4
    s_lshl_b32 s38, s33, 8
    s_add_u32 s38, s38, s37
    s_mov_b32 s42, -1
    s_mov_b32 s43, 0
    s_mov_b64 exec, s[42:43]
    buffer_store_dwordx4 v[6:9], v4, s[24:27], s38 offen
    s_branch L_prep_fin
    """)
    a.label("L_prep_cs")
    srd(a, 16, 14, 576 * 3456)
    srd(a, 20, 12, 1728 * 4, WS_CS)
    a(f"""
    s_sub_u32 s32, s2, {B_CS}
    s_lshl_b32 s33, s32, 6
    v_and_b32 v4, 3, v0
    v_lshrrev_b32 v5, 2, v0
    v_mul_u32_u24 v5, 3456, v5
    v_lshl_add_u32 v5, v4, 4, v5
    """)
    for j in range(9):
        a(f"s_add_u32 s34, s33, {j*64*3456}")
        a(f"buffer_load_dwordx4 {vr(8+4*j,4)}, v5, s[16:19], s34 offen")
    a("""
    s_mov_b32 s36, 0x3f80
    s_mov_b32 s37, 0x3f800000
    """)
    for j in range(9):
        a(f"s_waitcnt vmcnt({8-j})")
        for i in range(4):
            for h in range(2):
                cin = "0" if j == 0 else f"v{48+2*i+h}"
                a(f"v_dot2_f32_bf16 v{48+2*i+h}, v{8+4*j+i}, s{36+h}, {cin}")
    for sh in (4, 8):
        for e in range(8):
            a(f"v_add_f32_dpp v{48+e}, v{48+e}, v{48+e} row_shr:{sh} row_mask:0xf bank_mask:0xf bound_ctrl:0")
    xlane_sum(a, [48 + e for e in range(8)], 56)
    a(f"""
    s_lshl_b32 s34, s3, 7
    v_lshlrev_b32 v6, 5, v4
    v_add_u32 v6, s34, v6
    s_mov_b32 s42, 0xf000
    s_mov_b32 s43, 0
    s_mov_b64 exec, s[42:43]
    ds_write_b128 v6, v[48:51]
    ds_write_b128 v6, v[52:55] offset:16
    s_mov_b64 exec, -1
    v_lshlrev_b32 v6, 2, v2
    s_waitcnt lgkmcnt(0)
    s_barrier
    s_cmp_lg_u32 s3, 0
    s_cbranch_scc1 L_prep_fin
    ds_read_b32 v8, v6
    ds_read_b32 v9, v6 offset:128
    ds_read_b32 v10, v6 offset:256
    ds_read_b32 v11, v6 offset:384
    s_lshl_b32 s33, s32, 7
    s_mov_b32 s42, -1
    s_waitcnt lgkmcnt(0)
    v_add_f32 v8, v8, v9
    v_add_f32 v10, v10, v11
    v_add_f32 v8, v8, v10
    s_mov_b64 exec, s[42:43]
    buffer_store_dword v8, v6, s[20:23], s33 offen
    """)
    a.label("L_prep_fin")
    stamp_end(a, 0, 1)
    a.label("L_prep_end")
    a("s_endpgm")
    return dict(name=name, vgpr=192, grid=NPREP2, block=256, lds=15360 + 64)
```

```python
from gen_common import *
from k_qkv import xlane_sum, ln_params, f2u
from k_prep import round_pairs

CHB = 14336
NS = 4
HALO = NS * CHB
STT = HALO + TILEB
CSL = STT + 1536
QKV_LDS = CSL + 512
QK = CHB
VT = HALO
VS = 296
XR = 6

def qkv_body(a, layer, L, sid=2, kidx=2):
    stamp(a, 0)
    a(f"""
    s_load_dwordx2 s[12:13], s[0:1], {KA_WS}
    v_lshrrev_b32 v1, 6, v0
    v_and_b32 v2, 63, v0
    s_and_b32 s32, s{sid}, 7
    v_readfirstlane_b32 s3, v1
    s_lshr_b32 s33, s{sid}, 3
    s_lshr_b32 s34, s32, 1
    s_lshl_b32 s34, s34, 2
    s_lshr_b32 s35, s33, 3
    s_add_u32 s34, s34, s35
    s_and_b32 s35, s32, 1
    s_lshl_b32 s35, s35, 3
    s_and_b32 s36, s33, 7
    s_add_u32 s35, s35, s36
    v_lshlrev_b32 v3, 4, v2
    """)
    a(f"""
    s_lshl_b32 s36, s34, 3
    s_sub_u32 s37, s36, 1
    s_max_i32 s37, s37, 0
    s_lshl_b32 s38, s3, 1
    s_add_u32 s38, s38, s36
    s_mul_i32 s39, s35, {18*7*1024}
    s_lshl_b32 s40, s3, 10
    s_add_u32 s46, s39, s40
    s_lshr_b32 s51, s3, 1
    s_lshl_b32 s41, s51, 10
    s_add_u32 s47, s39, s41
    s_add_u32 s47, s47, 12288
    s_add_u32 s48, s41, 12288
    s_mov_b32 s49, s40
    s_mul_i32 s42, s37, {TILEB}
    s_add_u32 s42, s42, s41
    s_add_u32 s50, s41, {HALO}
    s_mul_i32 s43, s38, {TILEB}
    s_and_b32 s44, s3, 1
    s_cmp_eq_u32 s44, 0
    s_cselect_b32 s52, -1, 0
    s_cselect_b32 s53, 0, -1
    s_waitcnt lgkmcnt(0)
    """)
    srd(a, 16, 12, XB, WS_XF if layer == 0 else WS_X2)
    srd(a, 20, 12, WQ_SZ, WS_WQ)
    srd(a, 24, 12, ST_SZ, WS_ST + (0 if layer == 0 else 2) * ST_SZ)
    srd(a, 28, 12, XB, WS_O)
    srd(a, 56, 12, 1728 * 4, WS_CS)
    vm = Cnt(a, "vmcnt", 63)
    def issue_w(c):
        slot = (c % NS) * CHB
        for m in range(3):
            a(f"s_add_u32 s40, s46, {c*CHB + 4096*m}")
            a(f"s_add_u32 m0, s49, {slot + 4096*m}")
            vm.issue("buffer_load_dwordx4 v3, s[20:23], s40 offen lds", tag=f"c{c}")
        a(f"s_add_u32 s40, s47, {c*CHB}")
        a(f"s_add_u32 m0, s48, {slot}")
        a("s_mov_b64 exec, s[52:53]")
        vm.issue("buffer_load_dwordx4 v3, s[20:23], s40 offen lds", tag=f"c{c}")
        a("s_mov_b64 exec, -1")
    def issue_h(c):
        a(f"s_add_u32 s40, s42, {c*2048}")
        a(f"s_add_u32 m0, s50, {c*2048}")
        a("s_mov_b64 exec, s[52:53]")
        vm.issue("buffer_load_dwordx4 v3, s[16:19], s40 offen lds", tag=f"c{c}")
        a("s_mov_b64 exec, -1")
    def xreg(s, i): return (((s // 2) % XR) * 4 + (s & 1) * 2 + i) * 4
    def issue_x(c):
        a(f"s_add_u32 s40, s43, {c*2048}")
        a(f"s_add_u32 s41, s43, {c*2048 + TILEB}")
        for s in (2 * c, 2 * c + 1):
            for i in range(2):
                vm.issue(f"buffer_load_dwordx4 {vr(xreg(s,i),4,'a')}, v3, s[16:19], s{40+i} offen offset:{1024*(s&1)}", tag=f"c{c}")
    ACC = 64
    issue_w(0); issue_h(0); issue_x(0)
    a(f"""
    s_lshl_b32 s40, s38, 10
    s_lshl_b32 s41, s37, 10
    """)
    vm.issue(f"buffer_load_dwordx4 v[64:67], v3, s[24:27], s40 offen", tag="st")
    vm.issue(f"buffer_load_dwordx4 v[68:71], v3, s[24:27], s40 offen offset:1024", tag="st")
    vm.issue(f"buffer_load_dwordx4 v[72:75], v3, s[24:27], s41 offen", tag="st")
    a(f"""
    v_mul_u32_u24 v6, 29, v2
    v_lshrrev_b32 v6, 8, v6
    v_mul_u32_u24 v6, {2304 - 144}, v6
    v_add_u32 v6, v6, v3
    s_mul_i32 s40, s35, 144
    s_mov_b32 m0, {CSL}
    s_mov_b32 s54, 0x7ffffff
    s_mov_b32 s55, 0
    s_mov_b64 exec, s[54:55]
    """)
    vm.issue("buffer_load_dwordx4 v6, s[56:59], s40 offen lds", tag="cs")
    a("s_mov_b64 exec, -1")
    for c in range(1, 4):
        issue_w(c); issue_h(c); issue_x(c)
    for c in range(4, 6):
        issue_h(c); issue_x(c)
    for c in range(6, 9): issue_h(c)
    a(f"""
    s_min_u32 s40, s3, 2
    s_lshl_b32 s40, s40, 10
    s_add_u32 s40, s40, 2048
    v_add_u32 v4, s40, v3
    s_lshl_b32 s40, s44, 10
    s_add_u32 s40, s40, 5120
    v_add_u32 v5, s40, v3
    v_and_b32 v6, 15, v2
    s_mul_i32 s45, s3, 384
    s_add_u32 s45, s45, {STT}
    v_lshlrev_b32 v6, 2, v6
    v_add_u32 v6, s45, v6
    """)
    stamp(a, 1)
    vm.wait("st")
    for i in range(3):
        b = 64 + 4 * i
        a(f"v_add_f32 v{b}, v{b}, v{b+2}")
        a(f"v_add_f32 v{b+1}, v{b+1}, v{b+3}")
    xlane_sum(a, [64, 65, 68, 69, 72, 73], 80)
    for i in range(3):
        ln_params(a, 64 + 4 * i, 65 + 4 * i, 80, 81)
    for i in range(3):
        a(f"ds_write_b32 v6, v{64+4*i} offset:{128*i}")
        a(f"ds_write_b32 v6, v{65+4*i} offset:{128*i+64}")
    WF = 8
    HX = 96; HW = 104
    lg = Cnt(a, "lgkmcnt", 15)
    def reads(s):
        sb = s & 1
        base = ((s // 2) % NS) * CHB + sb * 7168
        R = []
        for lam in range(7):
            R.append(f"ds_read_b128 {vr(WF+28*sb+4*lam,4)}, v3 offset:{base + 1024*lam}")
            if lam == 1:
                R.append(f"ds_read_b128 {vr(HX+4*sb,4,'a')}, v7 offset:{1024*s}")
                R.append(f"ds_read_b128 {vr(HW+8*sb,4,'a')}, v4 offset:{base}")
            if lam == 3:
                R.append(f"ds_read_b128 {vr(HW+8*sb+4,4,'a')}, v5 offset:{base}")
        return R
    a(f"v_add_u32 v7, {HALO}, v3")
    vm.wait("c0")
    a("s_waitcnt lgkmcnt(0)")
    a("s_barrier")
    stamp(a, 2)
    for t in reads(0): lg.issue(t)
    for s in range(18):
        sb = s & 1
        c = s // 2
        if sb == 1 and s + 1 < 18:
            vm.wait(f"c{c+1}")
            a("s_barrier")
        pend = []
        if sb == 1:
            if 1 <= c <= 5: pend.append(lambda c=c: issue_w(c + 3))
            if 1 <= c <= 3: pend.append(lambda c=c: issue_x(c + 5))
        nxt = reads(s + 1) if s + 1 < 18 else []
        k = 0
        units = []
        for lam in range(7):
            wf = vr(WF + 28 * sb + 4 * lam, 4)
            for i in range(2):
                xf = vr(xreg(s, i), 4, "a")
                A_, B_ = (wf, xf) if lam < 5 else (xf, wf)
                units.append((ACC + (i * 7 + lam) * 4, A_, B_, rset(WF + 28 * sb + 4 * lam, 4)))
            if lam == 2:
                units.append((ACC + 56, vr(HW + 8 * sb, 4, "a"), vr(HX + 4 * sb, 4, "a"), rset(HW + 8 * sb, 4, "a") | rset(HX + 4 * sb, 4, "a")))
            if lam == 4:
                units.append((ACC + 60, vr(HX + 4 * sb, 4, "a"), vr(HW + 8 * sb + 4, 4, "a"), rset(HW + 8 * sb + 4, 4, "a")))
        for ui, (acc, A_, B_, nd) in enumerate(units):
            lg.wait(nd)
            cin = "0" if s == 0 else vr(acc, 4)
            a(f"v_mfma_f32_16x16x32_bf16 {vr(acc,4)}, {A_}, {B_}, {cin}")
            if k < len(nxt):
                lg.issue(nxt[k]); k += 1
            elif pend:
                pend.pop(0)()
        assert k == len(nxt) and not pend
    stamp(a, 3)
    a(f"""
    v_lshrrev_b32 v1, 4, v2
    v_lshlrev_b32 v62, 4, v1
    v_add_u32 v63, s45, v62
    v_add_u32 v62, {CSL}, v62
    v_mul_u32_u24 v7, 144, v1
    v_add_u32 v7, {CSL + 64}, v7
    v_and_b32 v4, 15, v2
    v_lshlrev_b32 v5, 2, v4
    v_add_u32 v5, {CSL + 18*16}, v5
    """)
    vm.wait("cs")
    for q, lam in ((0, 0), (5, 1), (9, 2), (14, 3)):
        lg.issue(f"ds_read_b128 {vr(40+4*lam,4)}, v62 offset:{16*q}")
        if lam == 0:
            for i in range(2):
                lg.issue(f"ds_read_b32 v{8+2*i}, v6 offset:{128*i}")
                lg.issue(f"ds_read_b32 v{9+2*i}, v6 offset:{128*i+64}")
    lg.issue(f"ds_read_b128 {vr(56,4)}, v7")
    lg.issue(f"ds_read_b32 v60, v5")
    lg.issue(f"ds_read_b32 v61, v5 offset:80")
    for i in range(3):
        lg.issue(f"ds_read_b128 {vr(16+8*i,4)}, v63 offset:{128*i}")
        lg.issue(f"ds_read_b128 {vr(20+8*i,4)}, v63 offset:{128*i+64}")
    lg.issue(f"ds_read_b32 v12, v6 offset:256")
    lg.issue(f"ds_read_b32 v13, v6 offset:320")
    a(f"""
    v_bfe_u32 v14, v2, 3, 1
    v_and_b32 v15, 7, v2
    v_mul_u32_u24 v7, 72, v14
    v_add_u32 v7, v7, v15
    v_mul_u32_u24 v7, 144, v7
    v_lshl_add_u32 v7, v1, 3, v7
    v_add_u32 v7, {QK}, v7
    s_mul_i32 s40, s3, {16*144}
    s_add_u32 s40, s40, {8*144}
    v_add_u32 v62, s40, v7
    v_mul_u32_u24 v14, 144, v14
    v_lshl_add_u32 v14, v15, 1, v14
    v_add_u32 v14, {VT + 16*VS}, v14
    v_mul_u32_u24 v63, {VS}, v4
    v_lshrrev_b32 v15, 1, v1
    v_mul_u32_u24 v15, 144, v15
    v_add_u32 v63, v63, v15
    v_and_b32 v15, 1, v1
    v_lshl_add_u32 v63, v15, 3, v63
    v_add_u32 v63, {VT}, v63
    s_lshl_b32 s41, s3, 5
    s_add_u32 s41, s41, 16
    s_min_u32 s40, s3, 2
    s_lshl_b32 s40, s40, 5
    s_add_u32 s40, s40, 64
    v_add_u32 v7, s40, v7
    s_mul_i32 s40, s44, {20*VS}
    v_add_u32 v5, s40, v63
    v_add_u32 v63, s41, v63
    v_add_u32 v15, s41, v14
    s_mov_b32 s54, -1
    s_mov_b32 s55, 0
    s_mov_b32 s60, 0
    s_mov_b32 s61, 0xffff
    s_cmp_lt_u32 s3, 2
    s_cselect_b32 s62, -1, -1
    s_cselect_b32 s63, -1, 0
    s_cselect_b32 s64, 0, 0
    s_cselect_b32 s65, 0, 0xffff
    """)
    def fold_normal(acc, cs, st):
        m = vr(st, 2)
        for h in range(2):
            a(f"v_pk_fma_f32 {vr(acc+2*h,2)}, {vr(cs+2*h,2)}, {m}, {vr(acc+2*h,2)} op_sel_hi:[1,0,1]")
        for h in range(2):
            a(f"v_pk_mul_f32 {vr(acc+2*h,2)}, {vr(acc+2*h,2)}, {m} op_sel:[0,1] op_sel_hi:[1,1]")
        a(f"v_cvt_pk_bf16_f32 v{acc}, v{acc}, v{acc+1}")
        a(f"v_cvt_pk_bf16_f32 v{acc+1}, v{acc+2}, v{acc+3}")
    def fold_swapped(acc, csr, st):
        cpair = vr(csr & ~1, 2)
        sel = "op_sel:[0,1,0] op_sel_hi:[1,1,1]" if csr & 1 else "op_sel_hi:[1,0,1]"
        for h in range(2):
            a(f"v_pk_fma_f32 {vr(acc+2*h,2)}, {vr(st+2*h,2)}, {cpair}, {vr(acc+2*h,2)} {sel}")
        for h in range(2):
            a(f"v_pk_mul_f32 {vr(acc+2*h,2)}, {vr(acc+2*h,2)}, {vr(st+4+2*h,2)}")
        a(f"v_cvt_pk_bf16_f32 v{acc}, v{acc}, v{acc+1}")
        a(f"v_cvt_pk_bf16_f32 v{acc+1}, v{acc+2}, v{acc+3}")
    def b16w(acc, addr, off):
        a(f"ds_write_b16 v{addr}, v{acc} offset:{off}")
        a(f"ds_write_b16_d16_hi v{addr}, v{acc} offset:{off+VS}")
        a(f"ds_write_b16 v{addr}, v{acc+1} offset:{off+2*VS}")
        a(f"ds_write_b16_d16_hi v{addr}, v{acc+1} offset:{off+3*VS}")
    for lam in range(4):
        lg.wait(rset(40 + 4 * lam, 4) | rset(8, 4))
        for i in range(2):
            acc = ACC + (i * 7 + lam) * 4
            fold_normal(acc, 40 + 4 * lam, 8 + 2 * i)
            a(f"ds_write_b64 v62, {vr(acc,2)} offset:{i*8*144 + 32*lam}")
    lg.wait(rset(56, 4))
    for i in range(2):
        fold_normal(ACC + (i * 7 + 4) * 4, 56, 8 + 2 * i)
    a("s_mov_b64 exec, s[54:55]")
    for i in range(2):
        a(f"ds_write_b64 v62, {vr(ACC+(i*7+4)*4,2)} offset:{i*8*144 + 128}")
    a("s_mov_b64 exec, s[60:61]")
    for i in range(2):
        b16w(ACC + (i * 7 + 4) * 4, 15, 16 * i)
    a("s_mov_b64 exec, -1")
    for i in range(2):
        lg.wait(rset(16 + 8 * i, 8) | rset(60, 2))
        for lam in (5, 6):
            acc = ACC + (i * 7 + lam) * 4
            fold_swapped(acc, 60 + (lam - 5), 16 + 8 * i)
            a(f"ds_write_b64 v63, {vr(acc,2)} offset:{16*i + (lam-5)*20*VS}")
    lg.wait(rset(32, 8) | rset(12, 2))
    a(f"""
    s_cmp_eq_u32 s3, 0
    s_cselect_b64 s[66:67], -1, 0
    s_cmp_eq_u32 s3, 1
    s_cselect_b64 s[68:69], -1, 0
    s_cmp_eq_u32 s44, 0
    s_cselect_b64 s[70:71], -1, 0
    """)
    a(f"v_cndmask_b32 v60, v61, v60, s[70:71]")
    for r in range(4):
        a(f"v_cndmask_b32 v{56+r}, v{56+r}, v{52+r}, s[68:69]")
    for r in range(4):
        a(f"v_cndmask_b32 v{56+r}, v{56+r}, v{48+r}, s[66:67]")
    fold_normal(ACC + 56, 56, 12)
    fold_swapped(ACC + 60, 60, 32)
    a(f"ds_write_b64 v5, {vr(ACC+60,2)}")
    a("s_mov_b64 exec, s[62:63]")
    a(f"ds_write_b64 v7, {vr(ACC+56,2)}")
    a("s_mov_b64 exec, s[64:65]")
    b16w(ACC + 56, 14, 0)
    a("s_mov_b64 exec, -1")
    a(f"""
    v_lshrrev_b32 v1, 5, v2
    v_and_b32 v4, 31, v2
    s_lshl_b32 s40, s44, 5
    v_add_u32 v4, s40, v4
    v_mul_u32_u24 v5, 72, v1
    v_add_u32 v5, v5, v4
    v_mul_u32_u24 v5, 144, v5
    v_add_u32 v6, {QK + 128}, v5
    s_lshl_b32 s40, s51, 5
    s_add_u32 s40, s40, {QK}
    v_add_u32 v5, s40, v5
    v_and_b32 v7, 3, v2
    v_mul_u32_u24 v7, {VS}, v7
    v_mul_u32_u24 v1, 144, v1
    v_add_u32 v7, v7, v1
    v_and_b32 v4, 0xfc, v4
    v_lshl_add_u32 v7, v4, 1, v7
    s_mul_i32 s40, s51, {16*VS}
    s_add_u32 s40, s40, {VT}
    v_add_u32 v7, s40, v7
    s_waitcnt lgkmcnt(0)
    s_barrier
    """)
    lg.q = []
    stamp(a, 4)
    Q = 8; S_ = 20; T = 32; P = 40; O = 48; PK = 68
    KA_ = 0; VA_ = 32
    lg.issue(f"ds_read_b128 {vr(Q,4)}, v5 offset:1152")
    lg.issue(f"ds_read_b128 {vr(Q+4,4)}, v5 offset:1168")
    lg.issue(f"ds_read_b64 {vr(Q+8,2)}, v6 offset:1152")
    for c in range(3):
        lg.issue(f"ds_read_b128 {vr(KA_+10*c,4,'a')}, v5 offset:{576*c+64}")
    for c in range(3):
        lg.issue(f"ds_read_b128 {vr(KA_+10*c+4,4,'a')}, v5 offset:{576*c+80}")
    for c in range(3):
        lg.issue(f"ds_read_b64 {vr(KA_+10*c+8,2,'a')}, v6 offset:{576*c+8}")
    vreads = [f"ds_read_b64 {vr(VA_+6*dg+2*c,2,'a')}, v7 offset:{4*dg*VS + 8*c}" for dg in range(5) for c in range(3)]
    a(f"""
    v_bfe_u32 v1, v2, 3, 2
    s_lshl_b32 s40, s44, 2
    s_add_u32 s40, s40, s36
    v_add_u32 v1, s40, v1
    v_mul_u32_u24 v1, {TILEB}, v1
    v_lshrrev_b32 v3, 5, v2
    v_lshlrev_b32 v3, 7, v3
    v_add_u32 v1, v1, v3
    v_and_b32 v3, 7, v2
    v_lshl_add_u32 v1, v3, 4, v1
    s_mul_i32 s40, s35, 9
    s_lshr_b32 s40, s40, 1
    s_lshl_b32 s40, s40, 8
    v_add_u32 v1, s40, v1
    s_cmp_eq_u32 s51, 0
    s_cselect_b32 s42, -1, 0
    s_cselect_b32 s43, 0, -1
    s_mov_b32 s54, 0x11111111
    s_mov_b32 s55, 0x11111111
    s_mov_b32 s60, 0x33333333
    s_mov_b32 s61, 0x33333333
    s_mov_b32 s62, 0x77777777
    s_mov_b32 s63, 0x77777777
    """)
    for kk in range(5):
        if kk == 4:
            lg.wait(rset(Q + 8, 2))
            a(f"v_and_b32 v{Q+8}, s42, v{Q+8}")
            a(f"v_and_b32 v{Q+9}, s43, v{Q+9}")
        for c in range(3):
            lg.wait(rset(KA_ + 10 * c + 2 * kk, 2, "a") | rset(Q + 2 * kk, 2))
            cin = "0" if kk == 0 else vr(S_ + 4 * c, 4)
            a(f"v_mfma_f32_4x4x4_16b_bf16 {vr(S_+4*c,4)}, {vr(KA_+10*c+2*kk,2,'a')}, {vr(Q+2*kk,2)}, {cin}")
            if vreads: lg.issue(vreads.pop(0))
    masks = {1: 54, 2: 60, 3: 62}
    for m in (1, 2, 3):
        a(f"v_cndmask_b32 v{S_+m}, v{S_+m+8}, v{S_+m}, s[{masks[m]}:{masks[m]+1}]")
    lr = [S_ + i for i in range(1, 9)]
    TT = [T, T + 1, T + 2, T + 3]
    round_pairs(a, lr, TT)
    for r in lr: a(f"v_mul_f32 v{r}, {f2u(18 ** -0.5):#x}, v{r}")
    round_pairs(a, lr, TT)
    a(f"""
    s_cmp_lg_u32 s34, 0
    s_cbranch_scc1 {L}_nomask
    v_mov_b32 v{T}, 0xce6e0000
    """)
    for m in (1, 2, 3):
        a(f"v_mov_b32 v{T+1}, {m+8}")
        a(f"v_mov_b32 v{T+2}, {m}")
        a(f"v_cndmask_b32 v{T+1}, v{T+1}, v{T+2}, s[{masks[m]}:{masks[m]+1}]")
        a(f"v_add_u32 v{T+1}, v{T+1}, v4")
        a(f"v_cmp_le_u32 vcc, 8, v{T+1}")
        a(f"v_cndmask_b32 v{S_+m}, v{T}, v{S_+m}, vcc")
    for sg in range(4, 8):
        a(f"v_cmp_le_u32 vcc, {8-sg}, v4")
        a(f"v_cndmask_b32 v{S_+sg}, v{T}, v{S_+sg}, vcc")
    a.label(f"{L}_nomask")
    a("s_nop 1")
    a(f"""
    v_max3_f32 v{T}, v{lr[0]}, v{lr[1]}, v{lr[2]}
    v_max3_f32 v{T+1}, v{lr[3]}, v{lr[4]}, v{lr[5]}
    v_max3_f32 v{T}, v{T}, v{lr[6]}, v{lr[7]}
    v_max_f32 v{T}, v{T}, v{T+1}
    """)
    for r in lr: a(f"v_sub_f32 v{r}, v{r}, v{T}")
    for r in lr: a(f"v_mul_f32 v{r}, {f2u(1.4426950408889634):#x}, v{r}")
    for r in lr: a(f"v_exp_f32 v{r}, v{r}")
    a(f"""
    v_add_f32 v{T}, v{lr[0]}, v{lr[1]}
    v_add_f32 v{T+1}, v{lr[2]}, v{lr[3]}
    v_add_f32 v{T+2}, v{lr[4]}, v{lr[5]}
    v_add_f32 v{T+3}, v{lr[6]}, v{lr[7]}
    v_add_f32 v{T}, v{T}, v{T+1}
    v_add_f32 v{T+2}, v{T+2}, v{T+3}
    v_add_f32 v{T}, v{T}, v{T+2}
    v_rcp_f32 v{T}, v{T}
    """)
    for r in lr: a(f"v_mul_f32 v{r}, v{r}, v{T}")
    for m in (1, 2, 3):
        a(f"v_cndmask_b32 v{S_+m+8}, v{S_+m}, 0, s[{masks[m]}:{masks[m]+1}]")
        a(f"v_cndmask_b32 v{S_+m}, 0, v{S_+m}, s[{masks[m]}:{masks[m]+1}]")
    a(f"v_cvt_pk_bf16_f32 v{P}, 0, v{S_+1}")
    for i in range(1, 6):
        a(f"v_cvt_pk_bf16_f32 v{P+i}, v{S_+2*i}, v{S_+2*i+1}")
    for c in range(3):
        for dg in range(5):
            lg.wait(rset(VA_ + 6 * dg + 2 * c, 2, "a"))
            cin = "0" if c == 0 else vr(O + 4 * dg, 4)
            a(f"v_mfma_f32_4x4x4_16b_bf16 {vr(O+4*dg,4)}, {vr(VA_+6*dg+2*c,2,'a')}, {vr(P+2*c,2)}, {cin}")
    def cv(dst, pairs):
        for j, p in enumerate(pairs):
            a(f"v_cvt_pk_bf16_f32 v{dst+j}, v{O+2*p}, v{O+2*p+1}")
    def st(n, reg, off):
        op = {1: "dword", 2: "dwordx2", 3: "dwordx3", 4: "dwordx4"}[n]
        a(f"buffer_store_{op} {vr(reg,n)}, v1, s[28:31], 0 offen offset:{off}")
    a(f"""
    s_and_b32 s40, s35, 1
    s_lshl_b32 s40, s40, 1
    s_add_u32 s40, s40, s51
    s_cmp_eq_u32 s40, 1
    s_cbranch_scc1 {L}_v1
    s_cmp_eq_u32 s40, 2
    s_cbranch_scc1 {L}_v2
    s_cmp_eq_u32 s40, 3
    s_cbranch_scc1 {L}_v3
    """)
    variants = {
        0: [([0, 1, 2, 3], 0), ([4, 5, 6, 7], 256), ([8], 512)],
        1: [([1, 2, 3], 516), ([4, 5, 6, 7], 768), ([8, 9], 1024)],
        2: [([0, 1], 8), ([2, 3, 4, 5], 256), ([6, 7, 8], 512)],
        3: [([1], 524), ([2, 3, 4, 5], 768), ([6, 7, 8, 9], 1024)],
    }
    for v in range(4):
        if v:
            a.label(f"{L}_v{v}")
            a("s_nop 4")
        for j, (pairs, off) in enumerate(variants[v]):
            cv(PK + 4 * j, pairs)
        for j, (pairs, off) in enumerate(variants[v]):
            st(len(pairs), PK + 4 * j, off)
        if v < 3: a(f"s_branch {L}_fin")
    a.label(f"{L}_fin")
    stamp_end(a, kidx, 5)

def gen_qkv2(layer):
    def g(a):
        name = f"qkv{layer}_kernel"
        L = f"L_qkv{layer}"
        kernel_head(a, name)
        a(f"""
        s_cmp_ge_u32 s2, 256
        s_cbranch_scc1 {L}_end
        """)
        qkv_body(a, layer, L, 2, 2 + 3 * layer)
        a.label(f"{L}_end")
        a("s_endpgm")
        return dict(name=name, vgpr=128 + 120, accum=128, grid=256, block=256, lds=QKV_LDS)
    return g
```

```python
from gen_common import *
from k_prep import round_pairs

CS = 4160
FREG = 8 * CS
CH = FREG + 96 * 80
NCH = 3
NCONV = 576 // NCH

def gen_conv(a, name="conv_kernel"):
    kernel_head(a, name)
    a(f"""
    s_cmp_ge_u32 s2, {NCONV}
    s_cbranch_scc1 L_conv_end
    """)
    stamp(a, 0)
    a(f"""
    s_load_dwordx2 s[4:5], s[0:1], {KA_SSMK}
    s_load_dwordx2 s[6:7], s[0:1], {KA_SSMD}
    s_load_dwordx2 s[12:13], s[0:1], {KA_WS}
    v_lshrrev_b32 v1, 6, v0
    v_and_b32 v2, 63, v0
    s_nop 0
    v_readfirstlane_b32 s3, v1
    s_mul_i32 s32, s2, {NCH}
    s_waitcnt lgkmcnt(0)
    """)
    srd(a, 16, 4, XB)
    srd(a, 20, 6, 1152)
    srd(a, 24, 12, WS_G_SZ, WS_G)
    srd(a, 28, 12, XB, WS_YT)
    a("""
    v_lshlrev_b32 v3, 4, v2
    s_lshl_b32 s33, s3, 6
    v_add_u32 v4, s33, v2
    v_mul_u32_u24 v5, 13108, v4
    v_lshrrev_b32 v5, 16, v5
    v_mul_u32_u24 v6, 5, v5
    v_sub_u32 v6, v4, v6
    v_min_u32 v6, 3, v6
    v_lshlrev_b32 v5, 6, v5
    v_lshl_add_u32 v4, v6, 4, v5
    v_add_u32 v7, 256, v2
    v_mul_u32_u24 v5, 13108, v7
    v_lshrrev_b32 v5, 16, v5
    v_mul_u32_u24 v6, 5, v5
    v_sub_u32 v6, v7, v6
    v_min_u32 v6, 3, v6
    v_lshlrev_b32 v5, 6, v5
    v_lshl_add_u32 v7, v6, 4, v5
    """)
    a(f"""
    s_mul_i32 s34, s32, {2*GS}
    s_lshl_b32 s36, s3, 2
    s_add_u32 s34, s34, s36
    s_mul_i32 s35, s3, {2*CS}
    s_lshl_b32 s37, s32, 12
    s_lshl_b32 s38, s3, 10
    """)
    vm = Cnt(a, "vmcnt", 63)
    for c in range(NCH):
        for par in range(2):
            for i in range(4):
                a(f"s_add_u32 s40, s34, {c*2*GS + par*GS + 1024*i}")
                a(f"s_add_u32 m0, s35, {c*CH + par*CS + 1024*i}")
                vm.issue("buffer_load_dwordx4 v3, s[24:27], s40 offen lds", tag=f"ch{c}")
        a(f"s_add_u32 s40, s37, {c*4096}")
        a(f"s_add_u32 m0, s38, {c*CH + FREG + 2560}")
        vm.issue("buffer_load_dwordx4 v4, s[16:19], s40 offen lds", tag=f"ch{c}")
        a(f"s_mov_b32 m0, {c*CH + FREG + 2560 + 4096}")
        vm.issue("buffer_load_dwordx4 v7, s[16:19], s40 offen lds", tag=f"ch{c}")
    a("""
    s_lshl_b32 s39, s32, 1
    v_mov_b32 v11, s39
    """)
    for c in range(NCH):
        vm.issue(f"buffer_load_ushort v{8+c}, v11, s[20:23], 0 offen offset:{2*c}", tag="dv")
    a("""
    v_mov_b32 v12, 0
    v_mov_b32 v13, 0
    v_mov_b32 v14, 0
    v_mov_b32 v15, 0
    v_lshlrev_b32 v16, 4, v0
    v_add_u32 v16, %d, v16
    v_subrev_u32 v17, 160, v0
    v_lshrrev_b32 v18, 2, v17
    v_mul_u32_u24 v18, %d, v18
    v_and_b32 v17, 3, v17
    v_lshl_add_u32 v17, v17, 4, v18
    v_add_u32 v17, 4096, v17
    v_cmp_gt_u32 vcc, 160, v0
    v_cndmask_b32 v16, v17, v16, vcc
    v_cmp_gt_u32 vcc, 192, v0
    s_and_saveexec_b64 s[42:43], vcc
    """ % (FREG, CS))
    for c in range(NCH):
        if c: a(f"v_add_u32 v16, {CH}, v16")
        a(f"ds_write_b128 v16, v[12:15]")
    a("s_mov_b64 exec, s[42:43]")
    a(f"""
    v_and_b32 v18, 31, v2
    v_lshrrev_b32 v19, 5, v2
    v_sub_u32 v20, 7, v18
    v_and_b32 v20, 7, v20
    v_sub_u32 v21, 127, v18
    v_sub_u32 v21, v21, v20
    v_lshl_add_u32 v21, v19, 3, v21
    s_lshl_b32 s36, s3, 5
    v_subrev_u32 v21, s36, v21
    v_lshlrev_b32 v21, 1, v21
    v_mul_u32_u24 v20, {CS}, v20
    v_add_u32 v16, v20, v21
    v_add_u32 v20, 4, v18
    v_subrev_u32 v20, s3, v20
    v_mul_u32_u24 v20, 80, v20
    v_lshl_add_u32 v17, v19, 4, v20
    v_add_u32 v17, {FREG}, v17
    """)
    VA, VB = 16, 17
    FR = 24
    lg = Cnt(a, "lgkmcnt", 15)
    def frag(s, i): return FR + 40 * (s & 1) + 4 * i
    def reads(c, s):
        L = []
        jj = s
        oA = lambda jj, h: 256 * (15 - jj) + 32 * h
        oB = lambda jj, nt, h: 80 * (32 * nt + 28 - 4 * jj) + 32 * h
        S_ = s + 8 * c
        L.append(f"ds_read_b128 {vr(frag(S_,0),4)}, v{VA} offset:{oA(jj,0)}")
        L.append(f"ds_read_b128 {vr(frag(S_,2),4)}, v{VB} offset:{oB(jj,0,0)}")
        L.append(f"ds_read_b128 {vr(frag(S_,4),4)}, v{VB} offset:{oB(jj,1,0)}")
        L.append(f"ds_read_b128 {vr(frag(S_,1),4)}, v{VA} offset:{oA(jj,1)}")
        L.append(f"ds_read_b128 {vr(frag(S_,3),4)}, v{VB} offset:{oB(jj,0,1)}")
        L.append(f"ds_read_b128 {vr(frag(S_,5),4)}, v{VB} offset:{oB(jj,1,1)}")
        L.append(f"ds_read_b128 {vr(frag(S_,6),4)}, v{VA} offset:{oA(jj+8,0)}")
        L.append(f"ds_read_b128 {vr(frag(S_,8),4)}, v{VB} offset:{oB(jj+8,1,0)}")
        L.append(f"ds_read_b128 {vr(frag(S_,7),4)}, v{VA} offset:{oA(jj+8,1)}")
        L.append(f"ds_read_b128 {vr(frag(S_,9),4)}, v{VB} offset:{oB(jj+8,1,1)}")
        return L
    def mfmas(c, s):
        S_ = s + 8 * c
        acc = lambda nt: 32 * c + 16 * nt
        L = [(0, 0, 2), (1, 0, 4), (0, 1, 3), (1, 1, 5), (1, 6, 8), (1, 7, 9)]
        out = []
        first = {0: s == 0, 1: s == 0}
        for nt, fa, fb in L:
            cin = "0" if first[nt] else vr(acc(nt), 16, "a")
            first[nt] = False
            out.append((f"v_mfma_f32_32x32x16_bf16 {vr(acc(nt),16,'a')}, {vr(frag(S_,fa),4)}, {vr(frag(S_,fb),4)}, {cin}",
                        rset(frag(S_, fa), 4) | rset(frag(S_, fb), 4)))
        return out
    for c in range(NCH):
        vm.wait(f"ch{c}")
        if c == 0: a("s_waitcnt lgkmcnt(0)")
        else:
            a(f"v_add_u32 v{VA}, {CH}, v{VA}")
            a(f"v_add_u32 v{VB}, {CH}, v{VB}")
        a("s_barrier")
        stamp(a, 1 + c)
        for t in reads(c, 0): lg.issue(t)
        for s in range(8):
            nxt = reads(c, s + 1) if s < 7 else []
            M = mfmas(c, s)
            per = [2, 2, 2, 2, 1, 1]
            k = 0
            for mi, (t, need_) in enumerate(M):
                lg.wait(need_)
                a(t)
                for _ in range(per[mi]):
                    if k < len(nxt):
                        lg.issue(nxt[k]); k += 1
    stamp(a, 4)
    a("s_barrier")
    a(f"""
    s_lshl_b32 s36, s3, 13
    v_add_u32 v20, s36, v3
    s_lshl_b32 s36, s3, 11
    v_add_u32 v21, s36, v3
    """)
    for c in range(NCH):
        if c: a(f"v_add_u32 v20, {CH}, v20")
        for g in range(4):
            for i in range(2):
                a(f"ds_write_b128 v20, {vr(32*c + 8*g + 4*i, 4, 'a')} offset:{CS + (g*2+i)*1024}")
    a(f"""
    s_lshr_b32 s36, s3, 1
    s_lshl_b32 s36, s36, 10
    s_and_b32 s37, s3, 1
    s_lshl_b32 s37, s37, 4
    s_add_u32 s36, s36, s37
    v_lshlrev_b32 v22, 5, v18
    v_lshl_add_u32 v22, v19, 2, v22
    v_add_u32 v22, s36, v22
    v_sub_u32 v23, 2036, v22
    v_lshlrev_b32 v23, 1, v23
    v_lshlrev_b32 v22, 1, v22
    s_lshl_b32 s37, s32, 12
    s_waitcnt lgkmcnt(0)
    s_barrier
    """)
    PR = 24
    for c in range(NCH):
        if c:
            a(f"v_add_u32 v21, {CH}, v21")
            a(f"v_add_u32 v23, {CH}, v23")
        for w in range(4):
            for i in range(2):
                lg.issue(f"ds_read_b128 {vr(PR + 40*c + 8*w + 4*i, 4)}, v21 offset:{CS + (w*8+i)*1024}")
        lg.issue(f"ds_read_b64 {vr(PR + 40*c + 32, 2)}, v23 offset:16")
        lg.issue(f"ds_read_b64 {vr(PR + 40*c + 34, 2)}, v23")
    vm.wait("dv")
    T = [150, 151, 152, 153]
    U = 160
    for c in range(NCH):
        b = PR + 40 * c
        lg.wait(rset(b, 36))
        for r in range(8):
            a(f"v_add_f32 v{b+r}, v{b+r}, v{b+8+r}")
            a(f"v_add_f32 v{b+16+r}, v{b+16+r}, v{b+24+r}")
        for r in range(8):
            a(f"v_add_f32 v{b+r}, v{b+r}, v{b+16+r}")
        round_pairs(a, [b + r for r in range(8)], T)
        a(f"v_lshlrev_b32 v{8+c}, 16, v{8+c}")
        for k in range(2):
            d0, d1 = b + 32 + 2 * k, b + 33 + 2 * k
            a(f"v_and_b32 v{U+4*k+0}, 0xffff0000, v{d1}")
            a(f"v_lshlrev_b32 v{U+4*k+1}, 16, v{d1}")
            a(f"v_and_b32 v{U+4*k+2}, 0xffff0000, v{d0}")
            a(f"v_lshlrev_b32 v{U+4*k+3}, 16, v{d0}")
        for r in range(8):
            a(f"v_mul_f32 v{U+r}, v{U+r}, v{8+c}")
        round_pairs(a, [U + r for r in range(8)], T)
        for r in range(8):
            a(f"v_add_f32 v{b+r}, v{b+r}, v{U+r}")
        for k in range(2):
            a(f"v_cvt_pk_bf16_f32 v{b+8+2*k}, v{b+4*k}, v{b+4*k+1}")
            a(f"v_cvt_pk_bf16_f32 v{b+9+2*k}, v{b+4*k+2}, v{b+4*k+3}")
        a(f"s_add_u32 s40, s37, {4096*c}")
        a(f"buffer_store_dwordx2 {vr(b+8,2)}, v22, s[28:31], s40 offen")
        a(f"buffer_store_dwordx2 {vr(b+10,2)}, v22, s[28:31], s40 offen offset:16")
    stamp_end(a, 1, 5)
    a.label("L_conv_end")
    a("s_endpgm")
    return dict(name=name, vgpr=176 + 96, accum=176, grid=NCONV, block=256, lds=NCH * CH)
```

```python
from gen_common import *
from k_qkv import xlane_sum, ln_params, f2u
from k_prep import round_pairs

WROW = 144
WIMG_SZ = 576 * WROW
YOFF = WIMG_SZ + 64
OP_LDS = YOFF + 80 * 128
SENT = 0xFFFFFFFF

def tile_map(a):
    a("""
    s_and_b32 s32, s2, 7
    s_lshr_b32 s33, s2, 3
    s_lshl_b32 s34, s32, 2
    s_lshr_b32 s35, s33, 3
    s_add_u32 s34, s34, s35
    s_and_b32 s35, s33, 7
    """)

def quarter_mask(a, sd, sw):
    a(f"""
    s_lshl_b32 s40, s{sw}, 4
    s_mov_b64 s[{sd}:{sd+1}], 0xffff
    s_lshl_b64 s[{sd}:{sd+1}], s[{sd}:{sd+1}], s40
    """)

def y_addr(a, dst, tmp):
    a(f"""
    s_mul_i32 s40, s35, {72*4096}
    s_lshl_b32 s41, s34, 7
    s_add_u32 s40, s40, s41
    v_lshrrev_b32 v{tmp}, 3, v2
    v_and_b32 v{tmp+1}, 7, v2
    v_lshlrev_b32 v{tmp}, 12, v{tmp}
    v_lshl_add_u32 v{tmp}, v{tmp+1}, 4, v{tmp}
    v_add_u32 v{tmp}, s40, v{tmp}
    s_lshl_b32 s41, s3, 15
    v_add_u32 v{dst}, s41, v{tmp}
    v_add_u32 v{dst+1}, {32*4096}, v{dst}
    v_add_u32 v{dst+2}, {64*4096}, v{tmp}
    """)

def y_issue(a, vm, va, srd_y, qm, yoff):
    a(f"""
    s_lshl_b32 s41, s3, 10
    s_add_u32 m0, s41, {yoff}
    """)
    vm.issue(f"buffer_load_dwordx4 v{va}, s[{srd_y}:{srd_y+3}], 0 offen lds", tag="y")
    a(f"s_add_u32 m0, s41, {yoff + 4096}")
    vm.issue(f"buffer_load_dwordx4 v{va+1}, s[{srd_y}:{srd_y+3}], 0 offen lds", tag="y")
    a(f"s_mov_b32 m0, {yoff + 8192}")
    a(f"s_mov_b64 exec, s[{qm}:{qm+1}]")
    vm.issue(f"buffer_load_dwordx4 v{va+2}, s[{srd_y}:{srd_y+3}], 0 offen lds", tag="y")
    a("s_mov_b64 exec, -1")

def y_read(a, lg, dst, vaddr, tmp, yoff):
    a(f"""
    v_lshrrev_b32 v{tmp}, 2, v2
    v_lshlrev_b32 v{tmp}, 7, v{tmp}
    v_and_b32 v{vaddr}, 3, v2
    v_lshl_add_u32 v{vaddr}, v{vaddr}, 3, v{tmp}
    s_lshl_b32 s41, s3, 5
    s_add_u32 s41, s41, {yoff}
    v_add_u32 v{vaddr}, s41, v{vaddr}
    """)
    for tl in range(5):
        lg.issue(f"ds_read_b64_tr_b16 {vr(dst+2*tl,2)}, v{vaddr} offset:{tl*2048}")

def tile_stats(a, X, s_, q_, tmp, vmask):
    a(f"v_add_f32 v{s_}, v{X}, v{X+1}")
    a(f"v_mul_f32 v{q_}, v{X}, v{X}")
    a(f"v_add_f32 v{tmp}, v{X+16}, v{X+17}")
    a(f"v_mul_f32 v{tmp+1}, v{X+16}, v{X+16}")
    a(f"v_fma_f32 v{q_}, v{X+1}, v{X+1}, v{q_}")
    a(f"v_fma_f32 v{tmp+1}, v{X+17}, v{X+17}, v{tmp+1}")
    for i in range(2, 16):
        a(f"v_add_f32 v{s_}, v{s_}, v{X+i}")
        a(f"v_fma_f32 v{q_}, v{X+i}, v{X+i}, v{q_}")
        if i < 4:
            a(f"v_add_f32 v{tmp}, v{tmp}, v{X+16+i}")
            a(f"v_fma_f32 v{tmp+1}, v{X+16+i}, v{X+16+i}, v{tmp+1}")
    a(f"v_cndmask_b32 v{tmp}, 0, v{tmp}, s[{vmask}:{vmask+1}]")
    a(f"v_cndmask_b32 v{tmp+1}, 0, v{tmp+1}, s[{vmask}:{vmask+1}]")
    a(f"v_add_f32 v{s_}, v{s_}, v{tmp}")
    a(f"v_add_f32 v{q_}, v{q_}, v{tmp+1}")
    xlane_sum(a, [s_, q_], tmp)

def tile_store(a, vm, PK, vaddr, srd_, vmask, mods=""):
    for tl in range(4):
        vm.issue(f"buffer_store_dwordx2 {vr(PK+2*tl,2)}, v{vaddr}, s[{srd_}:{srd_+3}], 0 offen offset:{32*tl}{mods}", tag="stx")
    a(f"s_mov_b64 exec, s[{vmask}:{vmask+1}]")
    vm.issue(f"buffer_store_dwordx2 {vr(PK+8,2)}, v{vaddr}, s[{srd_}:{srd_+3}], 0 offen offset:128{mods}", tag="stx")
    a("s_mov_b64 exec, -1")

def gate_math(a, X, Y, T_, negm, rinv, PK, TT):
    for i in range(20): a(f"v_add_f32 v{T_+i}, v{X+i}, v{negm}")
    round_pairs(a, [T_ + i for i in range(20)], TT)
    for i in range(20): a(f"v_mul_f32 v{T_+i}, v{T_+i}, v{rinv}")
    round_pairs(a, [T_ + i for i in range(20)], TT)
    for i in range(10):
        t = TT[i % 4]
        a(f"v_lshlrev_b32 v{t}, 16, v{Y+i}")
        a(f"v_and_b32 v{Y+i}, 0xffff0000, v{Y+i}")
        a(f"v_mul_f32 v{T_+2*i}, v{T_+2*i}, v{t}")
        a(f"v_mul_f32 v{T_+2*i+1}, v{T_+2*i+1}, v{Y+i}")
    round_pairs(a, [T_ + i for i in range(20)], TT)
    for i in range(20): a(f"v_add_f32 v{X+i}, v{X+i}, v{T_+i}")
    for i in range(10):
        a(f"v_cvt_pk_bf16_f32 v{PK+i}, v{X+2*i}, v{X+2*i+1}")

def unpack_pk(a, X, PK, n=10):
    for i in range(n):
        a(f"v_lshlrev_b32 v{X+2*i}, 16, v{PK+i}")
        a(f"v_and_b32 v{X+2*i+1}, 0xffff0000, v{PK+i}")

def row_addrs(a):
    a(f"""
    v_and_b32 v13, 15, v2
    v_lshrrev_b32 v14, 4, v2
    s_lshl_b32 s40, s34, 6
    s_lshl_b32 s41, s3, 4
    s_add_u32 s40, s40, s41
    v_add_u32 v15, s40, v13
    s_movk_i32 s41, 1152
    v_mul_lo_u32 v9, v15, s41
    v_lshl_add_u32 v8, v14, 4, v9
    v_lshl_add_u32 v9, v14, 3, v9
    s_mul_i32 s37, s35, 144
    v_add_u32 v9, s37, v9
    v_lshlrev_b32 v10, 6, v15
    s_mov_b32 s56, -1
    s_mov_b32 s57, 0
    s_mov_b32 s58, 0xffff
    s_mov_b32 s59, 0
    """)

def gen_oproj(layer, fused=False):
    def g(a): return _gen_oproj(a, layer, fused)
    return g

def _gen_oproj(a, layer, fused):
    name = f"oproj{layer}_kernel"
    L = f"L_op{layer}"
    kernel_head(a, name)
    a(f"""
    s_cmp_ge_u32 s2, 256
    s_cbranch_scc1 {L}_end
    """)
    stamp(a, 0)
    a(f"""
    s_load_dwordx2 s[4:5], s[0:1], {KA_X}
    s_load_dwordx2 s[6:7], s[0:1], {KA_WO}
    s_load_dwordx2 s[8:9], s[0:1], {KA_OUT}
    s_load_dwordx2 s[12:13], s[0:1], {KA_WS}
    v_lshrrev_b32 v1, 6, v0
    v_and_b32 v2, 63, v0
    s_nop 0
    v_readfirstlane_b32 s3, v1
    """)
    tile_map(a)
    row_addrs(a)
    quarter_mask(a, 52, 3)
    for m in range(3):
        if m < 2:
            a(f"""
            s_lshl_b32 s40, s3, 6
            s_add_u32 s40, s40, {256*m}
            v_add_u32 v16, s40, v2
            """)
        else:
            a("v_add_u32 v16, 512, v2")
        a(f"""
        v_mul_u32_u24 v17, 7282, v16
        v_lshrrev_b32 v17, 16, v17
        v_mul_u32_u24 v18, 9, v17
        v_sub_u32 v18, v16, v18
        v_and_b32 v19, 0x38, v17
        v_and_b32 v20, 1, v17
        v_lshl_add_u32 v19, v20, 2, v19
        v_bfe_u32 v20, v17, 1, 2
        v_add_u32 v19, v19, v20
        v_mul_u32_u24 v19, 1152, v19
        v_lshl_add_u32 v18, v18, 4, v19
        v_add_u32 v{4+m}, s37, v18
        """)
    a("s_lshl_b32 s46, s3, 10")
    a("s_waitcnt lgkmcnt(0)")
    srd(a, 16, 12, XB, WS_O)
    srd(a, 20, 6, 576 * 1152)
    if layer == 0: srd(a, 24, 4, XB)
    else: srd(a, 24, 12, XB, WS_X2)
    srd(a, 28, 12, XB, WS_X1 if layer == 0 else WS_X3)
    srd(a, 60, 12, ST_SZ, WS_ST + (1 if layer == 0 else 3) * ST_SZ)
    if fused:
        srd(a, 64, 12, XB, WS_YT)
        if layer == 0:
            srd(a, 68, 12, XB, WS_X2)
            srd(a, 72, 12, ST_SZ, WS_ST + 2 * ST_SZ)
        else:
            srd(a, 68, 8, XB)
    vm = Cnt(a, "vmcnt", 63)
    OF = 24
    for cc in range(9):
        tag = f"c{cc}"
        a(f"s_mov_b32 s40, {cc*64*1152}")
        a(f"s_add_u32 m0, s46, {cc*9216}")
        vm.issue(f"buffer_load_dwordx4 v4, s[20:23], s40 offen lds", tag=tag)
        a(f"s_add_u32 m0, s46, {cc*9216+4096}")
        vm.issue(f"buffer_load_dwordx4 v5, s[20:23], s40 offen lds", tag=tag)
        a(f"s_mov_b32 m0, {cc*9216+8192}")
        a("s_mov_b64 exec, s[52:53]")
        vm.issue(f"buffer_load_dwordx4 v6, s[20:23], s40 offen lds", tag=tag)
        a("s_mov_b64 exec, -1")
        for s in (2 * cc, 2 * cc + 1):
            vm.issue(f"buffer_load_dwordx4 {vr(OF+4*s,4)}, v8, s[16:19], 0 offen offset:{64*s}", tag=tag)
    RES = 96
    for tl in range(5):
        vm.issue(f"buffer_load_dwordx2 {vr(RES+2*tl,2)}, v9, s[24:27], 0 offen offset:{32*tl}", tag="res")
    if fused:
        y_addr(a, 16, 20)
        y_issue(a, vm, 16, 64, 52, YOFF)
    a(f"""
    v_lshrrev_b32 v16, 4, v2
    v_lshlrev_b32 v16, 3, v16
    v_bfe_u32 v17, v2, 2, 2
    v_lshl_add_u32 v16, v17, 1, v16
    v_mul_u32_u24 v16, {WROW}, v16
    v_and_b32 v17, 3, v2
    v_lshl_add_u32 v7, v17, 3, v16
    """)
    WF = 108
    ACC = 148
    lg = Cnt(a, "lgkmcnt", 15)
    def reads(s):
        R = []
        for tl in range(5):
            for p in range(2):
                off = (32 * (s % 9) + p) * WROW + 32 * tl
                R.append(f"ds_read_b64_tr_b16 {vr(WF+20*(s&1)+4*tl+2*p,2)}, v7 offset:{off}")
        return R
    stamp(a, 1)
    vm.wait("c0")
    a("s_barrier")
    stamp(a, 2)
    for t in reads(0): lg.issue(t)
    for s in range(18):
        if s % 2 == 1 and s + 1 < 18:
            vm.wait(f"c{(s+1)//2}")
            a("s_barrier")
        if s == 8:
            a(f"v_add_u32 v7, {9*32*WROW}, v7")
        nxt = reads(s + 1) if s + 1 < 18 else []
        k = 0
        for tl in range(5):
            wf = WF + 20 * (s & 1) + 4 * tl
            lg.wait(rset(wf, 4))
            cin = "0" if s == 0 else vr(ACC + 4 * tl, 4)
            a(f"v_mfma_f32_16x16x32_bf16 {vr(ACC+4*tl,4)}, {vr(wf,4)}, {vr(OF+4*s,4)}, {cin}")
            for _ in range(2):
                if k < len(nxt):
                    lg.issue(nxt[k]); k += 1
    stamp(a, 3)
    X = 24; T_ = 44; PK = 64; TT = [74, 75, 76, 77]; Y = 80
    vm.wait("res")
    unpack_pk(a, X, RES)
    round_pairs(a, [ACC + i for i in range(20)], TT)
    for i in range(20): a(f"v_add_f32 v{X+i}, v{X+i}, v{ACC+i}")
    for i in range(10): a(f"v_cvt_pk_bf16_f32 v{PK+i}, v{X+2*i}, v{X+2*i+1}")
    if not fused:
        tile_store(a, vm, PK, 9, 28, 56)
    unpack_pk(a, X, PK)
    tile_stats(a, X, 16, 17, 18, 56)
    a(f"""
    s_lshl_b32 s40, s35, 3
    v_add_u32 v11, s40, v10
    s_mov_b64 exec, s[58:59]
    """)
    vm.issue(f"buffer_store_dwordx2 v[16:17], v11, s[60:63], 0 offen" + (" sc1" if fused else ""), tag="sts")
    a("s_mov_b64 exec, -1")
    if fused:
        vm.wait("y")
        a("s_barrier")
        y_read(a, lg, Y, 20, 21, YOFF)
        a(f"v_lshl_add_u32 v12, v14, 4, v10")
        a.label(f"{L}_poll")
        a(f"""
        buffer_load_dwordx4 v[16:19], v12, s[60:63], 0 offen sc1
        s_waitcnt vmcnt(0)
        v_cmp_eq_u32 vcc, -1, v17
        v_cmp_eq_u32 s[40:41], -1, v19
        s_or_b64 vcc, vcc, s[40:41]
        s_cbranch_vccnz {L}_poll
        """)
        vm.q = []
        a("v_add_f32 v16, v16, v18")
        a("v_add_f32 v17, v17, v19")
        xlane_sum(a, [16, 17], 18)
        ln_params(a, 16, 17, 18, 19)
        lg.wait(rset(Y, 10))
        gate_math(a, X, Y, T_, 16, 17, PK, TT)
        tile_store(a, vm, PK, 9, 68, 56)
        if layer == 0:
            unpack_pk(a, X, PK)
            tile_stats(a, X, 16, 17, 18, 56)
            a("s_mov_b64 exec, s[58:59]")
            a(f"buffer_store_dwordx2 v[16:17], v11, s[72:75], 0 offen")
    stamp_end(a, 3 + 3 * layer, 4)
    a.label(f"{L}_end")
    a("s_endpgm")
    return dict(name=name, vgpr=168, grid=256, block=256, lds=OP_LDS if fused else WIMG_SZ + 64)

def gen_gate(layer):
    def g(a): return _gen_gate(a, layer)
    return g

def _gen_gate(a, layer):
    name = f"gate{layer}_kernel"
    L = f"L_gate{layer}"
    kernel_head(a, name)
    a(f"""
    s_cmp_ge_u32 s2, 256
    s_cbranch_scc1 {L}_end
    """)
    stamp(a, 0)
    a(f"""
    s_load_dwordx2 s[8:9], s[0:1], {KA_OUT}
    s_load_dwordx2 s[12:13], s[0:1], {KA_WS}
    v_lshrrev_b32 v1, 6, v0
    v_and_b32 v2, 63, v0
    s_nop 0
    v_readfirstlane_b32 s3, v1
    """)
    tile_map(a)
    row_addrs(a)
    quarter_mask(a, 52, 3)
    y_addr(a, 4, 20)
    a("s_waitcnt lgkmcnt(0)")
    srd(a, 28, 12, XB, WS_X1 if layer == 0 else WS_X3)
    srd(a, 60, 12, ST_SZ, WS_ST + (1 if layer == 0 else 3) * ST_SZ)
    srd(a, 64, 12, XB, WS_YT)
    if layer == 0:
        srd(a, 68, 12, XB, WS_X2)
        srd(a, 72, 12, ST_SZ, WS_ST + 2 * ST_SZ)
    else:
        srd(a, 68, 8, XB)
    vm = Cnt(a, "vmcnt", 63); lg = Cnt(a, "lgkmcnt", 15)
    X = 24; T_ = 44; PK = 64; TT = [74, 75, 76, 77]; Y = 80
    y_issue(a, vm, 4, 64, 52, 0)
    a(f"v_lshl_add_u32 v12, v14, 4, v10")
    vm.issue("buffer_load_dwordx4 v[16:19], v12, s[60:63], 0 offen", tag="st")
    for tl in range(5):
        vm.issue(f"buffer_load_dwordx2 {vr(PK+2*tl,2)}, v9, s[28:31], 0 offen offset:{32*tl}", tag="x")
    stamp(a, 1)
    vm.wait("y")
    a("s_barrier")
    stamp(a, 2)
    y_read(a, lg, Y, 20, 21, 0)
    vm.wait("st")
    a("v_add_f32 v16, v16, v18")
    a("v_add_f32 v17, v17, v19")
    xlane_sum(a, [16, 17], 18)
    ln_params(a, 16, 17, 18, 19)
    vm.wait("x")
    unpack_pk(a, X, PK)
    lg.wait(rset(Y, 10))
    gate_math(a, X, Y, T_, 16, 17, PK, TT)
    tile_store(a, vm, PK, 9, 68, 56)
    if layer == 0:
        unpack_pk(a, X, PK)
        tile_stats(a, X, 16, 17, 18, 56)
        a(f"""
        s_lshl_b32 s40, s35, 3
        v_add_u32 v11, s40, v10
        s_mov_b64 exec, s[58:59]
        buffer_store_dwordx2 v[16:17], v11, s[72:75], 0 offen
        """)
    stamp_end(a, 4 + 3 * layer, 3)
    a.label(f"{L}_end")
    a("s_endpgm")
    return dict(name=name, vgpr=96, grid=256, block=256, lds=80 * 128)
```

```python
from gen_common import *

def round_pairs(a, regs, tmp):
    for i in range(0, len(regs), 2):
        t = tmp[(i // 2) % len(tmp)]
        a(f"v_cvt_pk_bf16_f32 v{t}, v{regs[i]}, v{regs[i+1]}")
        a(f"v_lshlrev_b32 v{regs[i]}, 16, v{t}")
        a(f"v_and_b32 v{regs[i+1]}, 0xffff0000, v{t}")

def unpack8(a, dst, src):
    for i in range(4):
        a(f"v_lshlrev_b32 v{dst+2*i}, 16, v{src+i}")
        a(f"v_and_b32 v{dst+2*i+1}, 0xffff0000, v{src+i}")

NPREP = 288
NSTAT = 64
def gen_prep(a, name="prep_kernel"):
    kernel_head(a, name)
    a(f"""
    s_cmp_ge_u32 s2, {NPREP + NSTAT}
    s_cbranch_scc1 L_prep_end
    s_load_dwordx2 s[4:5], s[0:1], {KA_K}
    s_load_dwordx2 s[6:7], s[0:1], {KA_V}
    s_load_dwordx2 s[8:9], s[0:1], {KA_SHK}
    s_load_dwordx2 s[10:11], s[0:1], {KA_X}
    s_load_dwordx2 s[12:13], s[0:1], {KA_WS}
    s_waitcnt lgkmcnt(0)
    s_cmp_ge_u32 s2, {NPREP}
    s_cbranch_scc1 L_prep_stats
    """)
    srd(a, 16, 4, XB)
    srd(a, 20, 6, XB)
    srd(a, 24, 8, 576 * 8)
    srd(a, 28, 12, WS_G_SZ, WS_G)
    a("""
    s_mul_i32 s32, s2, 7282
    s_lshr_b32 s32, s32, 16
    s_mul_i32 s33, s32, 9
    s_sub_u32 s33, s2, s33
    s_lshl_b32 s34, s32, 6
    s_lshl_b32 s35, s33, 6
    v_and_b32 v1, 7, v0
    v_lshrrev_b32 v2, 3, v0
    """)
    a("""
    v_lshl_add_u32 v3, v2, 1, s34
    v_lshlrev_b32 v4, 3, v1
    v_add_u32 v4, s35, v4
    v_lshlrev_b32 v5, 3, v4
    v_lshlrev_b32 v4, 1, v4
    s_movk_i32 s36, 1152
    v_mul_lo_u32 v6, v3, s36
    v_add_u32 v6, v6, v4
    """)
    for i in range(6):
        a(f"v_add_u32 v{8+i}, {(i-4)*1152 & 0xffffffff:#x}, v6")
    vm = Cnt(a, "vmcnt", 63)
    KR = 16
    for i in range(1, 6):
        vm.issue(f"buffer_load_dwordx4 {vr(KR+4*i,4)}, v{8+i}, s[16:19], 0 offen")
    VR = 40
    for i in range(1, 3):
        vm.issue(f"buffer_load_dwordx4 {vr(VR+4*i,4)}, v{11+i}, s[20:23], 0 offen")
    WR = 52
    for i in range(4):
        vm.issue(f"buffer_load_dwordx4 {vr(WR+4*i,4)}, v5, s[24:27], 0 offen offset:{16*i}")
    vm.issue(f"buffer_load_dwordx4 {vr(KR,4)}, v8, s[16:19], 0 offen")
    vm.issue(f"buffer_load_dwordx4 {vr(VR,4)}, v11, s[20:23], 0 offen")
    WU = 68; KU = 100; P = 148; A_ = 156; VU = 164; TMP = [172, 173, 174, 175]; RES = [176, 184]
    vm.wait(rset(WR, 16))
    for i in range(16):
        a(f"v_lshlrev_b32 v{WU+2*i}, 16, v{WR+i}")
        a(f"v_and_b32 v{WU+2*i+1}, 0xffff0000, v{WR+i}")
    for i in range(1, 6):
        unpack8(a, KU + 8 * i, KR + 4 * i)
    def row(ki, vraw, res):
        for e in range(8):
            a(f"v_mul_f32 v{A_+e}, v{KU+8*(ki-3)+e}, v{WU+4*e+3}")
        round_pairs(a, [A_ + e for e in range(8)], TMP)
        for tap in (2, 1, 0):
            for e in range(8):
                a(f"v_mul_f32 v{P+e}, v{KU+8*(ki-tap)+e}, v{WU+4*e+tap}")
            round_pairs(a, [P + e for e in range(8)], TMP)
            for e in range(8):
                a(f"v_add_f32 v{A_+e}, v{A_+e}, v{P+e}")
            round_pairs(a, [A_ + e for e in range(8)], TMP)
        unpack8(a, VU, vraw)
        for e in range(8):
            a(f"v_mul_f32 v{res+e}, v{A_+e}, v{VU+e}")
    row(4, VR + 4, RES[0])
    row(5, VR + 8, RES[1])
    a("""
    v_mul_u32_u24 v7, 1056, v1
    v_lshlrev_b32 v14, 2, v2
    v_sub_u32 v14, 124, v14
    v_add_u32 v7, v7, v14
    """)
    for e in range(8):
        t = TMP[e % 4]
        a(f"v_cvt_pk_bf16_f32 v{t}, v{RES[1]+e}, v{RES[0]+e}")
        a(f"ds_write_b32 v7, v{t} offset:{132*e}")
    a("""
    v_cmp_gt_u32 vcc, 8, v0
    s_and_saveexec_b64 s[40:41], vcc
    s_cbranch_execz L_prep_nohalo
    """)
    a("s_waitcnt vmcnt(0)")
    unpack8(a, KU, KR)
    row(3, VR, RES[0])
    a("v_mul_u32_u24 v7, 1056, v1")
    for e in range(8):
        t = TMP[e % 4]
        a(f"v_cvt_pk_bf16_f32 v{t}, v{RES[0]+e}, v{RES[0]+e}")
        a(f"ds_write_b16 v7, v{t} offset:{132*e+128}")
    a.label("L_prep_nohalo")
    a("""
    s_mov_b64 exec, s[40:41]
    s_waitcnt vmcnt(0) lgkmcnt(0)
    s_barrier
    """)
    a(f"""
    v_mul_u32_u24 v7, 132, v2
    v_lshl_add_u32 v7, v1, 4, v7
    v_add_u32 v8, s35, v2
    s_movk_i32 s36, {2*GS}
    v_mul_lo_u32 v8, v8, s36
    s_sub_u32 s37, 1984, s34
    s_lshl_b32 s37, s37, 1
    v_lshl_add_u32 v8, v1, 4, v8
    v_add_u32 v8, s37, v8
    v_add_u32 v9, {32*2*GS}, v8
    """)
    for p in range(2):
        b = 16 + 16 * p
        o = 32 * 132 * p
        a(f"ds_read2_b32 v[{b}:{b+1}], v7 offset0:{0} offset1:{1}" if p == 0 else f"v_add_u32 v7, {o}, v7")
        if p == 1:
            a(f"ds_read2_b32 v[{b}:{b+1}], v7 offset0:0 offset1:1")
        a(f"ds_read2_b32 v[{b+2}:{b+3}], v7 offset0:2 offset1:3")
        a(f"ds_read_b32 v{b+4}, v7 offset:16")
    a("s_waitcnt lgkmcnt(0)")
    for p in range(2):
        b = 16 + 16 * p
        for i in range(4):
            a(f"v_alignbit_b32 v{b+8+i}, v{b+i+1}, v{b+i}, 16")
        a(f"buffer_store_dwordx4 v[{b}:{b+3}], v{8+p}, s[28:31], 0 offen")
        a(f"v_add_u32 v10, {GS}, v{8+p}")
        a(f"buffer_store_dwordx4 v[{b+8}:{b+11}], v10, s[28:31], 0 offen")
    a(f"""
    s_cmp_lg_u32 s34, 0
    s_cbranch_scc1 L_prep_end
    v_cmp_gt_u32 vcc, 128, v0
    s_and_saveexec_b64 s[40:41], vcc
    s_cbranch_execz L_prep_end
    v_lshrrev_b32 v1, 1, v0
    v_add_u32 v1, s35, v1
    v_lshlrev_b32 v1, 1, v1
    v_and_b32 v2, 1, v0
    v_add_u32 v1, v1, v2
    s_movk_i32 s36, {GS}
    v_mul_lo_u32 v1, v1, s36
    v_add_u32 v1, 4096, v1
    v_mov_b32 v4, 0
    v_mov_b32 v5, 0
    v_mov_b32 v6, 0
    v_mov_b32 v7, 0
    buffer_store_dwordx4 v[4:7], v1, s[28:31], 0 offen
    s_branch L_prep_end
    """)
    a.label("L_prep_stats")
    srd(a, 16, 10, XB)
    srd(a, 20, 12, ST_SZ, WS_ST)
    a(f"""
    s_sub_u32 s32, s2, {NPREP}
    s_lshl_b32 s32, s32, 5
    v_lshrrev_b32 v1, 3, v0
    v_add_u32 v1, s32, v1
    v_and_b32 v2, 7, v0
    s_movk_i32 s36, 1152
    v_mul_lo_u32 v3, v1, s36
    v_lshl_add_u32 v3, v2, 4, v3
    v_lshlrev_b32 v4, 6, v1
    v_lshl_add_u32 v4, v2, 3, v4
    v_mov_b32 v6, 0
    v_mov_b32 v7, 0
    s_mov_b32 s36, 0x3f803f80
    """)
    for i in range(9):
        a(f"buffer_load_dwordx4 {vr(8+4*i,4)}, v3, s[16:19], 0 offen offset:{128*i}")
    for i in range(9):
        a(f"s_waitcnt vmcnt({8-i})")
        for j in range(4):
            r = 8 + 4 * i + j
            a(f"v_dot2_f32_bf16 v6, v{r}, s36, v6")
            a(f"v_dot2_f32_bf16 v7, v{r}, v{r}, v7")
    a("buffer_store_dwordx2 v[6:7], v4, s[20:23], 0 offen")
    a.label("L_prep_end")
    a("s_endpgm")
    return dict(name=name, vgpr=192, grid=NPREP + NSTAT, block=256, lds=64 * 132)
```

```python
from gen_common import *
import struct

WIMG = 0
HALO = 138240
CSUM = HALO + 18432
QKV_LDS = CSUM + 512

def f2u(x): return struct.unpack("<I", struct.pack("<f", x))[0]

def xlane_sum(a, regs, tmp):
    for op in ("v_permlane16_swap_b32", "v_permlane32_swap_b32"):
        for i, r in enumerate(regs):
            a(f"v_mov_b32 v{tmp+i}, v{r}")
        for i, r in enumerate(regs):
            a(f"{op} v{r}, v{tmp+i}")
        for i, r in enumerate(regs):
            a(f"v_add_f32 v{r}, v{r}, v{tmp+i}")

def ln_params(a, vs, vq, t0, t1):
    a(f"""
    v_mul_f32 v{vs}, {f2u(1.0/576):#x}, v{vs}
    v_mul_f32 v{vq}, {f2u(1.0/576):#x}, v{vq}
    v_fma_f32 v{vq}, -v{vs}, v{vs}, v{vq}
    v_max_f32 v{vq}, 0, v{vq}
    v_cvt_pk_bf16_f32 v{t0}, v{vs}, v{vq}
    v_lshlrev_b32 v{vs}, 16, v{t0}
    v_and_b32 v{vq}, 0xffff0000, v{t0}
    v_add_f32 v{vq}, {f2u(1e-5):#x}, v{vq}
    v_cvt_pk_bf16_f32 v{t0}, v{vq}, v{vq}
    v_lshlrev_b32 v{vq}, 16, v{t0}
    v_sqrt_f32 v{vq}, v{vq}
    v_cvt_pk_bf16_f32 v{t0}, v{vq}, v{vq}
    v_lshlrev_b32 v{vq}, 16, v{t0}
    v_rcp_f32 v{vq}, v{vq}
    v_xor_b32 v{vs}, 0x80000000, v{vs}
    """)

def colbyte_regs(a, dst, vC8, vSp, sw):
    for lam in range(7):
        a(f"""
        s_lshl_b32 s40, s{sw}, 1
        s_add_u32 s40, s40, {lam}
        s_sub_u32 s41, s40, 7
        s_cmp_ge_u32 s40, 7
        s_cselect_b32 s40, s41, s40
        s_lshr_b32 s41, s40, 1
        s_mul_i32 s41, s41, 80
        s_and_b32 s42, s40, 1
        s_lshl_b32 s42, s42, 5
        s_add_u32 s41, s41, s42
        s_cmp_lt_u32 s40, 6
        s_cselect_b64 s[44:45], -1, 0
        v_add_u32 v{dst+lam}, s41, v{vC8}
        v_cndmask_b32 v{dst+lam}, v{vSp}, v{dst+lam}, s[44:45]
        """)

def special_reg(a, dst, vc, t):
    a(f"""
    v_mul_u32_u24 v{dst}, 80, v{vc}
    v_add_u32 v{dst}, 64, v{dst}
    v_cmp_eq_u32 vcc, 3, v{vc}
    v_mov_b32 v{t}, 72
    v_cndmask_b32 v{dst}, v{dst}, v{t}, vcc
    """)

def gen_qkv(layer):
    def g(a):
        return _gen_qkv(a, layer)
    return g

def _gen_qkv(a, layer):
    name = f"qkv{layer}_kernel"
    L = f"L_qkv{layer}"
    kernel_head(a, name)
    a(f"""
    s_cmp_ge_u32 s2, 256
    s_cbranch_scc1 {L}_end
    """)
    stamp(a, 0)
    a(f"""
    s_load_dwordx2 s[4:5], s[0:1], {KA_X}
    s_load_dwordx2 s[6:7], s[0:1], {KA_WQKV}
    s_load_dwordx2 s[12:13], s[0:1], {KA_WS}
    v_lshrrev_b32 v1, 6, v0
    v_and_b32 v2, 63, v0
    s_and_b32 s32, s2, 7
    v_readfirstlane_b32 s3, v1
    s_lshr_b32 s33, s2, 3
    s_lshr_b32 s34, s32, 1
    s_lshl_b32 s34, s34, 2
    s_lshr_b32 s35, s33, 3
    s_add_u32 s34, s34, s35
    s_and_b32 s35, s32, 1
    s_lshl_b32 s35, s35, 3
    s_and_b32 s36, s33, 7
    s_add_u32 s35, s35, s36
    s_lshl_b32 s36, s34, 7
    s_sub_u32 s36, s36, 16
    s_mul_i32 s37, s35, 72
    s_waitcnt lgkmcnt(0)
    """)
    if layer == 0: srd(a, 16, 4, XB)
    else: srd(a, 16, 12, XB, WS_X2)
    srd(a, 20, 6, 576 * 3456)
    srd(a, 24, 12, ST_SZ, WS_ST + (0 if layer == 0 else 2) * ST_SZ)
    srd(a, 28, 12, XB, WS_O)
    for m in range(4):
        a(f"""
        s_add_u32 s40, s3, {4*m}
        s_min_u32 s40, s40, 14
        s_lshl_b32 s{46+m}, s40, 10
        s_lshl_b32 s40, s40, 6
        v_add_u32 v8, s40, v2
        v_mul_u32_u24 v9, 4370, v8
        v_lshrrev_b32 v9, 16, v9
        v_mul_u32_u24 v10, 15, v9
        v_sub_u32 v10, v8, v10
        v_mul_u32_u24 v11, 52, v10
        v_lshrrev_b32 v11, 8, v11
        v_mul_u32_u24 v12, 5, v11
        v_sub_u32 v12, v10, v12
        v_and_b32 v13, 0x30, v9
        v_and_b32 v14, 1, v9
        v_lshl_add_u32 v13, v14, 2, v13
        v_and_b32 v14, 8, v9
        v_add_u32 v13, v13, v14
        v_bfe_u32 v14, v9, 1, 2
        v_add_u32 v13, v13, v14
        v_mul_u32_u24 v13, 3456, v13
        v_mul_u32_u24 v11, 1152, v11
        v_lshl_add_u32 v12, v12, 4, v11
        v_add3_u32 v{4+m}, v13, v12, s37
        """)
    a(f"""
    s_and_b32 s40, s3, 1
    s_lshl_b32 s50, s40, 10
    s_add_u32 s50, s50, {HALO}
    s_lshl_b32 s41, s40, 6
    v_add_u32 v8, s41, v2
    v_lshrrev_b32 v9, 3, v8
    v_lshrrev_b32 v10, 4, v8
    v_and_b32 v8, 7, v8
    v_xor_b32 v8, v8, v10
    v_add_u32 v9, s36, v9
    s_movk_i32 s41, 1152
    v_mul_lo_u32 v9, v9, s41
    v_lshl_add_u32 v3, v8, 4, v9
    s_cmp_eq_u32 s40, 0
    s_cselect_b32 s52, 0xffffff00, -1
    s_mov_b32 s53, -1
    s_lshr_b32 s51, s3, 1
    """)
    a(f"""
    v_and_b32 v13, 15, v2
    v_lshrrev_b32 v14, 4, v2
    s_lshl_b32 s40, s3, 5
    s_add_u32 s40, s40, s36
    s_add_u32 s40, s40, 16
    v_add_u32 v15, s40, v13
    v_mul_lo_u32 v8, v15, s41
    v_lshl_add_u32 v8, v14, 4, v8
    v_add_u32 v9, {16*1152}, v8
    v_lshlrev_b32 v10, 6, v15
    v_lshl_add_u32 v10, v14, 4, v10
    v_add_u32 v11, 1024, v10
    v_add_u32 v15, s36, v13
    v_lshlrev_b32 v12, 6, v15
    v_lshl_add_u32 v12, v14, 4, v12
    """)
    vm = Cnt(a, "vmcnt", 63)
    def issue_chunk(cc):
        tag = f"c{cc}"
        for m in range(4):
            a(f"s_mov_b32 s40, {cc*64*3456}")
            a(f"s_add_u32 m0, s{46+m}, {cc*15360}")
            vm.issue(f"buffer_load_dwordx4 v{4+m}, s[20:23], s40 offen lds", tag=tag)
        if cc % 2 == 0:
            a(f"""
            s_add_u32 s40, s51, {cc}
            s_min_u32 s40, s40, 8
            s_lshl_b32 s41, s40, 11
            s_lshl_b32 s40, s40, 7
            s_add_u32 m0, s50, s41
            s_mov_b64 exec, s[52:53]
            """)
            vm.issue("buffer_load_dwordx4 v3, s[16:19], s40 offen lds", tag=tag)
            a("s_mov_b64 exec, -1")
        for s in (2 * cc, 2 * cc + 1):
            for i in range(2):
                vm.issue(f"buffer_load_dwordx4 {vr((i*18+s)*4,4,'a')}, v{8+i}, s[16:19], 0 offen offset:{64*s}", tag=tag)
    PRE = 4
    issue_chunk(0)
    for i in range(3):
        vm.issue(f"buffer_load_dwordx4 {vr(16+4*i,4)}, v{10+i}, s[24:27], 0 offen", tag="st")
    for cc in range(1, PRE): issue_chunk(cc)
    a(f"""
    v_lshrrev_b32 v28, 3, v0
    v_lshlrev_b32 v28, 11, v28
    v_and_b32 v29, 7, v0
    v_lshl_add_u32 v28, v29, 4, v28
    v_add_u32 v28, {HALO}, v28
    v_mov_b32 v32, 0x3f803f80
    v_mov_b32 v33, 0x3f803f80
    v_mov_b32 v34, 0x3f803f80
    v_mov_b32 v35, 0x3f803f80
    v_cmp_gt_u32 vcc, 72, v0
    s_and_saveexec_b64 s[54:55], vcc
    ds_write_b128 v28, v[32:35]
    s_mov_b64 exec, s[54:55]
    """)
    VW = 28; VH = 36
    a(f"""
    v_and_b32 v38, 3, v2
    v_lshlrev_b32 v39, 3, v38
    """)
    special_reg(a, 40, 38, 41)
    colbyte_regs(a, VW, 39, 40, 3)
    a(f"""
    v_lshrrev_b32 v38, 5, v2
    v_lshlrev_b32 v38, 4, v38
    v_bfe_u32 v39, v2, 4, 1
    v_lshl_add_u32 v38, v39, 3, v38
    v_bfe_u32 v39, v2, 2, 2
    v_lshl_add_u32 v38, v39, 1, v38
    v_mul_u32_u24 v38, 240, v38
    """)
    for lam in range(7):
        a(f"v_add_u32 v{VW+lam}, v{VW+lam}, v38")
    a(f"""
    v_lshrrev_b32 v38, 1, v13
    v_xor_b32 v38, v38, v14
    v_lshl_add_u32 v38, v13, 3, v38
    v_lshlrev_b32 v38, 4, v38
    v_add_u32 v{VH}, {HALO}, v38
    v_xor_b32 v38, 64, v38
    v_add_u32 v{VH+1}, {HALO}, v38
    """)
    stamp(a, 1)
    vm.wait("st")
    for i in range(3):
        b = 16 + 4 * i
        a(f"v_add_f32 v{b}, v{b}, v{b+2}")
        a(f"v_add_f32 v{b+1}, v{b+1}, v{b+3}")
    xlane_sum(a, [16, 17, 20, 21, 24, 25], 38)
    for i in range(3):
        ln_params(a, 16 + 4 * i, 17 + 4 * i, 38, 39)
    WF = 48
    HF = 104
    ACC = 112
    lg = Cnt(a, "lgkmcnt", 15)
    def reads(s):
        R = []
        sb = s & 1
        R.append(f"ds_read_b128 {vr(HF+4*sb,4)}, v{VH+(s&1)} offset:{(s>>1)*2048}")
        for lam in range(7):
            for p in range(2):
                off = (32 * (s % 8) + p) * 240
                R.append(f"ds_read_b64_tr_b16 {vr(WF+28*sb+4*lam+2*p,2)}, v{VW+lam} offset:{off}")
        return R
    vm.wait("c0")
    a("s_waitcnt lgkmcnt(0)")
    a("s_barrier")
    stamp(a, 2)
    for t in reads(0): lg.issue(t)
    for s in range(18):
        sb = s & 1
        if s % 2 == 1 and s + 1 < 18:
            vm.wait(f"c{(s+1)//2}")
            a("s_barrier")
        if s % 2 == 0:
            cc = s // 2 + PRE
            if cc < 9: issue_chunk(cc)
        if (s + 1) % 8 == 0:
            for lam in range(7):
                a(f"v_add_u32 v{VW+lam}, {256*240}, v{VW+lam}")
        nxt = reads(s + 1) if s + 1 < 18 else []
        k = 0
        for lam in range(7):
            wf = WF + 28 * sb + 4 * lam
            units = [(ACC + (0 * 7 + lam) * 4, vr((0 * 18 + s) * 4, 4, "a")), (ACC + (1 * 7 + lam) * 4, vr((1 * 18 + s) * 4, 4, "a"))]
            if lam < 2: units.append((ACC + 56 + lam * 4, vr(HF + 4 * sb, 4)))
            lg.wait(rset(wf, 4) | (rset(HF + 4 * sb, 4) if lam < 2 else set()))
            for (acc, xb) in units:
                cin = "0" if s == 0 else vr(acc, 4)
                a(f"v_mfma_f32_16x16x32_bf16 {vr(acc,4)}, {vr(wf,4)}, {xb}, {cin}")
                if k < len(nxt):
                    lg.issue(nxt[k]); k += 1
        assert k == len(nxt)
    stamp(a, 3)
    VQ = 28
    a(f"v_lshlrev_b32 v39, 3, v14")
    special_reg(a, 40, 14, 41)
    colbyte_regs(a, VQ, 39, 40, 3)
    VC = 48
    for lam in range(7):
        a(f"v_lshlrev_b32 v{VC+lam}, 1, v{VQ+lam}")
    for lam in range(7):
        a(f"v_add_u32 v{VC+lam}, {CSUM}, v{VC+lam}")
    a(f"""
    v_cmp_eq_u32 vcc, 0, v13
    s_and_saveexec_b64 s[54:55], vcc
    ds_write_b128 v{VC}, {vr(ACC+56,4)}
    ds_write_b128 v{VC+1}, {vr(ACC+60,4)}
    s_mov_b64 exec, s[54:55]
    s_waitcnt lgkmcnt(0)
    s_barrier
    """)
    CV = 56
    for lam in range(7):
        lg.issue(f"ds_read_b128 {vr(CV+4*lam,4)}, v{VC+lam}")
    a(f"""
    v_mul_u32_u24 v38, 240, v13
    s_mul_i32 s40, s3, {32*240}
    s_add_u32 s40, s40, {16*240}
    v_add_u32 v84, v{VQ}, v38
    v_add_u32 v85, v{VQ+1}, v38
    v_add_u32 v38, s40, v38
    """)
    for lam in range(7):
        a(f"v_add_u32 v{VQ+lam}, v{VQ+lam}, v38")
    PK = 86
    cnt = 0
    for lam in range(7):
        lg.wait(rset(CV + 4 * lam, 4))
        units = [(ACC + lam * 4, 16, VQ + lam, 0), (ACC + (7 + lam) * 4, 20, VQ + lam, 16 * 240)]
        if lam < 2: units.append((ACC + 56 + lam * 4, 24, 84 + lam, 0))
        for (acc, st, ad, off) in units:
            for r in range(4):
                a(f"v_fma_f32 v{acc+r}, v{st}, v{CV+4*lam+r}, v{acc+r}")
            for r in range(4):
                a(f"v_mul_f32 v{acc+r}, v{acc+r}, v{st+1}")
            p = PK + 2 * (cnt % 8); cnt += 1
            a(f"v_cvt_pk_bf16_f32 v{p}, v{acc}, v{acc+1}")
            a(f"v_cvt_pk_bf16_f32 v{p+1}, v{acc+2}, v{acc+3}")
            a(f"ds_write_b64 v{ad}, {vr(p,2)} offset:{off}")
    a("""
    s_waitcnt lgkmcnt(0)
    s_barrier
    """)
    lg.q = []
    stamp(a, 4)
    Q = 16; KR = 28; VR_ = 108; LG = 188; O = 196; P = 216; T = 232
    a(f"""
    v_and_b32 v1, 127, v0
    v_add_u32 v3, 2, v1
    v_mul_u32_u24 v3, 240, v3
    s_lshl_b32 s40, s51, 5
    v_add_u32 v3, s40, v3
    """)
    def rd10(dst, off):
        lg.issue(f"ds_read_b128 {vr(dst,4)}, v3 offset:{off}")
        lg.issue(f"ds_read_b128 {vr(dst+4,4)}, v3 offset:{off+16}")
        lg.issue(f"ds_read_b64 {vr(dst+8,2)}, v3 offset:{off+32}")
    rd10(Q, 7 * 480)
    for w in range(8): rd10(KR + 10 * w, (7 - w) * 480 + 80)
    a(f"""
    s_lshl_b32 s40, s34, 7
    v_add_u32 v4, s40, v1
    s_movk_i32 s41, 1152
    v_mul_lo_u32 v5, v4, s41
    s_mul_i32 s40, s51, 36
    s_add_u32 s40, s40, s37
    v_add_u32 v5, s40, v5
    s_cmp_eq_u32 s51, 0
    s_cselect_b32 s42, -1, 0
    s_cselect_b32 s43, 0, -1
    """)
    lg.wait(rset(Q, 10))
    a(f"v_and_b32 v{Q}, s42, v{Q}")
    a(f"v_and_b32 v{Q+9}, s43, v{Q+9}")
    vissued = 0
    for w in range(8):
        lg.wait(rset(KR + 10 * w, 10))
        for i in range(10):
            cin = "0" if i == 0 else f"v{LG+w}"
            a(f"v_dot2_f32_bf16 v{LG+w}, v{Q+i}, v{KR+10*w+i}, {cin}")
        rd10(VR_ + 10 * w, (7 - w) * 480 + 160)
    from k_prep import round_pairs
    TT = [T, T + 1, T + 2, T + 3]
    lr = [LG + w for w in range(8)]
    round_pairs(a, lr, TT)
    for w in range(8): a(f"v_mul_f32 v{LG+w}, {f2u(18 ** -0.5):#x}, v{LG+w}")
    round_pairs(a, lr, TT)
    a(f"""
    s_cmp_lg_u32 s34, 0
    s_cbranch_scc1 {L}_nomask
    v_mov_b32 v{T}, 0xce6e0000
    """)
    for w in range(1, 8):
        a(f"v_cmp_le_u32 vcc, {2*w}, v4")
        a(f"v_cndmask_b32 v{LG+w}, v{T}, v{LG+w}, vcc")
    a.label(f"{L}_nomask")
    a("s_nop 1")
    a(f"""
    v_max3_f32 v{T}, v{LG}, v{LG+1}, v{LG+2}
    v_max3_f32 v{T+1}, v{LG+3}, v{LG+4}, v{LG+5}
    v_max3_f32 v{T}, v{T}, v{LG+6}, v{LG+7}
    v_max_f32 v{T}, v{T}, v{T+1}
    """)
    for w in range(8): a(f"v_sub_f32 v{LG+w}, v{LG+w}, v{T}")
    for w in range(8): a(f"v_mul_f32 v{LG+w}, {f2u(1.4426950408889634):#x}, v{LG+w}")
    for w in range(8): a(f"v_exp_f32 v{LG+w}, v{LG+w}")
    a(f"""
    v_add_f32 v{T}, v{LG}, v{LG+1}
    v_add_f32 v{T+1}, v{LG+2}, v{LG+3}
    v_add_f32 v{T+2}, v{LG+4}, v{LG+5}
    v_add_f32 v{T+3}, v{LG+6}, v{LG+7}
    v_add_f32 v{T}, v{T}, v{T+1}
    v_add_f32 v{T+2}, v{T+2}, v{T+3}
    v_add_f32 v{T}, v{T}, v{T+2}
    v_rcp_f32 v{T}, v{T}
    """)
    for w in range(8): a(f"v_mul_f32 v{LG+w}, v{LG+w}, v{T}")
    for w in range(8):
        a(f"v_cvt_pk_bf16_f32 v{P+2*w}, v{LG+w}, 0")
        a(f"v_lshlrev_b32 v{P+2*w+1}, 16, v{P+2*w}")
    for w in range(8):
        lg.wait(rset(VR_ + 10 * w, 10))
        for i in range(10):
            for h in range(2):
                cin = "0" if w == 0 else f"v{O+2*i+h}"
                a(f"v_dot2_f32_bf16 v{O+2*i+h}, v{VR_+10*w+i}, v{P+2*w+h}, {cin}")
    for i in range(10):
        a(f"v_cvt_pk_bf16_f32 v{Q+i}, v{O+2*i}, v{O+2*i+1}")
    a(f"""
    s_cmp_lg_u32 s51, 0
    s_cbranch_scc1 {L}_h1
    buffer_store_dwordx4 {vr(Q,4)}, v5, s[28:31], 0 offen
    buffer_store_dwordx4 {vr(Q+4,4)}, v5, s[28:31], 0 offen offset:16
    buffer_store_dword v{Q+8}, v5, s[28:31], 0 offen offset:32
    s_branch {L}_fin
    {L}_h1:
    buffer_store_dword v{Q+1}, v5, s[28:31], 0 offen
    buffer_store_dwordx4 {vr(Q+2,4)}, v5, s[28:31], 0 offen offset:4
    buffer_store_dwordx4 {vr(Q+6,4)}, v5, s[28:31], 0 offen offset:20
    {L}_fin:
    """)
    stamp_end(a, 2 + 3 * layer, 5)
    a(f"""
    {L}_end:
    s_endpgm
    """)
    return dict(name=name, vgpr=240 + 144, accum=240, grid=256, block=256, lds=QKV_LDS)
```

```python
import sys
from gen_common import *
from gen import build
from k2_prep import gen_prep2
from k2_conv import gen_conv2
from k2_qkv import gen_qkv2
from k2_oproj import gen_oproj2

if __name__ == "__main__":
    out = sys.argv[1] if len(sys.argv) > 1 else "cdna_kernels/" + NAME + ".s"
    build([gen_prep2, gen_conv2, gen_qkv2(0), gen_oproj2(0), gen_qkv2(1), gen_oproj2(1)],
          ["prep_kernel", "conv_kernel", "qkv0_kernel", "oproj0_kernel", "qkv1_kernel", "oproj1_kernel"], out)
```

```python
import copy, os
from m4_common import *
from k_qkv import xlane_sum, ln_params, f2u
from k_prep import round_pairs

WOL = 0
DB = 82944
SLOT = 9216
TB = DB + 8 * SLOT
CNT = TB + 2304
MEGA_LDS = 163840
STG = DB + 4 * SLOT
RS = 240
def slot(s): return (s + 2) & 7
CS_ = 4160
FREG = 4 * CS_
CH = 24576
EX = DB
YL = DB + 24576

CSQ = 104; YR = 98; RES = 92

NST = 16
def mstamp(a, i):
    if PROF: a(f"s_memtime s[{64+2*i}:{65+2*i}]")

def mstamp_dump(a):
    if not PROF: return
    a(f"""
    s_waitcnt vmcnt(0) lgkmcnt(0)
    s_memtime s[{64+2*(NST-1)}:{65+2*(NST-1)}]
    s_memrealtime s[98:99]
    s_lshl_b32 s40, s61, 3
    s_add_u32 s40, s40, s60
    s_lshl_b32 s40, s40, 3
    s_add_u32 s40, s40, s3
    s_lshl_b32 s40, s40, 7
    s_lshl_b32 s41, s20, 19
    s_add_u32 s40, s40, s41
    s_add_u32 s40, s40, {WS_PROF}
    v_mov_b32 v88, 0
    s_waitcnt lgkmcnt(0)
    s_mov_b64 exec, 1
    """)
    vals = [96, 98] + [64 + 2 * i for i in range(NST)]
    for j, sreg in enumerate(vals):
        a(f"v_mov_b32 v89, s{sreg}")
        a(f"buffer_store_dword v89, v88, s[4:7], s40 offen offset:{4*j}")
    a("s_mov_b64 exec, -1")
    a("s_memrealtime s[96:97]")

_lab = [0]
def newlab(p):
    _lab[0] += 1
    return f"L_{p}{_lab[0]}"

def st2(a, text, sm=62):
    L1 = newlab("slow"); L2 = newlab("stj")
    a(f"s_cmp_lg_u32 s{sm}, 0")
    a(f"s_cbranch_scc1 {L1}")
    a(text.replace(" @", ""))
    a(f"s_branch {L2}")
    a.label(L1)
    a(text.replace(" @", " sc1"))
    a.label(L2)

def flag_store(a, sflag, sm=62, t=(88, 89)):
    a(f"""
    v_mov_b32 v{t[0]}, 0
    v_mov_b32 v{t[1]}, 1
    s_mov_b64 exec, 1
    """)
    st2(a, f"buffer_store_dword v{t[1]}, v{t[0]}, s[4:7], s{sflag} offen @", sm)
    a("s_mov_b64 exec, -1")

def signal(a, cnt_idx, n, sflag, t=(88, 89, 90)):
    L = newlab("sig")
    t0, t1, t2 = t
    a(f"""
    v_mov_b32 v{t0}, 0x20000
    v_mov_b32 v{t1}, 1
    s_mov_b64 exec, 1
    ds_add_rtn_u32 v{t2}, v{t0}, v{t1} offset:{CNT - 0x20000 + 4*cnt_idx}
    s_waitcnt lgkmcnt(0)
    v_readfirstlane_b32 s40, v{t2}
    s_cmp_eq_u32 s40, {n-1}
    s_cbranch_scc0 {L}
    v_mov_b32 v{t0}, 0
    buffer_store_dword v{t1}, v{t0}, s[4:7], s{sflag} offen sc1
    """)
    a.label(L)
    a("s_mov_b64 exec, -1")

def poll(a, vaddr, soff, t=91):
    L = newlab("poll"); X = newlab("pollx")
    a("s_mov_b32 s42, 0x40000")
    a.label(L)
    a(f"""
    buffer_load_dword v{t}, v{vaddr}, s[4:7], s{soff} offen sc1
    s_sub_u32 s42, s42, 1
    s_cbranch_scc1 {X}
    s_waitcnt vmcnt(0)
    v_cmp_ne_u32 vcc, 1, v{t}
    s_cbranch_vccnz {L}
    """)
    a.label(X)
    a("s_waitcnt vmcnt(0)")

XB0 = 8; ACC = 48
def q_setup(a):
    a(f"""
    s_lshl_b32 s40, s21, 3
    s_add_u32 s41, s40, s3
    s_mul_i32 s32, s41, {TILEB}
    s_add_u32 s32, s32, s26
    s_lshl_b32 s36, s41, 11
    s_add_u32 s36, s36, s27
    s_lshl_b32 s44, s41, 6
    s_lshl_b32 s33, s3, 10
    s_add_u32 s33, s33, {DB + 1024}
    s_sub_u32 s40, s40, 1
    s_max_i32 s40, s40, 0
    s_mul_i32 s34, s40, {TILEB}
    s_add_u32 s34, s34, s26
    s_lshl_b32 s37, s40, 11
    s_add_u32 s37, s37, s27
    s_lshl_b32 s45, s40, 6
    s_and_b32 s40, s3, 1
    s_lshl_b32 s41, s40, 10
    s_add_u32 s34, s34, s41
    s_mul_i32 s35, s40, {SLOT}
    s_add_u32 s35, s35, {DB}
    s_lshl_b32 s38, s31, 5
    s_cmp_eq_u32 s31, 5
    s_cselect_b32 s40, 16, 0
    s_cselect_b32 s39, 40, 32
    s_sub_u32 s38, s38, s40
    s_add_u32 s38, s38, {STG}
    v_lshrrev_b32 v1, 4, v2
    v_lshlrev_b32 v6, 4, v1
    v_xor_b32 v6, v6, v3
    v_add_u32 v6, {DB}, v6
    v_xor_b32 v7, 64, v6
    v_add_u32 v7, {SLOT}, v7
    s_lshl_b32 s40, s30, 12
    s_add_u32 s40, s40, 1024
    v_add_u32 v4, s40, v6
    v_add_u32 v5, s40, v7
    v_and_b32 v88, 15, v2
    v_lshlrev_b32 v88, 4, v88
    v_add_u32 v88, 0x20000, v88
    s_lshl_b32 s46, s3, 10
    s_mul_i32 s47, s24, {18*4608}
    s_add_u32 s47, s47, {WS_WO}
    """)

def issue_x(a, vm, c, mwave):
    for s in (2 * c, 2 * c + 1):
        a(f"s_add_u32 s40, s32, {s*1024}")
        a(f"s_add_u32 m0, s33, {slot(s)*SLOT}")
        vm.issue("buffer_load_dwordx4 v3, s[4:7], s40 offen lds", tag=f"c{c}")
    if mwave:
        a(f"s_add_u32 s40, s34, {c*2048}")
        a(f"s_add_u32 m0, s35, {slot(2*c)*SLOT}")
        vm.issue("buffer_load_dwordx4 v3, s[4:7], s40 offen lds", tag=f"c{c}")

def q_pre(a, mwave, mid=None):
    vm = Cnt(a, "vmcnt", 63)
    issue_x(a, vm, 0, mwave)
    ST = ACC
    srs = (36, 37) if mwave else (36,)
    for i, sr in enumerate(srs):
        vm.issue(f"buffer_load_dwordx4 {vr(ST+8*i,4)}, v3, s[4:7], s{sr} offen", tag="st")
        vm.issue(f"buffer_load_dwordx4 {vr(ST+8*i+4,4)}, v3, s[4:7], s{sr} offen offset:1024", tag="st")
    for c in range(1, 4): issue_x(a, vm, c, mwave)
    if mid: mid(vm)
    vm.wait("st")
    n = len(srs)
    for i in range(n):
        b = ST + 8 * i
        a(f"v_add_f32 v{b}, v{b}, v{b+2}")
        a(f"v_add_f32 v{b+1}, v{b+1}, v{b+3}")
        a(f"v_add_f32 v{b+4}, v{b+4}, v{b+6}")
        a(f"v_add_f32 v{b+5}, v{b+5}, v{b+7}")
        a(f"v_add_f32 v{b}, v{b}, v{b+4}")
        a(f"v_add_f32 v{b+1}, v{b+1}, v{b+5}")
    xlane_sum(a, [ST, ST + 1, ST + 8, ST + 9][:2 * n], ST + 16)
    for i in range(n):
        ln_params(a, ST + 8 * i, ST + 8 * i + 1, ST + 16, ST + 17)
    for i in range(n):
        b = ST + 8 * i
        a(f"v_mov_b32 v{b+2}, v{b+1}")
        a(f"v_mov_b32 v{b+3}, v{b+1}")
        a(f"v_mov_b32 v{b+1}, v{b}")
    a(f"""
    s_lshl_b32 s40, s3, 8
    v_add_u32 v89, s40, v88
    ds_write_b128 v89, {vr(ST,4)} offset:{TB + 256 - 0x20000}
    """)
    if mwave: a(f"ds_write_b128 v88, {vr(ST+8,4)} offset:{TB - 0x20000}")

def q_variant(a, NT, halo, mwave):
    vm = Cnt(a, "vmcnt", 63); lg = Cnt(a, "lgkmcnt", 15)
    for c in (1, 2, 3): vm.q += [f"c{c}"] * (3 if mwave else 2)
    def reads(s):
        sb = s & 1
        off = (slot(s) - sb) * SLOT
        R = []
        if halo: R.append(f"ds_read_b128 {vr(XB0+20*sb+16,4)}, v{6+sb} offset:{off}")
        for i in range(4):
            R.append(f"ds_read_b128 {vr(XB0+20*sb+4*i,4)}, v{4+sb} offset:{off + 1024*i}")
        return R
    def wo_dma(j):
        if j < 10:
            a(f"s_add_u32 m0, s46, {8192*j}")
            a(f"s_add_u32 s40, s47, m0")
        else:
            a(f"s_mov_b32 m0, 81920")
            a(f"s_add_u32 s40, s47, 81920")
        vm.issue("buffer_load_dwordx4 v3, s[4:7], s40 offen lds", tag="wo")
    def mode_load():
        a(f"s_lshl_b32 s40, s60, 7")
        a(f"s_add_u32 s40, s40, {WS_FL + FL_CL}")
        a("v_mov_b32 v89, 0")
        vm.issue("buffer_load_dwordx2 v[90:91], v89, s[4:7], s40 offen sc1", tag="mode")
    mstamp(a, 1)
    a("s_waitcnt lgkmcnt(0)")
    a("s_barrier")
    mstamp(a, 2)
    for t in reads(0): lg.issue(t)
    for s in range(18):
        sb = s & 1; c = s // 2
        pend = []
        if sb == 1 and s + 1 < 18:
            vm.wait(f"c{c+1}")
            lg.wait_all()
            a("s_barrier")
            if c + 4 <= 8: pend.append(lambda c=c: issue_x(a, vm, c + 4, mwave))
        if s <= 10: pend.append(lambda s=s: wo_dma(s))
        if s == 11: pend.append(mode_load)
        nxt = reads(s + 1) if s + 1 < 18 else []
        order = ([4] if halo else []) + [0, 1, 2, 3]
        k = 0
        for i in order:
            xf = XB0 + 20 * sb + 4 * i
            for t in range(NT):
                lg.wait(rset(xf, 4))
                acc = ACC + (i * 2 + t) * 4
                cin = "0" if s == 0 else vr(acc, 4)
                a(f"v_mfma_f32_16x16x32_bf16 {vr(acc,4)}, {vr(8*s+4*t,4,'a')}, {vr(xf,4)}, {cin}")
                if k < len(nxt):
                    lg.issue(nxt[k]); k += 1
                elif pend:
                    pend.pop(0)()
        while k < len(nxt):
            lg.issue(nxt[k]); k += 1
        while pend: pend.pop(0)()
    mstamp(a, 3)
    a(f"""
    s_lshl_b32 s40, s30, 10
    v_add_u32 v89, s40, v88
    """)
    for i in range(4):
        lg.issue(f"ds_read_b128 {vr(8+4*i,4)}, v89 offset:{TB - 0x20000 + 256 + 256*i}")
    if halo: lg.issue(f"ds_read_b128 {vr(24,4)}, v88 offset:{TB - 0x20000}")
    a(f"""
    v_bfe_u32 v28, v2, 3, 1
    v_and_b32 v29, 7, v2
    v_mul_u32_u24 v28, 72, v28
    v_add_u32 v28, v28, v29
    v_mul_u32_u24 v28, {RS}, v28
    v_lshrrev_b32 v29, 4, v2
    """)
    if NT == 2:
        a(f"""
        v_lshl_add_u32 v28, v29, 3, v28
        v_add_u32 v28, s38, v28
        """)
    else:
        a(f"""
        v_lshlrev_b32 v30, 3, v29
        v_mul_u32_u24 v31, 40, v29
        v_add_u32 v31, {176 - 80 - 128}, v31
        v_cndmask_b32 v30, v31, v30, s[50:51]
        v_add_u32 v28, v28, v30
        v_add_u32 v28, {STG + 128}, v28
        """)
    a(f"""
    s_mul_i32 s40, s30, {32*RS}
    v_add_u32 v29, s40, v28
    """)
    if NT == 2:
        a("v_add_u32 v30, s39, v28")
        a("v_add_u32 v31, s39, v29")
    def fold(acc, cs, st):
        for h in range(2):
            a(f"v_pk_fma_f32 {vr(acc+2*h,2)}, {vr(cs+2*h,2)}, {vr(st,2)}, {vr(acc+2*h,2)}")
        for h in range(2):
            a(f"v_pk_mul_f32 {vr(acc+2*h,2)}, {vr(acc+2*h,2)}, {vr(st+2,2)}")
        a(f"v_cvt_pk_bf16_f32 v{acc}, v{acc}, v{acc+1}")
        a(f"v_cvt_pk_bf16_f32 v{acc+1}, v{acc+2}, v{acc+3}")
    for i in [0, 1, 2, 3] + ([4] if halo else []):
        lg.wait(rset(8 + 4 * i, 4))
        for t in range(NT):
            acc = ACC + (i * 2 + t) * 4
            fold(acc, CSQ + 4 * t, 8 + 4 * i)
            if i < 4: lg.issue(f"ds_write_b64 v{29+2*t}, {vr(acc,2)} offset:{8*RS*(i+1)}", tag="w")
            else: lg.issue(f"ds_write_b64 v{28+2*t}, {vr(acc,2)}", tag="w")


def attention(a):
    lg = Cnt(a, "lgkmcnt", 15)
    Q = 8; KV = 18; S_ = 48; T = 60; P = 68; O = 48; PK = 8
    a(f"""
    s_and_b32 s40, s3, 1
    s_mul_i32 s40, s40, 72
    s_lshr_b32 s41, s3, 1
    s_lshl_b32 s41, s41, 5
    s_add_u32 s40, s40, s41
    s_mul_i32 s40, s40, {RS}
    s_add_u32 s40, s40, {STG}
    v_and_b32 v4, 31, v2
    v_mul_u32_u24 v6, {RS}, v4
    v_add_u32 v6, s40, v6
    v_lshrrev_b32 v1, 5, v2
    v_lshl_add_u32 v5, v1, 5, v6
    """)
    lg.issue(f"ds_read_b128 {vr(Q,4)}, v5 offset:{8*RS}")
    lg.issue(f"ds_read_b128 {vr(KV,4)}, v5 offset:64")
    lg.issue(f"ds_read_b128 {vr(KV+10,4)}, v5 offset:{4*RS+64}")
    lg.issue(f"ds_read_b128 {vr(KV+20,4)}, v5 offset:{8*RS+64}")
    lg.issue(f"ds_read_b128 {vr(Q+4,4)}, v5 offset:{8*RS+16}")
    for c in range(3):
        lg.issue(f"ds_read_b128 {vr(KV+10*c+4,4)}, v5 offset:{4*RS*c+80}")
    lg.issue(f"ds_read_b64 {vr(Q+8,2)}, v6 offset:{8*RS+128}")
    for c in range(3):
        lg.issue(f"ds_read_b64 {vr(KV+10*c+8,2)}, v6 offset:{4*RS*c+136}")
    a(f"""
    v_and_b32 v7, 3, v2
    v_bfe_u32 v74, v2, 4, 1
    v_lshl_add_u32 v7, v74, 2, v7
    v_bfe_u32 v74, v2, 2, 2
    v_lshl_add_u32 v7, v7, 2, v74
    v_mul_u32_u24 v7, {RS}, v7
    v_add_u32 v74, s40, v7
    v_mul_u32_u24 v7, 40, v1
    v_add_u32 v7, v7, v74
    v_add_u32 v4, s41, v4
    v_and_b32 v4, 0xfc, v4
    """)
    a(f"""
    v_bfe_u32 v75, v2, 3, 2
    v_mul_u32_u24 v75, {TILEB}, v75
    v_and_b32 v76, 7, v2
    v_lshl_add_u32 v75, v76, 4, v75
    s_lshl_b32 s40, s21, 3
    s_lshr_b32 s41, s3, 1
    s_lshl_b32 s41, s41, 2
    s_add_u32 s40, s40, s41
    s_mul_i32 s40, s40, {TILEB}
    s_add_u32 s40, s40, s28
    s_and_b32 s41, s3, 1
    s_lshl_b32 s41, s41, 7
    s_add_u32 s40, s40, s41
    s_lshr_b32 s41, s22, 1
    s_mul_i32 s41, s41, {9*256}
    s_add_u32 s40, s40, s41
    s_and_b32 s41, s22, 1
    s_mul_i32 s43, s41, {5*256}
    s_add_u32 s43, s43, s40
    s_lshl_b32 s41, s41, 3
    s_add_u32 s44, s40, s41
    v_lshl_add_u32 v76, v1, 9, v75
    s_mov_b32 s54, 0x11111111
    s_mov_b32 s55, 0x11111111
    s_mov_b32 s56, 0x33333333
    s_mov_b32 s57, 0x33333333
    s_mov_b32 s58, 0x77777777
    s_mov_b32 s59, 0x77777777
    """)
    for kk in range(5):
        if kk == 4:
            lg.wait(rset(Q + 8, 2))
            a(f"v_cndmask_b32 v{Q+8}, 0, v{Q+8}, s[50:51]")
            a(f"v_cndmask_b32 v{Q+9}, v{Q+9}, 0, s[50:51]")
        for c in range(3):
            lg.wait(rset(KV + 10 * c + 2 * kk, 2) | rset(Q + 2 * kk, 2))
            cin = "0" if kk == 0 else vr(S_ + 4 * c, 4)
            a(f"v_mfma_f32_4x4x4_16b_bf16 {vr(S_+4*c,4)}, {vr(KV+10*c+2*kk,2)}, {vr(Q+2*kk,2)}, {cin}")
    for c in range(3):
        for dg in range(5):
            if dg < 4: lg.issue(f"ds_read_b64_tr_b16 {vr(KV+6*dg+2*c,2)}, v7 offset:{4*RS*c + 144 + 8*dg}")
            else: lg.issue(f"ds_read_b64_tr_b16 {vr(KV+6*dg+2*c,2)}, v74 offset:{4*RS*c + 176}")
    masks = {1: 54, 2: 56, 3: 58}
    for m in (1, 2, 3):
        a(f"v_cndmask_b32 v{S_+m}, v{S_+m+8}, v{S_+m}, s[{masks[m]}:{masks[m]+1}]")
    lr = [S_ + i for i in range(1, 9)]
    TT = [T, T + 1, T + 2, T + 3]
    round_pairs(a, lr, TT)
    for r in lr: a(f"v_mul_f32 v{r}, {f2u(18 ** -0.5):#x}, v{r}")
    round_pairs(a, lr, TT)
    L = newlab("nomask")
    a(f"""
    s_cmp_lg_u32 s21, 0
    s_cbranch_scc1 {L}
    v_mov_b32 v{T}, 0xce6e0000
    """)
    for m in (1, 2, 3):
        a(f"v_mov_b32 v{T+1}, {m+8}")
        a(f"v_mov_b32 v{T+2}, {m}")
        a(f"v_cndmask_b32 v{T+1}, v{T+1}, v{T+2}, s[{masks[m]}:{masks[m]+1}]")
        a(f"v_add_u32 v{T+1}, v{T+1}, v4")
        a(f"v_cmp_le_u32 vcc, 8, v{T+1}")
        a(f"v_cndmask_b32 v{S_+m}, v{T}, v{S_+m}, vcc")
    for sg in range(4, 8):
        a(f"v_cmp_le_u32 vcc, {8-sg}, v4")
        a(f"v_cndmask_b32 v{S_+sg}, v{T}, v{S_+sg}, vcc")
    a.label(L)
    a("s_nop 1")
    a(f"""
    v_max3_f32 v{T}, v{lr[0]}, v{lr[1]}, v{lr[2]}
    v_max3_f32 v{T+1}, v{lr[3]}, v{lr[4]}, v{lr[5]}
    v_max3_f32 v{T}, v{T}, v{lr[6]}, v{lr[7]}
    v_max_f32 v{T}, v{T}, v{T+1}
    """)
    for r in lr: a(f"v_sub_f32 v{r}, v{r}, v{T}")
    for r in lr: a(f"v_mul_f32 v{r}, {f2u(1.4426950408889634):#x}, v{r}")
    for r in lr: a(f"v_exp_f32 v{r}, v{r}")
    a(f"""
    v_add_f32 v{T}, v{lr[0]}, v{lr[1]}
    v_add_f32 v{T+1}, v{lr[2]}, v{lr[3]}
    v_add_f32 v{T+2}, v{lr[4]}, v{lr[5]}
    v_add_f32 v{T+3}, v{lr[6]}, v{lr[7]}
    v_add_f32 v{T}, v{T}, v{T+1}
    v_add_f32 v{T+2}, v{T+2}, v{T+3}
    v_add_f32 v{T}, v{T}, v{T+2}
    v_rcp_f32 v{T}, v{T}
    """)
    for r in lr: a(f"v_mul_f32 v{r}, v{r}, v{T}")
    for m in (1, 2, 3):
        a(f"v_cndmask_b32 v{S_+m+8}, v{S_+m}, 0, s[{masks[m]}:{masks[m]+1}]")
        a(f"v_cndmask_b32 v{S_+m}, 0, v{S_+m}, s[{masks[m]}:{masks[m]+1}]")
    a(f"v_cvt_pk_bf16_f32 v{P}, 0, v{S_+1}")
    for i in range(1, 6):
        a(f"v_cvt_pk_bf16_f32 v{P+i}, v{S_+2*i}, v{S_+2*i+1}")
    for c in range(3):
        for dg in range(5):
            lg.wait(rset(KV + 6 * dg + 2 * c, 2))
            cin = "0" if c == 0 else vr(O + 4 * dg, 4)
            a(f"v_mfma_f32_4x4x4_16b_bf16 {vr(O+4*dg,4)}, {vr(KV+6*dg+2*c,2)}, {vr(P+2*c,2)}, {cin}")
    for j in range(10):
        a(f"v_cvt_pk_bf16_f32 v{PK+j}, v{O+2*j}, v{O+2*j+1}")
    a(f"""
    v_mov_b32 v{PK+10}, v{PK+9}
    v_permlane32_swap_b32 v{PK+10}, v{PK+9}
    s_lshl_b32 s45, s20, 4
    s_add_u32 s45, s45, s21
    s_lshl_b32 s45, s45, 2
    s_add_u32 s45, s45, s3
    s_lshl_b32 s45, s45, 6
    s_lshl_b32 s41, s22, 2
    s_add_u32 s45, s45, s41
    s_add_u32 s45, s45, {WS_FL + FL_O}
    """)
    st2(a, f"""
    buffer_store_dwordx4 {vr(PK,4)}, v76, s[4:7], s43 offen @
    buffer_store_dwordx4 {vr(PK+4,4)}, v76, s[4:7], s43 offen offset:256 @
    s_mov_b64 exec, s[50:51]
    buffer_store_dwordx2 {vr(PK+8,2)}, v75, s[4:7], s44 offen offset:1024 @
    s_mov_b64 exec, -1
    """)
    a("s_waitcnt vmcnt(0)")
    flag_store(a, 45)

CACC = 8; BF = 40; AF = 72; KVR = 92; DR = 100
def conv_issue(a):
    a(f"""
    s_mul_i32 s32, s25, 3
    s_lshr_b32 s33, s3, 2
    s_and_b32 s34, s3, 3
    s_and_b32 s36, s3, 1
    s_mul_i32 s36, s36, {GS}
    s_bfe_u32 s37, s3, 0x10001
    s_lshl_b32 s37, s37, 2
    s_add_u32 s36, s36, s37
    s_add_u32 s35, s32, s33
    s_mul_i32 s37, s35, {2*GS}
    s_add_u32 s37, s37, s36
    s_mul_i32 s38, s34, {CS_}
    s_mul_i32 s39, s33, {CH}
    s_add_u32 s38, s38, s39
    s_lshl_b32 s41, s34, 10
    s_lshl_b32 s40, s35, 12
    s_add_u32 s40, s40, s41
    s_add_u32 s39, s39, s41
    s_add_u32 m0, s39, {FREG + 512}
    s_nop 0
    buffer_load_dwordx4 v3, s[12:15], s40 offen lds
    """)
    for i in (3, 2, 1, 0):
        a(f"s_add_u32 s40, s37, {WS_G + 1024*i}")
        a(f"s_add_u32 m0, s38, {1024*i}")
        a("buffer_load_dwordx4 v3, s[4:7], s40 offen lds")
    a(f"""
    s_add_u32 s35, s32, 2
    s_lshl_b32 s40, s35, 12
    s_add_u32 s40, s40, s41
    s_add_u32 m0, s41, {2*CH + FREG + 512}
    s_mul_i32 s37, s35, {2*GS}
    buffer_load_dwordx4 v3, s[12:15], s40 offen lds
    s_add_u32 s37, s37, s36
    s_mul_i32 s38, s34, {CS_}
    s_lshl_b32 s39, s33, 11
    s_sub_u32 s37, s37, s39
    s_sub_u32 s38, s38, s39
    """)
    for i in (3, 2):
        a(f"s_add_u32 s40, s37, {WS_G + 1024*i}")
        a(f"s_add_u32 m0, s38, {2*CH + 1024*i}")
        a("buffer_load_dwordx4 v3, s[4:7], s40 offen lds")
    a(f"""
    s_add_u32 s40, s32, s33
    s_lshl_b32 s40, s40, 1
    s_lshl_b32 s41, s35, 1
    v_mov_b32 v89, 0
    buffer_load_ushort v{DR}, v89, s[16:19], s40 offen
    buffer_load_ushort v{DR+1}, v89, s[16:19], s41 offen
    v_add_u32 v88, {FREG}, v3
    v_subrev_u32 v89, 32, v2
    v_lshrrev_b32 v90, 2, v89
    v_mul_u32_u24 v90, {CS_}, v90
    v_and_b32 v89, 3, v89
    v_lshl_add_u32 v89, v89, 4, v90
    v_add_u32 v89, 4096, v89
    v_cndmask_b32 v88, v89, v88, s[50:51]
    v_mov_b32 v8, 0
    v_mov_b32 v9, 0
    v_mov_b32 v10, 0
    v_mov_b32 v11, 0
    s_mov_b32 s40, -1
    s_mov_b32 s41, 0xffff
    s_mov_b64 exec, s[40:41]
    """)
    for c in range(3):
        a(f"ds_write_b128 v88, v[8:11] offset:{c*CH}")
    a("s_mov_b64 exec, -1")

def conv_steps(a, lg, offs, tail):
    NA = 4
    ops = [(k, a_, d) for k in range(len(offs)) for a_ in range(7, -1, -1) for d in range(0, 8 - a_)]
    inst = {}; aseq = []
    for i, (k, a_, d) in enumerate(ops):
        for key in (("A", k, a_), ("B", k, d)):
            if key not in inst:
                inst[key] = dict(first=i, last=i)
                if key[0] == "A": aseq.append(key)
            inst[key]["last"] = i
    for j, key in enumerate(aseq):
        inst[key]["reg"] = AF + 4 * (j % NA)
        inst[key]["free"] = inst[aseq[j - NA]]["last"] if j >= NA else -1
    for key, I in inst.items():
        if key[0] == "B":
            I["reg"] = BF + 4 * key[2]
            I["free"] = inst[("B", key[1] - 1, key[2])]["last"] if key[1] else -1
    for key, I in inst.items():
        t, k, x = key
        if t == "A":
            off = offs[k] + 512 * (7 - x)
            I["reads"] = [f"ds_read_b64 {vr(I['reg'],2)}, v4 offset:{off}", f"ds_read_b64 {vr(I['reg']+2,2)}, v4 offset:{off+8}"]
        else:
            I["reads"] = [f"ds_read_b128 {vr(I['reg'],4)}, v5 offset:{offs[k] + 512*x}"]
    pending = sorted(inst.keys(), key=lambda k: (inst[k]["first"], k[0]))
    def pump(i, maxn):
        n = 0
        while pending and n < maxn:
            k = pending[0]; I = inst[k]
            if I["free"] > i or len(lg.q) > 12: break
            for t in I["reads"]: lg.issue(t)
            n += len(I["reads"]); pending.pop(0)
    started = set()
    pump(-1, 12)
    for i, (k, a_, d) in enumerate(ops):
        IA = inst[("A", k, a_)]; IB = inst[("B", k, d)]
        while ("A", k, a_) in pending or ("B", k, d) in pending:
            kk = pending.pop(0)
            assert inst[kk]["free"] < i, (kk, i)
            for t in inst[kk]["reads"]: lg.issue(t)
        lg.wait(rset(IA["reg"], 4) | rset(IB["reg"], 4))
        n = a_ + d
        acc = CACC + 4 * n
        cin = vr(acc, 4) if n in started else "0"
        started.add(n)
        a(f"v_mfma_f32_16x16x32_bf16 {vr(acc,4)}, {vr(IA['reg'],4)}, {vr(IB['reg'],4)}, {cin}")
        pump(i, 2)
        if i + 4 == len(ops): tail()

def conv_main(a):
    lg = Cnt(a, "lgkmcnt", 15)
    T = [88, 89, 90, 91]
    a(f"""
    s_lshr_b32 s33, s3, 2
    s_and_b32 s34, s3, 3
    s_mul_i32 s35, s33, {CH}
    v_and_b32 v18, 15, v2
    v_lshrrev_b32 v19, 4, v2
    v_and_b32 v20, 7, v18
    v_lshrrev_b32 v21, 3, v18
    v_lshl_add_u32 v20, v20, 1, v21
    v_sub_u32 v21, 3, v20
    v_and_b32 v21, 3, v21
    v_add_u32 v20, v20, v21
    v_and_b32 v22, 1, v19
    v_lshrrev_b32 v23, 1, v19
    v_lshlrev_b32 v4, 3, v22
    v_sub_u32 v4, v4, v20
    v_lshlrev_b32 v5, 4, v23
    v_sub_u32 v4, v4, v5
    v_lshlrev_b32 v4, 1, v4
    v_mul_u32_u24 v21, {CS_}, v21
    v_add_u32 v4, v4, v21
    s_lshl_b32 s36, s34, 7
    s_sub_u32 s36, s35, s36
    s_add_u32 s40, s36, {2*2047 - 64 - 3584}
    v_add_u32 v4, s40, v4
    v_sub_u32 v5, v18, v23
    v_lshlrev_b32 v5, 5, v5
    v_lshl_add_u32 v5, v22, 4, v5
    s_add_u32 s40, s36, {FREG + 512 - 64}
    v_add_u32 v5, s40, v5
    v_lshlrev_b32 v6, 5, v18
    v_lshl_add_u32 v6, v22, 4, v6
    v_sub_u32 v6, {4080 - 512}, v6
    v_lshlrev_b32 v7, 4, v23
    v_lshrrev_b32 v102, 2, v18
    v_mul_u32_u24 v102, {8*9216}, v102
    v_lshl_add_u32 v102, v19, 5, v102
    v_and_b32 v18, 3, v18
    v_lshl_add_u32 v102, v18, 3, v102
    s_lshl_b32 s40, s34, 10
    s_sub_u32 s40, s35, s40
    v_add_u32 v103, s40, v6
    s_mul_i32 s37, s60, 9216
    s_mul_i32 s40, s61, {3*128}
    s_add_u32 s37, s37, s40
    s_add_u32 s37, s37, {WS_YT}
    """)
    def tail1():
        lg.issue(f"ds_read_b128 {vr(KVR,4)}, v103 offset:512")
        lg.issue(f"ds_read_b128 {vr(KVR+4,4)}, v103")
    conv_steps(a, lg, [64, 0], tail1)
    mstamp(a, 5)
    lg.wait_all()
    a("s_barrier")
    for o in range(4):
        a(f"""
        s_sub_u32 s40, s34, {o+1}
        s_and_b32 s40, s40, 3
        s_cmp_lg_u32 s40, 3
        s_cselect_b64 exec, -1, 0
        s_lshl_b32 s40, s40, 11
        s_add_u32 s40, s40, s35
        v_add_u32 v{88+o}, s40, v3
        ds_write_b128 v{88+o}, {vr(CACC+8*o,4)} offset:{o*6144}
        ds_write_b128 v{88+o}, {vr(CACC+8*o+4,4)} offset:{o*6144+1024}
        """)
    L = newlab("own")
    a(f"""
    s_mov_b64 exec, -1
    s_mul_i32 s40, s34, 6144
    s_add_u32 s40, s40, s35
    v_add_u32 v103, s40, v3
    s_cmp_eq_u32 s34, 0
    s_cbranch_scc1 {L}_j
    s_cmp_eq_u32 s34, 2
    s_cbranch_scc1 {L}_2
    s_cmp_eq_u32 s34, 3
    s_cbranch_scc1 {L}_3
    """)
    for o in (1, 2, 3):
        if o > 1: a.label(f"{L}_{o}")
        for r in range(8): a(f"v_mov_b32 v{CACC+r}, v{CACC+8*o+r}")
        if o < 3: a(f"s_branch {L}_j")
    a.label(f"{L}_j")
    def kvterm(kv, n, d):
        a(f"v_lshlrev_b32 v{d}, 16, v{d}")
        for i in range(n): a(f"v_lshlrev_b32 v{kv+i}, v7, v{kv+i}")
        for i in range(n): a(f"v_and_b32 v{kv+i}, 0xffff0000, v{kv+i}")
        for i in range(n): a(f"v_mul_f32 v{kv+i}, v{kv+i}, v{d}")
        round_pairs(a, [kv + i for i in range(n)], T)
    kvterm(KVR, 8, DR)
    a(f"""
    s_lshl_b32 s40, s33, 6
    s_add_u32 s40, s40, s35
    s_sub_u32 s40, {2*CH + 64}, s40
    v_add_u32 v4, s40, v4
    v_add_u32 v5, s40, v5
    s_lshl_b32 s40, s33, 7
    s_add_u32 s40, s40, s37
    s_mul_i32 s41, s34, {2*4*8*9216}
    s_add_u32 s40, s40, s41
    s_add_u32 s41, s40, {4*8*9216}
    s_waitcnt lgkmcnt(0)
    s_barrier
    """)
    for si in range(3):
        for h in range(2):
            lg.issue(f"ds_read_b128 {vr(BF + 8*si + 4*h, 4)}, v103 offset:{2048*si + 1024*h}")
    o = CACC
    lg.wait(rset(BF, 8))
    for r in range(8): a(f"v_add_f32 v{o+r}, v{o+r}, v{BF+r}")
    lg.wait(rset(BF + 8, 16))
    for r in range(8): a(f"v_add_f32 v{BF+8+r}, v{BF+8+r}, v{BF+16+r}")
    for r in range(8): a(f"v_add_f32 v{o+r}, v{o+r}, v{BF+8+r}")
    round_pairs(a, [o + r for r in range(8)], T)
    for h in range(2):
        for r in range(4): a(f"v_add_f32 v{o+4*h+r}, v{o+4*h+r}, v{KVR+4*h+3-r}")
    for k in range(4): a(f"v_cvt_pk_bf16_f32 v{KVR+k}, v{o+2*k}, v{o+2*k+1}")
    a(f"""
    buffer_store_dwordx2 {vr(KVR,2)}, v102, s[4:7], s40 offen sc1
    buffer_store_dwordx2 {vr(KVR+2,2)}, v102, s[4:7], s41 offen sc1
    s_lshl_b32 s40, s3, 9
    s_sub_u32 s40, {2*CH + 512}, s40
    v_add_u32 v103, s40, v6
    """)
    mstamp(a, 6)
    def tail2():
        lg.issue(f"ds_read_b128 {vr(KVR+4,4)}, v103")
    conv_steps(a, lg, [0], tail2)
    lg.wait_all()
    a("s_barrier")
    a(f"""
    s_lshl_b32 s40, s3, 10
    v_add_u32 v88, s40, v3
    s_lshl_b32 s40, s3, 13
    v_add_u32 v103, s40, v3
    """)
    for o in range(8):
        a(f"ds_write_b128 v88, {vr(CACC+4*o,4)} offset:{8192*o}")
    T = [89, 90, 91, 1]
    kvterm(KVR + 4, 4, DR + 1)
    a(f"""
    s_mul_i32 s40, s3, {4*8*9216}
    s_add_u32 s40, s40, s37
    s_waitcnt lgkmcnt(0)
    s_barrier
    """)
    for si in range(8):
        lg.issue(f"ds_read_b128 {vr(BF + 4*si, 4)}, v103 offset:{1024*si}")
    for p in range(4):
        lg.wait(rset(BF + 8 * p, 8))
        for r in range(4): a(f"v_add_f32 v{BF+8*p+r}, v{BF+8*p+r}, v{BF+8*p+4+r}")
    for r in range(4): a(f"v_add_f32 v{BF+r}, v{BF+r}, v{BF+8+r}")
    for r in range(4): a(f"v_add_f32 v{BF+16+r}, v{BF+16+r}, v{BF+24+r}")
    for r in range(4): a(f"v_add_f32 v{BF+r}, v{BF+r}, v{BF+16+r}")
    round_pairs(a, [BF + r for r in range(4)], T)
    for r in range(4): a(f"v_add_f32 v{BF+r}, v{BF+r}, v{KVR+4+3-r}")
    a(f"""
    v_cvt_pk_bf16_f32 v{BF}, v{BF}, v{BF+1}
    v_cvt_pk_bf16_f32 v{BF+1}, v{BF+2}, v{BF+3}
    buffer_store_dwordx2 {vr(BF,2)}, v102, s[4:7], s40 offen offset:256 sc1
    """)

def p_phase(a):
    vm = Cnt(a, "vmcnt", 63); lg = Cnt(a, "lgkmcnt", 15)
    OF = 8; WF = 44; PA = 68; NW = 6
    a(f"""
    s_lshr_b32 s33, s3, 2
    s_and_b32 s34, s3, 3
    s_mul_i32 s40, s33, {9*4608}
    s_lshl_b32 s41, s33, 11
    s_add_u32 s43, s40, s41
    v_add_u32 v4, s43, v3
    v_xor_b32 v5, 2048, v4
    v_lshrrev_b32 v7, 4, v2
    v_and_b32 v6, 7, v2
    v_lshl_add_u32 v6, v7, 3, v6
    v_lshlrev_b32 v6, 4, v6
    s_add_u32 s40, s40, 4096
    v_add_u32 v6, s40, v6
    s_lshl_b32 s35, s23, 2
    s_add_u32 s35, s35, s34
    s_mul_i32 s36, s35, {TILEB}
    s_mul_i32 s37, s33, 9216
    s_add_u32 s37, s37, s36
    s_add_u32 s37, s37, s28
    v_and_b32 v1, 31, v2
    v_lshlrev_b32 v1, 2, v1
    s_lshl_b32 s40, s23, 7
    s_lshl_b32 s41, s20, 12
    s_add_u32 s40, s40, s41
    s_add_u32 s38, s40, {WS_FL + FL_O}
    s_and_b32 s40, s35, 15
    s_cmp_eq_u32 s40, 15
    s_cselect_b32 s63, 1, s62
    """)
    def wread(f):
        s, t = divmod(f, 5)
        reg = WF + 4 * (f % NW)
        if t < 2: return f"ds_read_b128 {vr(reg,4)}, v4 offset:{s*4608 + 1024*t}"
        if t < 4: return f"ds_read_b128 {vr(reg,4)}, v5 offset:{s*4608 + 1024*(t-2)}"
        return f"ds_read_b128 {vr(reg,4)}, v6 offset:{s*4608}"
    Lr = newlab("nores")
    a(f"""
    s_cmp_lg_u32 s20, 0
    s_cbranch_scc1 {Lr}
    """)
    res_load(a)
    a(f"""
    s_cmp_lt_u32 s3, 4
    s_cbranch_scc1 {Lr}
    v_min_u32 v8, 23, v2
    v_lshlrev_b32 v8, 2, v8
    s_mul_i32 s44, s24, 96
    s_add_u32 s44, s44, {WS_FL + FL_Y}
    """)
    poll(a, 8, 44)
    a(f"""
    s_lshl_b32 s40, s23, 3
    s_add_u32 s40, s40, s24
    s_mul_i32 s40, s40, 9216
    s_add_u32 s40, s40, {WS_YT}
    s_lshl_b32 s41, s34, 10
    s_add_u32 s42, s40, s41
    s_add_u32 m0, s41, {YL}
    s_add_u32 s43, s42, 4096
    buffer_load_dwordx4 v3, s[4:7], s42 offen lds
    s_add_u32 m0, s41, {YL + 4096}
    s_add_u32 s40, s40, 8192
    buffer_load_dwordx4 v3, s[4:7], s43 offen lds
    s_mov_b32 m0, {YL + 8192}
    s_nop 0
    buffer_load_dwordx4 v3, s[4:7], s40 offen lds
    """)
    a.label(Lr)
    poll(a, 1, 38)
    mstamp(a, 8)
    for s in range(9):
        if s % 4 == 0 and s: a("s_add_u32 s37, s37, 4096")
        vm.issue(f"buffer_load_dwordx4 {vr(OF+4*s,4)}, v3, s[4:7], s37 offen offset:{1024*(s%4)}")
    for f in range(NW): lg.issue(wread(f))
    for f in range(45):
        s, t = divmod(f, 5)
        reg = WF + 4 * (f % NW)
        if t == 0: vm.wait(rset(OF + 4 * s, 4))
        lg.wait(rset(reg, 4))
        cin = "0" if s == 0 else vr(PA + 4 * t, 4)
        a(f"v_mfma_f32_16x16x32_bf16 {vr(PA+4*t,4)}, {vr(reg,4)}, {vr(OF+4*s,4)}, {cin}")
        if f + NW < 45: lg.issue(wread(f + NW))
    mstamp(a, 10)
    X = 8; TT = [28, 29, 30, 31]; T_ = 32; PKR = RES
    a(f"""
    s_mul_i32 s40, s3, 3072
    s_add_u32 s40, s40, {EX}
    v_add_u32 v4, s40, v3
    s_xor_b32 s40, s3, 4
    s_mul_i32 s40, s40, 3072
    s_add_u32 s40, s40, {EX}
    v_add_u32 v5, s40, v3
    """)
    for j in range(3):
        a(f"ds_write_b128 v4, {vr(PA+8+4*j,4)} offset:{1024*j}")
    for i in range(6):
        a(f"v_lshlrev_b32 v{X+2*i}, 16, v{RES+i}")
        a(f"v_and_b32 v{X+2*i+1}, 0xffff0000, v{RES+i}")
    a("s_waitcnt lgkmcnt(0)")
    a("s_barrier")
    Ly2 = newlab("noy2")
    a(f"""
    s_cmp_lg_u32 s20, 0
    s_cbranch_scc1 {Ly2}
    v_lshrrev_b32 v4, 2, v2
    v_lshlrev_b32 v4, 7, v4
    v_and_b32 v6, 3, v2
    v_lshl_add_u32 v4, v6, 5, v4
    s_lshl_b32 s40, s34, 3
    s_add_u32 s40, s40, {YL}
    v_add_u32 v6, s40, v4
    s_lshl_b32 s41, s33, 12
    v_add_u32 v4, s41, v6
    ds_read_b64_tr_b16 {vr(YR,2)}, v4
    ds_read_b64_tr_b16 {vr(YR+2,2)}, v4 offset:2048
    ds_read_b64_tr_b16 {vr(YR+4,2)}, v6 offset:8192
    """)
    a.label(Ly2)
    for j in range(3):
        lg.issue(f"ds_read_b128 {vr(44+4*j,4)}, v5 offset:{1024*j}")
    a(f"""
    s_lshl_b32 s39, s35, 11
    s_lshl_b32 s40, s24, 8
    s_lshl_b32 s41, s33, 3
    s_add_u32 s40, s40, s41
    s_add_u32 s46, s40, s39
    s_add_u32 s47, s46, s29
    s_add_u32 s39, s39, s29
    s_cmp_eq_u32 s33, 1
    s_cselect_b64 s[56:57], s[50:51], 0
    """)
    A_ = [PA + i for i in range(8)] + [PA + 16 + i for i in range(4)]
    for j in range(3):
        lg.wait(rset(44 + 4 * j, 4))
        for r in range(4): a(f"v_add_f32 v{A_[4*j+r]}, v{A_[4*j+r]}, v{44+4*j+r}")
    round_pairs(a, A_, TT)
    for i in range(12): a(f"v_add_f32 v{X+i}, v{X+i}, v{A_[i]}")
    round_pairs(a, [X + i for i in range(12)], TT)
    def stats(s_, q_, t):
        a(f"v_add_f32 v{s_}, v{X}, v{X+1}")
        a(f"v_mul_f32 v{q_}, v{X}, v{X}")
        a(f"v_add_f32 v{t}, v{X+8}, v{X+9}")
        a(f"v_mul_f32 v{t+1}, v{X+8}, v{X+8}")
        a(f"v_fma_f32 v{q_}, v{X+1}, v{X+1}, v{q_}")
        a(f"v_fma_f32 v{t+1}, v{X+9}, v{X+9}, v{t+1}")
        for i in range(2, 8):
            a(f"v_add_f32 v{s_}, v{s_}, v{X+i}")
            a(f"v_fma_f32 v{q_}, v{X+i}, v{X+i}, v{q_}")
            if i < 4:
                a(f"v_add_f32 v{t}, v{t}, v{X+8+i}")
                a(f"v_fma_f32 v{t+1}, v{X+8+i}, v{X+8+i}, v{t+1}")
        a(f"v_cndmask_b32 v{t}, 0, v{t}, s[56:57]")
        a(f"v_cndmask_b32 v{t+1}, 0, v{t+1}, s[56:57]")
        a(f"v_add_f32 v{s_}, v{s_}, v{t}")
        a(f"v_add_f32 v{q_}, v{q_}, v{t+1}")
        xlane_sum(a, [s_, q_], t)
    stats(20, 21, 22)
    a("s_mov_b64 exec, s[52:53]")
    st2(a, "buffer_store_dwordx2 v[20:21], v3, s[4:7], s47 offen @")
    a("s_mov_b64 exec, -1")
    mstamp(a, 11)
    L = newlab("spoll"); LX = newlab("spollx")
    a("s_mov_b32 s42, 0x40000")
    a.label(L)
    a(f"""
    buffer_load_dwordx4 v[20:23], v3, s[4:7], s39 offen sc1
    buffer_load_dwordx4 v[24:27], v3, s[4:7], s39 offen offset:1024 sc1
    s_sub_u32 s42, s42, 1
    s_cbranch_scc1 {LX}
    s_waitcnt vmcnt(0)
    v_max3_u32 v28, v21, v23, v25
    v_max_u32 v28, v28, v27
    v_cmp_eq_u32 vcc, -1, v28
    s_cbranch_vccnz {L}
    """)
    a.label(LX)
    a("s_waitcnt vmcnt(0)")
    mstamp(a, 9)
    a("""
    v_add_f32 v20, v20, v22
    v_add_f32 v21, v21, v23
    v_add_f32 v24, v24, v26
    v_add_f32 v25, v25, v27
    v_add_f32 v20, v20, v24
    v_add_f32 v21, v21, v25
    """)
    xlane_sum(a, [20, 21], 22)
    ln_params(a, 20, 21, 22, 23)
    for i in range(12): a(f"v_add_f32 v{T_+i}, v{X+i}, v20")
    round_pairs(a, [T_ + i for i in range(12)], TT)
    for i in range(12): a(f"v_mul_f32 v{T_+i}, v{T_+i}, v21")
    round_pairs(a, [T_ + i for i in range(12)], TT)
    a("s_waitcnt lgkmcnt(0)")
    for i in range(6):
        t = TT[(2 * i) % 4]; t2 = TT[(2 * i + 1) % 4]
        a(f"v_lshlrev_b32 v{t}, 16, v{YR+i}")
        a(f"v_and_b32 v{t2}, 0xffff0000, v{YR+i}")
        a(f"v_mul_f32 v{T_+2*i}, v{T_+2*i}, v{t}")
        a(f"v_mul_f32 v{T_+2*i+1}, v{T_+2*i+1}, v{t2}")
    round_pairs(a, [T_ + i for i in range(12)], TT)
    for i in range(12): a(f"v_add_f32 v{X+i}, v{X+i}, v{T_+i}")
    for i in range(6):
        a(f"v_cvt_pk_bf16_f32 v{RES+i}, v{X+2*i}, v{X+2*i+1}")
    a(f"""
    v_mov_b32 v44, v{RES}
    v_mov_b32 v45, v{RES+1}
    v_mov_b32 v46, v{RES+2}
    v_mov_b32 v47, v{RES+3}
    v_mov_b32 v48, v{RES+4}
    v_mov_b32 v49, v{RES+5}
    v_mov_b32 v52, v{RES+4}
    v_mov_b32 v53, v{RES+5}
    v_permlane16_swap_b32 v44, v46
    v_permlane16_swap_b32 v45, v47
    v_permlane16_swap_b32 v52, v50
    v_permlane16_swap_b32 v53, v51
    v_and_b32 v4, 15, v2
    v_lshrrev_b32 v5, 4, v2
    v_and_b32 v6, 1, v5
    v_lshrrev_b32 v5, 1, v5
    v_lshl_add_u32 v5, v6, 1, v5
    s_cmp_eq_u32 s33, 1
    s_cselect_b64 s[58:59], s[52:53], 0
    s_cmp_lg_u32 s20, 0
    s_cbranch_scc1 L_mega_final
    s_mul_i32 s40, s24, 9
    s_lshl_b32 s41, s33, 2
    s_add_u32 s41, s41, s40
    v_add_u32 v5, s41, v5
    v_and_b32 v6, 7, v5
    v_xor_b32 v6, v6, v4
    v_lshlrev_b32 v6, 4, v6
    v_lshl_add_u32 v5, v5, 8, v6
    s_and_b32 s41, s40, 7
    v_xor_b32 v6, s41, v4
    v_lshlrev_b32 v6, 4, v6
    s_add_u32 s41, s40, 8
    s_lshl_b32 s41, s41, 8
    s_add_u32 s40, s36, {WS_X2}
    s_add_u32 s41, s41, s40
    """)
    st2(a, """
    buffer_store_dwordx4 v[44:47], v5, s[4:7], s40 offen @
    s_mov_b64 exec, s[58:59]
    buffer_store_dwordx4 v[48:51], v6, s[4:7], s41 offen @
    s_mov_b64 exec, -1
    """, 63)
    for i in range(6):
        a(f"v_lshlrev_b32 v{X+2*i}, 16, v{RES+i}")
        a(f"v_and_b32 v{X+2*i+1}, 0xffff0000, v{RES+i}")
    stats(20, 21, 22)
    a(f"""
    s_add_u32 s47, s46, {WS_ST + 2*ST3_SZ}
    s_lshl_b32 s44, s35, 4
    s_lshl_b32 s40, s24, 1
    s_add_u32 s44, s44, s40
    s_add_u32 s44, s44, s33
    s_lshl_b32 s44, s44, 2
    s_add_u32 s44, s44, {WS_FL + FL_X}
    s_mov_b64 exec, s[52:53]
    """)
    st2(a, "buffer_store_dwordx2 v[20:21], v3, s[4:7], s47 offen @", 63)
    a("s_mov_b64 exec, -1")
    mstamp(a, 14)
    a("s_waitcnt vmcnt(0)")
    flag_store(a, 44, 63)
    a("s_barrier")

def p_final(a):
    a(f"""
    v_and_b32 v6, 7, v4
    v_lshrrev_b32 v4, 3, v4
    v_lshl_add_u32 v4, v6, 1, v4
    v_mul_u32_u24 v4, 1152, v4
    v_lshl_add_u32 v5, v5, 4, v4
    s_mul_i32 s40, s24, 144
    s_add_u32 s40, s40, s36
    s_lshl_b32 s41, s33, 6
    s_add_u32 s41, s41, s40
    buffer_store_dwordx4 v[44:47], v5, s[8:11], s41 offen
    s_mov_b64 exec, s[58:59]
    buffer_store_dwordx4 v[48:51], v4, s[8:11], s40 offen offset:128
    s_mov_b64 exec, -1
    """)
    mstamp(a, 14)

def res_load(a):
    a(f"""
    v_and_b32 v8, 15, v2
    v_lshrrev_b32 v9, 4, v2
    v_and_b32 v10, 1, v9
    v_lshrrev_b32 v9, 1, v9
    s_mul_i32 s40, s24, 9
    s_lshl_b32 s41, s33, 2
    s_add_u32 s41, s41, s40
    v_add_u32 v9, s41, v9
    s_add_u32 s40, s40, 8
    s_add_u32 s43, s36, {WS_XF}
    """)
    for j in range(3):
        if j == 1: a("v_add_u32 v9, 2, v9")
        if j == 2: a("v_mov_b32 v9, s40")
        a(f"""
        v_and_b32 v11, 7, v9
        v_xor_b32 v11, v11, v8
        v_lshlrev_b32 v11, 4, v11
        v_lshl_add_u32 v11, v9, 8, v11
        v_lshl_add_u32 v11, v10, 3, v11
        buffer_load_dwordx2 {vr(RES+2*j,2)}, v11, s[4:7], s43 offen
        """)

def w_loads(a, vm, mwave):
    a(f"""
    s_mul_i32 s40, s22, {18*7*1024}
    s_lshl_b32 s41, s31, 10
    s_add_u32 s40, s40, s41
    s_add_u32 s40, s40, {WS_WQ}
    """)
    for s in range(18):
        vm.issue(f"buffer_load_dwordx4 {vr(8*s,4,'a')}, v3, s[4:7], s40 offen", tag="w")
        if not mwave: vm.issue(f"buffer_load_dwordx4 {vr(8*s+4,4,'a')}, v3, s[4:7], s40 offen offset:1024", tag="w")
        if s < 17: a(f"s_add_u32 s40, s40, 7168")

def gen_mega(a, name="mega_kernel"):
    kernel_head(a, name)
    a(f"""
    s_cmp_ge_u32 s2, 256
    s_cbranch_scc1 L_mega_end
    """)
    if PROF: a("s_memrealtime s[96:97]")
    mstamp(a, 0)
    a(f"""
    s_load_dwordx2 s[40:41], s[0:1], {KA_WS}
    s_load_dwordx2 s[42:43], s[0:1], {KA_OUT}
    s_load_dwordx2 s[44:45], s[0:1], {KA_SSMK}
    s_load_dwordx2 s[46:47], s[0:1], {KA_SSMD}
    v_lshrrev_b32 v1, 6, v0
    v_and_b32 v2, 63, v0
    s_getreg_b32 s60, hwreg(HW_REG_XCC_ID, 0, 3)
    v_readfirstlane_b32 s3, v1
    s_lshr_b32 s61, s2, 3
    v_lshlrev_b32 v3, 4, v2
    s_mov_b32 s50, -1
    s_mov_b32 s51, 0
    s_mov_b32 s52, 0xffff
    s_mov_b32 s53, 0
    s_mov_b32 s20, 0
    s_mov_b32 s63, 0
    s_mov_b32 s26, {WS_XF}
    s_mov_b32 s27, {WS_ST}
    s_mov_b32 s28, {WS_O0}
    s_mov_b32 s29, {WS_ST + ST3_SZ}
    s_lshl_b32 s34, s3, 2
    s_lshr_b32 s31, 0x52440052, s34
    s_and_b32 s31, s31, 7
    s_lshr_b32 s30, 0xe8, s3
    s_and_b32 s30, s30, 1
    s_waitcnt lgkmcnt(0)
    """)
    srd(a, 4, 40, WS_TOT)
    srd(a, 8, 42, XB)
    srd(a, 12, 44, XB)
    srd(a, 16, 46, 1152)
    def claim(sg, ss, vf):
        a(f"""
        s_lshl_b32 s40, 1, s{ss}
        v_mov_b32 v104, s40
        v_mov_b32 v105, {vf}
        v_mov_b32 v106, 0
        s_lshl_b32 s41, s{sg}, 7
        s_add_u32 s41, s41, {WS_FL + FL_CL}
        s_mov_b64 exec, 1
        buffer_atomic_or_x2 v[104:105], v106, s[4:7], s41 offen sc0 sc1
        s_mov_b64 exec, -1
        """)
    a(f"""
    s_cmp_lg_u32 s3, 0
    s_cbranch_scc1 L_mega_restart
    """)
    claim(60, 61, "0")
    a.label("L_mega_restart")
    a(f"""
    s_lshl_b32 s21, s60, 1
    s_lshr_b32 s40, s61, 4
    s_add_u32 s21, s21, s40
    s_and_b32 s22, s61, 15
    s_lshl_b32 s23, s60, 2
    s_lshr_b32 s40, s61, 3
    s_add_u32 s23, s23, s40
    s_and_b32 s24, s61, 7
    s_mul_i32 s25, s60, 24
    s_add_u32 s25, s25, s61
    s_cmp_ge_u32 s61, 24
    s_cselect_b32 s25, 255, s25
    s_cbranch_scc1 L_mega_noci
    """)
    conv_issue(a)
    a.label("L_mega_noci")
    q_setup(a)
    a(f"""
    v_mov_b32 v8, 0
    v_lshlrev_b32 v9, 2, v2
    v_add_u32 v9, 0x20000, v9
    s_mov_b64 exec, 0xff
    ds_write_b32 v9, v8 offset:{CNT - 0x20000}
    s_mov_b64 exec, -1
    s_cmp_eq_u32 s31, 4
    s_cbranch_scc1 L_mega_pre_m
    """)
    q_pre(a, False, lambda vm: w_loads(a, vm, False))
    a("s_branch L_mega_pre_j")
    a.label("L_mega_pre_m")
    q_pre(a, True, lambda vm: w_loads(a, vm, True))
    a.label("L_mega_pre_j")
    a(f"""
    s_cmp_lg_u32 s3, 0
    s_cbranch_scc1 L_mega_b0
    s_mov_b32 s44, s60
    s_mov_b32 s45, s61
    s_cmp_lg_u32 s63, 0
    s_cbranch_scc1 L_mega_res_done
    s_mov_b32 s63, 1
    s_mov_b32 s46, 0
    s_movk_i32 s47, 400
    L_mega_res:
    v_readfirstlane_b32 s43, v104
    s_bitcmp1_b32 s43, s45
    s_cbranch_scc0 L_mega_res_done
    s_sub_u32 s47, s47, 1
    s_cbranch_scc1 L_mega_res_done
    s_cmp_lg_u32 s43, -1
    s_cbranch_scc1 L_mega_res2
    s_add_u32 s44, s44, 1
    s_and_b32 s44, s44, 7
    s_mov_b32 s46, 1
    s_mov_b32 s43, 0
    L_mega_res2:
    s_ff0_i32_b32 s45, s43
    """)
    claim(44, 45, "s46")
    a(f"""
    s_waitcnt vmcnt(0)
    s_branch L_mega_res
    L_mega_res_done:
    s_lshl_b32 s44, s44, 8
    s_add_u32 s44, s44, s45
    v_mov_b32 v8, s44
    v_mov_b32 v9, 0x20000
    ds_write_b32 v9, v8 offset:{CNT - 0x20000 + 32}
    L_mega_b0:
    v_mov_b32 v9, 0x20000
    s_waitcnt lgkmcnt(0)
    s_barrier
    ds_read_b32 v8, v9 offset:{CNT - 0x20000 + 32}
    """)
    a(f"""
    v_lshrrev_b32 v1, 4, v2
    v_lshlrev_b32 v4, 4, v1
    s_mul_i32 s40, s31, 3
    s_add_u32 s40, s40, 2
    s_lshr_b32 s40, s40, 3
    s_mul_i32 s40, s40, 2304
    v_add_u32 v4, s40, v4
    v_min_u32 v5, 2, v1
    v_mul_u32_u24 v5, 2304, v5
    v_add_u32 v5, 64, v5
    s_cmp_eq_u32 s31, 4
    s_cselect_b64 s[54:55], -1, 0
    v_cndmask_b32 v4, v4, v5, s[54:55]
    s_mul_i32 s40, s22, 144
    s_add_u32 s40, s40, {WS_CS}
    buffer_load_dwordx4 {vr(CSQ,4)}, v4, s[4:7], s40 offen
    buffer_load_dwordx4 {vr(CSQ+4,4)}, v4, s[4:7], s40 offen offset:80
    s_lshl_b32 s41, s60, 8
    s_add_u32 s41, s41, s61
    s_waitcnt lgkmcnt(0)
    v_readfirstlane_b32 s40, v8
    s_cmp_eq_u32 s40, s41
    s_cbranch_scc1 L_mega_go
    s_lshr_b32 s60, s40, 8
    s_and_b32 s61, s40, 31
    s_and_b32 s60, s60, 7
    s_waitcnt vmcnt(0)
    s_barrier
    s_branch L_mega_restart
    L_mega_go:
    """)
    mstamp(a, 4)
    a(f"""
    s_cmp_ge_u32 s25, 192
    s_cbranch_scc1 L_mega_noconv
    """)
    conv_main(a)
    mstamp(a, 12)
    a(f"""
    s_lshl_b32 s44, s25, 2
    s_add_u32 s44, s44, {WS_FL + FL_Y}
    s_waitcnt vmcnt(0)
    """)
    signal(a, 0, 8, 44)
    a.label("L_mega_noconv")
    a("s_waitcnt vmcnt(0)")
    q_setup(a)
    a("s_branch L_mega_q")
    a.label("L_mega_layer")
    mstamp(a, 0)
    q_setup(a)
    a(f"""
    s_cmp_eq_u32 s31, 4
    s_cselect_b32 s45, s45, s44
    v_and_b32 v1, 15, v2
    v_lshlrev_b32 v1, 2, v1
    v_mov_b32 v8, s44
    v_mov_b32 v9, s45
    v_cndmask_b32 v8, v9, v8, s[52:53]
    v_add_u32 v1, v1, v8
    s_mov_b32 s44, {WS_FL + FL_X}
    """)
    poll(a, 1, 44)
    mstamp(a, 4)
    a(f"""
    s_cmp_eq_u32 s31, 4
    s_cbranch_scc1 L_mega_pre1_m
    """)
    q_pre(a, False)
    a("s_branch L_mega_q")
    a.label("L_mega_pre1_m")
    q_pre(a, True)
    a.label("L_mega_q")
    a(f"""
    s_cmp_lt_u32 s3, 2
    s_cbranch_scc1 L_q_n5
    s_cmp_eq_u32 s31, 4
    s_cbranch_scc1 L_q_m
    """)
    q_variant(a, 2, False, False)
    a("s_branch L_q_join")
    a.label("L_q_n5")
    q_variant(a, 2, True, False)
    a("s_branch L_q_join")
    a.label("L_q_m")
    q_variant(a, 1, True, True)
    a.label("L_q_join")
    a(f"""
    s_waitcnt vmcnt(0)
    s_mov_b32 s42, 0x40000
    L_mega_mode:
    v_readfirstlane_b32 s40, v90
    v_readfirstlane_b32 s62, v91
    s_cmp_eq_u32 s40, -1
    s_cbranch_scc1 L_mega_mode_ok
    s_sub_u32 s42, s42, 1
    s_cbranch_scc1 L_mega_mode_ok
    s_lshl_b32 s40, s60, 7
    s_add_u32 s40, s40, {WS_FL + FL_CL}
    v_mov_b32 v89, 0
    buffer_load_dwordx2 v[90:91], v89, s[4:7], s40 offen sc1
    s_waitcnt vmcnt(0)
    s_branch L_mega_mode
    L_mega_mode_ok:
    s_waitcnt lgkmcnt(0)
    s_barrier
    """)
    mstamp(a, 7)
    a(f"""
    s_cmp_ge_u32 s3, 4
    s_cbranch_scc1 L_mega_p
    """)
    attention(a)
    a.label("L_mega_p")
    mstamp(a, 13)
    p_phase(a)
    mstamp_dump(a)
    a(f"""
    s_mov_b32 s20, 1
    s_mov_b32 s26, {WS_X2}
    s_mov_b32 s27, {WS_ST + 2*ST3_SZ}
    s_mov_b32 s28, {WS_O1}
    s_mov_b32 s29, {WS_ST + 3*ST3_SZ}
    s_branch L_mega_layer
    """)
    a.label("L_mega_final")
    p_final(a)
    mstamp_dump(a)
    a.label("L_mega_end")
    a("s_endpgm")
    return dict(name=name, vgpr=256, accum=112, grid=256, block=512, lds=MEGA_LDS)
```

```python
from gen_common import *
from k_prep import round_pairs, unpack8
from k_qkv import xlane_sum
from m4_common import *

NG = 288; NWQ = 144; NWO = 72; NX = 64; NCS = 54
B_WQ = NG; B_WO = B_WQ + NWQ; B_X = B_WO + NWO; B_CS = B_X + NX; NPREP2 = B_CS + NCS

def slot_k(a, dst, slot, t):
    a(f"""
    v_and_b32 v{dst}, 0x38, v{slot}
    v_and_b32 v{t}, 1, v{slot}
    v_lshl_add_u32 v{dst}, v{t}, 2, v{dst}
    v_bfe_u32 v{t}, v{slot}, 1, 2
    v_add_u32 v{dst}, v{dst}, v{t}
    """)

def tr_rowbase(a, dst, t, rowb):
    a(f"""
    v_lshrrev_b32 v{dst}, 4, v2
    v_lshlrev_b32 v{dst}, 3, v{dst}
    v_bfe_u32 v{t}, v2, 2, 2
    v_lshl_add_u32 v{dst}, v{t}, 1, v{dst}
    s_and_b32 s40, s3, 1
    s_lshl_b32 s40, s40, 5
    v_add_u32 v{dst}, s40, v{dst}
    v_mul_u32_u24 v{dst}, {rowb}, v{dst}
    """)

def gen_prep4(a, name="prep_kernel"):
    kernel_head(a, name)
    a(f"""
    s_cmp_ge_u32 s2, {NPREP2}
    s_cbranch_scc1 L_prep_end
    """)
    stamp(a, 0)
    a(f"""
    s_load_dwordx2 s[4:5], s[0:1], {KA_K}
    s_load_dwordx2 s[6:7], s[0:1], {KA_V}
    s_load_dwordx2 s[8:9], s[0:1], {KA_SHK}
    s_load_dwordx2 s[10:11], s[0:1], {KA_X}
    s_load_dwordx2 s[12:13], s[0:1], {KA_WS}
    s_load_dwordx2 s[14:15], s[0:1], {KA_WQKV}
    s_load_dwordx2 s[46:47], s[0:1], {KA_WO}
    v_lshrrev_b32 v1, 6, v0
    v_and_b32 v2, 63, v0
    s_nop 0
    v_readfirstlane_b32 s3, v1
    s_waitcnt lgkmcnt(0)
    s_cmp_ge_u32 s2, {B_CS}
    s_cbranch_scc1 L_prep_cs
    s_cmp_ge_u32 s2, {B_X}
    s_cbranch_scc1 L_prep_x
    s_cmp_ge_u32 s2, {B_WO}
    s_cbranch_scc1 L_prep_wo
    s_cmp_ge_u32 s2, {B_WQ}
    s_cbranch_scc1 L_prep_wq
    """)
    srd(a, 16, 4, XB)
    srd(a, 20, 6, XB)
    srd(a, 24, 8, 576 * 8)
    srd(a, 28, 12, WS_G_SZ, WS_G)
    a("""
    s_mul_i32 s32, s2, 7282
    s_lshr_b32 s32, s32, 16
    s_mul_i32 s33, s32, 9
    s_sub_u32 s33, s2, s33
    s_lshl_b32 s34, s32, 6
    s_lshl_b32 s35, s33, 6
    v_and_b32 v1, 7, v0
    v_lshrrev_b32 v2, 3, v0
    """)
    a("""
    v_lshl_add_u32 v3, v2, 1, s34
    v_lshlrev_b32 v4, 3, v1
    v_add_u32 v4, s35, v4
    v_lshlrev_b32 v5, 3, v4
    v_lshlrev_b32 v4, 1, v4
    s_movk_i32 s36, 1152
    v_mul_lo_u32 v6, v3, s36
    v_add_u32 v6, v6, v4
    """)
    for i in range(6):
        a(f"v_add_u32 v{8+i}, {(i-4)*1152 & 0xffffffff:#x}, v6")
    vm = Cnt(a, "vmcnt", 63)
    KR = 16
    for i in range(1, 6):
        vm.issue(f"buffer_load_dwordx4 {vr(KR+4*i,4)}, v{8+i}, s[16:19], 0 offen")
    VR = 40
    for i in range(1, 3):
        vm.issue(f"buffer_load_dwordx4 {vr(VR+4*i,4)}, v{11+i}, s[20:23], 0 offen")
    WR = 52
    for i in range(4):
        vm.issue(f"buffer_load_dwordx4 {vr(WR+4*i,4)}, v5, s[24:27], 0 offen offset:{16*i}")
    vm.issue(f"buffer_load_dwordx4 {vr(KR,4)}, v8, s[16:19], 0 offen")
    vm.issue(f"buffer_load_dwordx4 {vr(VR,4)}, v11, s[20:23], 0 offen")
    WU = 68; KU = 100; P = 148; A_ = 156; VU = 164; TMP = [172, 173, 174, 175]; RES = [176, 184]
    vm.wait(rset(WR, 16))
    for i in range(16):
        a(f"v_lshlrev_b32 v{WU+2*i}, 16, v{WR+i}")
        a(f"v_and_b32 v{WU+2*i+1}, 0xffff0000, v{WR+i}")
    for i in range(1, 6):
        unpack8(a, KU + 8 * i, KR + 4 * i)
    def row(ki, vraw, res):
        for e in range(8):
            a(f"v_mul_f32 v{A_+e}, v{KU+8*(ki-3)+e}, v{WU+4*e+3}")
        round_pairs(a, [A_ + e for e in range(8)], TMP)
        for tap in (2, 1, 0):
            for e in range(8):
                a(f"v_mul_f32 v{P+e}, v{KU+8*(ki-tap)+e}, v{WU+4*e+tap}")
            round_pairs(a, [P + e for e in range(8)], TMP)
            for e in range(8):
                a(f"v_add_f32 v{A_+e}, v{A_+e}, v{P+e}")
            round_pairs(a, [A_ + e for e in range(8)], TMP)
        unpack8(a, VU, vraw)
        for e in range(8):
            a(f"v_mul_f32 v{res+e}, v{A_+e}, v{VU+e}")
    row(4, VR + 4, RES[0])
    row(5, VR + 8, RES[1])
    a("""
    v_mul_u32_u24 v7, 1056, v1
    v_lshlrev_b32 v14, 2, v2
    v_sub_u32 v14, 124, v14
    v_add_u32 v7, v7, v14
    """)
    for e in range(8):
        t = TMP[e % 4]
        a(f"v_cvt_pk_bf16_f32 v{t}, v{RES[1]+e}, v{RES[0]+e}")
        a(f"ds_write_b32 v7, v{t} offset:{132*e}")
    a("""
    v_cmp_gt_u32 vcc, 8, v0
    s_and_saveexec_b64 s[40:41], vcc
    s_cbranch_execz L_prep_nohalo
    """)
    a("s_waitcnt vmcnt(0)")
    unpack8(a, KU, KR)
    row(3, VR, RES[0])
    a("v_mul_u32_u24 v7, 1056, v1")
    for e in range(8):
        t = TMP[e % 4]
        a(f"v_cvt_pk_bf16_f32 v{t}, v{RES[0]+e}, v{RES[0]+e}")
        a(f"ds_write_b16 v7, v{t} offset:{132*e+128}")
    a.label("L_prep_nohalo")
    a("""
    s_mov_b64 exec, s[40:41]
    s_waitcnt vmcnt(0) lgkmcnt(0)
    s_barrier
    """)
    a(f"""
    v_mul_u32_u24 v7, 132, v2
    v_lshl_add_u32 v7, v1, 4, v7
    v_add_u32 v8, s35, v2
    s_movk_i32 s36, {2*GS}
    v_mul_lo_u32 v8, v8, s36
    s_sub_u32 s37, 1984, s34
    s_lshl_b32 s37, s37, 1
    v_lshl_add_u32 v8, v1, 4, v8
    v_add_u32 v8, s37, v8
    v_add_u32 v9, {32*2*GS}, v8
    """)
    for p in range(2):
        b = 16 + 16 * p
        o = 32 * 132 * p
        a(f"ds_read2_b32 v[{b}:{b+1}], v7 offset0:{0} offset1:{1}" if p == 0 else f"v_add_u32 v7, {o}, v7")
        if p == 1:
            a(f"ds_read2_b32 v[{b}:{b+1}], v7 offset0:0 offset1:1")
        a(f"ds_read2_b32 v[{b+2}:{b+3}], v7 offset0:2 offset1:3")
        a(f"ds_read_b32 v{b+4}, v7 offset:16")
    a("s_waitcnt lgkmcnt(0)")
    for p in range(2):
        b = 16 + 16 * p
        for i in range(4):
            a(f"v_alignbit_b32 v{b+8+i}, v{b+i+1}, v{b+i}, 16")
        a(f"buffer_store_dwordx4 v[{b}:{b+3}], v{8+p}, s[28:31], 0 offen")
        a(f"v_add_u32 v10, {GS}, v{8+p}")
        a(f"buffer_store_dwordx4 v[{b+8}:{b+11}], v10, s[28:31], 0 offen")
    a(f"""
    s_cmp_lg_u32 s34, 0
    s_cbranch_scc1 L_prep_fin
    v_cmp_gt_u32 vcc, 128, v0
    s_and_saveexec_b64 s[40:41], vcc
    s_cbranch_execz L_prep_fin
    v_lshrrev_b32 v1, 1, v0
    v_add_u32 v1, s35, v1
    v_lshlrev_b32 v1, 1, v1
    v_and_b32 v2, 1, v0
    v_add_u32 v1, v1, v2
    s_movk_i32 s36, {GS}
    v_mul_lo_u32 v1, v1, s36
    v_add_u32 v1, 4096, v1
    v_mov_b32 v4, 0
    v_mov_b32 v5, 0
    v_mov_b32 v6, 0
    v_mov_b32 v7, 0
    buffer_store_dwordx4 v[4:7], v1, s[28:31], 0 offen
    s_branch L_prep_fin
    """)

    a.label("L_prep_wq")
    srd(a, 16, 14, 576 * 3456)
    srd(a, 20, 12, WQ_SZ, WS_WQ)
    a(f"""
    s_sub_u32 s32, s2, {B_WQ}
    s_and_b32 s33, s32, 15
    s_lshr_b32 s34, s32, 4
    s_mul_i32 s37, s33, 72
    s_mul_i32 s38, s34, {64*3456}
    s_add_u32 s37, s37, s38
    """)
    for m in range(4):
        a(f"""
        s_add_u32 s40, s3, {4*m}
        s_min_u32 s40, s40, 14
        s_lshl_b32 s41, s40, 10
        s_lshl_b32 s40, s40, 6
        v_add_u32 v8, s40, v2
        v_mul_u32_u24 v9, 4370, v8
        v_lshrrev_b32 v9, 16, v9
        v_mul_u32_u24 v10, 15, v9
        v_sub_u32 v10, v8, v10
        v_mul_u32_u24 v11, 52, v10
        v_lshrrev_b32 v11, 8, v11
        v_mul_u32_u24 v12, 5, v11
        v_sub_u32 v12, v10, v12
        """)
        slot_k(a, 13, 9, 14)
        a(f"""
        v_mul_u32_u24 v13, 3456, v13
        v_mul_u32_u24 v11, 1152, v11
        v_lshl_add_u32 v12, v12, 4, v11
        v_add_u32 v4, v13, v12
        s_mov_b32 m0, s41
        s_nop 0
        buffer_load_dwordx4 v4, s[16:19], s37 offen lds
        """)
    tr_rowbase(a, 8, 9, 240)
    a(f"""
    v_and_b32 v9, 3, v2
    v_lshlrev_b32 v10, 3, v9
    v_mul_u32_u24 v11, 80, v9
    v_add_u32 v11, 32, v11
    v_cmp_eq_u32 vcc, 3, v9
    v_mov_b32 v12, 72
    v_cndmask_b32 v11, v11, v12, vcc
    s_cmp_lt_u32 s3, 2
    s_cselect_b64 s[42:43], -1, 0
    s_movk_i32 s50, 200
    s_cselect_b32 s44, 40, 160
    s_cselect_b32 s45, 80, s50
    s_cselect_b32 s48, 120, s50
    v_cndmask_b32 v11, v11, v10, s[42:43]
    v_add_u32 v10, v10, v8
    v_add_u32 v16, v11, v8
    v_add_u32 v17, s44, v10
    v_add_u32 v18, s45, v10
    v_add_u32 v19, s48, v10
    s_mul_i32 s40, s33, 18
    s_lshl_b32 s41, s34, 1
    s_add_u32 s40, s40, s41
    s_and_b32 s41, s3, 1
    s_add_u32 s40, s40, s41
    s_mul_i32 s40, s40, 7
    s_lshr_b32 s41, s3, 1
    s_lshl_b32 s41, s41, 2
    s_add_u32 s40, s40, s41
    s_lshl_b32 s40, s40, 10
    s_cmp_lt_u32 s3, 2
    s_movk_i32 s50, 2048
    s_cselect_b32 s49, 3072, s50
    s_add_u32 s49, s49, s40
    v_lshlrev_b32 v3, 4, v2
    s_waitcnt vmcnt(0)
    s_barrier
    """)
    for f in range(4):
        a(f"ds_read_b64_tr_b16 v[{24+4*f}:{25+4*f}], v{16+f}")
        a(f"ds_read_b64_tr_b16 v[{26+4*f}:{27+4*f}], v{16+f} offset:240")
    for f in range(4):
        a(f"s_waitcnt lgkmcnt({6-2*f})")
        if f < 3: a(f"buffer_store_dwordx4 v[{24+4*f}:{27+4*f}], v3, s[20:23], s40 offen offset:{1024*f}")
        else: a(f"buffer_store_dwordx4 v[{24+4*f}:{27+4*f}], v3, s[20:23], s49 offen")
    a("s_branch L_prep_fin")
    a.label("L_prep_wo")
    srd(a, 16, 46, 576 * 1152)
    srd(a, 20, 12, WO_SZ, WS_WO)
    a(f"""
    s_sub_u32 s32, s2, {B_WO}
    s_and_b32 s33, s32, 7
    s_lshr_b32 s34, s32, 3
    s_mul_i32 s37, s33, 144
    """)
    for m in range(3):
        a(f"""
        s_add_u32 s40, s3, {4*m}
        s_min_u32 s40, s40, 8
        s_lshl_b32 s41, s40, 10
        s_lshl_b32 s40, s40, 6
        v_add_u32 v8, s40, v2
        v_mul_u32_u24 v9, 7282, v8
        v_lshrrev_b32 v9, 16, v9
        v_mul_u32_u24 v10, 9, v9
        v_sub_u32 v10, v8, v10
        """)
        slot_k(a, 13, 9, 14)
        a(f"""
        s_lshl_b32 s42, s34, 6
        v_add_u32 v13, s42, v13
        v_mul_u32_u24 v14, 911, v13
        v_lshrrev_b32 v14, 16, v14
        v_mul_u32_u24 v14, 72, v14
        v_sub_u32 v14, v13, v14
        v_mov_b32 v15, 0
        v_mov_b32 v11, -4
        v_cmp_gt_u32 vcc, 56, v14
        v_cndmask_b32 v15, v15, v11, vcc
        v_mov_b32 v11, 16
        v_cmp_gt_u32 vcc, 40, v14
        v_cndmask_b32 v15, v15, v11, vcc
        v_mov_b32 v11, -16
        v_cmp_gt_u32 vcc, 36, v14
        v_cndmask_b32 v15, v15, v11, vcc
        v_mov_b32 v11, 4
        v_cmp_gt_u32 vcc, 32, v14
        v_cndmask_b32 v15, v15, v11, vcc
        v_cmp_gt_u32 vcc, 16, v14
        v_cndmask_b32 v15, v15, 0, vcc
        v_add_u32 v13, v13, v15
        v_mul_u32_u24 v13, 1152, v13
        v_lshl_add_u32 v4, v10, 4, v13
        s_mov_b32 m0, s41
        s_nop 0
        buffer_load_dwordx4 v4, s[16:19], s37 offen lds
        """)
    tr_rowbase(a, 8, 9, 144)
    a(f"""
    v_and_b32 v9, 3, v2
    v_lshl_add_u32 v8, v9, 3, v8
    s_cmp_lt_u32 s3, 2
    s_cselect_b32 s44, 0, 96
    s_cselect_b32 s45, 64, 128
    v_add_u32 v16, s44, v8
    v_add_u32 v18, s45, v8
    s_mul_i32 s40, s33, 18
    s_lshl_b32 s41, s34, 1
    s_add_u32 s40, s40, s41
    s_and_b32 s41, s3, 1
    s_add_u32 s40, s40, s41
    s_mul_i32 s40, s40, 4608
    v_lshlrev_b32 v3, 4, v2
    v_lshrrev_b32 v5, 4, v2
    v_and_b32 v6, 7, v2
    v_lshl_add_u32 v5, v5, 3, v6
    v_lshlrev_b32 v5, 4, v5
    s_waitcnt vmcnt(0)
    s_barrier
    ds_read_b64_tr_b16 v[24:25], v16
    ds_read_b64_tr_b16 v[26:27], v16 offset:144
    ds_read_b64_tr_b16 v[28:29], v16 offset:32
    ds_read_b64_tr_b16 v[30:31], v16 offset:176
    ds_read_b64_tr_b16 v[32:33], v18
    ds_read_b64_tr_b16 v[34:35], v18 offset:144
    s_cmp_lt_u32 s3, 2
    s_cbranch_scc0 L_prep_wo_hi
    s_waitcnt lgkmcnt(4)
    buffer_store_dwordx4 v[24:27], v3, s[20:23], s40 offen
    s_waitcnt lgkmcnt(2)
    buffer_store_dwordx4 v[28:31], v3, s[20:23], s40 offen offset:1024
    s_waitcnt lgkmcnt(0)
    buffer_store_dwordx4 v[32:35], v3, s[20:23], s40 offen offset:2048
    s_branch L_prep_fin
    L_prep_wo_hi:
    s_add_u32 s41, s40, 4096
    s_mov_b32 s42, 0x00ff00ff
    s_mov_b32 s43, 0x00ff00ff
    s_waitcnt lgkmcnt(4)
    buffer_store_dwordx4 v[24:27], v3, s[20:23], s40 offen offset:3072
    s_waitcnt lgkmcnt(2)
    s_mov_b64 exec, s[42:43]
    buffer_store_dwordx4 v[28:31], v5, s[20:23], s41 offen
    s_branch L_prep_fin
    """)
    a.label("L_prep_x")
    srd(a, 16, 10, XB)
    srd(a, 20, 12, XB, WS_XF)
    srd(a, 24, 12, 4 * ST3_SZ, WS_ST)
    a(f"""
    s_sub_u32 s32, s2, {B_X}
    s_lshl_b32 s32, s32, 1
    s_lshr_b32 s33, s3, 1
    s_add_u32 s32, s32, s33
    s_and_b32 s33, s3, 1
    v_and_b32 v4, 7, v2
    v_bfe_u32 v5, v2, 3, 1
    v_lshl_add_u32 v4, v4, 1, v5
    v_mul_u32_u24 v4, 1152, v4
    v_lshrrev_b32 v5, 4, v2
    v_lshl_add_u32 v4, v5, 4, v4
    s_mul_i32 s34, s32, {TILEB}
    s_mul_i32 s35, s33, 576
    s_add_u32 s35, s35, s34
    s_mul_i32 s36, s33, 9216
    s_add_u32 s36, s36, s34
    v_lshlrev_b32 v3, 4, v2
    """)
    for j in range(9):
        a(f"buffer_load_dwordx4 {vr(8+4*j,4)}, v4, s[16:19], s35 offen offset:{64*j}")
    a(f"""
    v_mov_b32 v48, -1
    v_mov_b32 v49, -1
    v_mov_b32 v50, -1
    v_mov_b32 v51, -1
    s_lshl_b32 s37, s32, 11
    s_mul_i32 s38, s33, {2*ST3_SZ}
    s_add_u32 s38, s38, s37
    s_add_u32 s38, s38, {ST3_SZ}
    buffer_store_dwordx4 v[48:51], v3, s[24:27], s38 offen
    buffer_store_dwordx4 v[48:51], v3, s[24:27], s38 offen offset:1024
    v_mov_b32 v6, 0
    v_mov_b32 v7, 0
    s_mov_b32 s39, 0x3f803f80
    v_lshlrev_b32 v52, 4, v5
    v_xor_b32 v52, v52, v3
    s_lshl_b32 s40, s33, 6
    v_xor_b32 v52, s40, v52
    v_xor_b32 v53, 64, v52
    """)
    for j in range(9):
        a(f"s_waitcnt vmcnt({10})")
        if j % 4 == 0 and j: a(f"s_add_u32 s36, s36, 4096")
        a(f"buffer_store_dwordx4 {vr(8+4*j,4)}, v{52+(j&1)}, s[20:23], s36 offen offset:{1024*(j%4)}")
        for i in range(4):
            r = 8 + 4 * j + i
            a(f"v_dot2_f32_bf16 v6, v{r}, s39, v6")
            a(f"v_dot2_f32_bf16 v7, v{r}, v{r}, v7")
    xlane_sum(a, [6, 7], 44)
    a(f"""
    v_cmp_gt_u32 vcc, 16, v2
    v_cndmask_b32 v6, 0, v6, vcc
    v_cndmask_b32 v7, 0, v7, vcc
    v_mov_b32 v8, 0
    v_mov_b32 v9, 0
    s_lshl_b32 s38, s33, 10
    s_add_u32 s38, s38, s37
    buffer_store_dwordx4 v[6:9], v3, s[24:27], s38 offen
    s_branch L_prep_fin
    """)
    a.label("L_prep_cs")
    srd(a, 16, 14, 576 * 3456)
    srd(a, 20, 12, 1728 * 4, WS_CS)
    a(f"""
    s_sub_u32 s32, s2, {B_CS}
    s_lshl_b32 s33, s32, 6
    v_and_b32 v4, 3, v0
    v_lshrrev_b32 v5, 2, v0
    v_mul_u32_u24 v5, 3456, v5
    v_lshl_add_u32 v5, v4, 4, v5
    """)
    srd(a, 24, 12, FL_SZ, WS_FL)
    a(f"""
    v_mov_b32 v48, 0
    v_mov_b32 v49, 0
    v_mov_b32 v50, 0
    v_mov_b32 v51, 0
    v_lshlrev_b32 v6, 4, v0
    s_lshl_b32 s34, s32, 12
    buffer_store_dwordx4 v[48:51], v6, s[24:27], s34 offen
    """)
    for j in range(9):
        a(f"s_add_u32 s34, s33, {j*64*3456}")
        a(f"buffer_load_dwordx4 {vr(8+4*j,4)}, v5, s[16:19], s34 offen")
    a("""
    s_mov_b32 s36, 0x3f80
    s_mov_b32 s37, 0x3f800000
    """)
    for j in range(9):
        a(f"s_waitcnt vmcnt({8-j})")
        for i in range(4):
            for h in range(2):
                cin = "0" if j == 0 else f"v{48+2*i+h}"
                a(f"v_dot2_f32_bf16 v{48+2*i+h}, v{8+4*j+i}, s{36+h}, {cin}")
    for sh in (4, 8):
        for e in range(8):
            a(f"v_add_f32_dpp v{48+e}, v{48+e}, v{48+e} row_shr:{sh} row_mask:0xf bank_mask:0xf bound_ctrl:0")
    xlane_sum(a, [48 + e for e in range(8)], 56)
    a(f"""
    s_lshl_b32 s34, s3, 7
    v_lshlrev_b32 v6, 5, v4
    v_add_u32 v6, s34, v6
    s_mov_b32 s42, 0xf000
    s_mov_b32 s43, 0
    s_mov_b64 exec, s[42:43]
    ds_write_b128 v6, v[48:51]
    ds_write_b128 v6, v[52:55] offset:16
    s_mov_b64 exec, -1
    v_lshlrev_b32 v6, 2, v2
    s_waitcnt lgkmcnt(0)
    s_barrier
    s_cmp_lg_u32 s3, 0
    s_cbranch_scc1 L_prep_fin
    ds_read_b32 v8, v6
    ds_read_b32 v9, v6 offset:128
    ds_read_b32 v10, v6 offset:256
    ds_read_b32 v11, v6 offset:384
    s_lshl_b32 s33, s32, 7
    s_mov_b32 s42, -1
    s_waitcnt lgkmcnt(0)
    v_add_f32 v8, v8, v9
    v_add_f32 v10, v10, v11
    v_add_f32 v8, v8, v10
    s_mov_b64 exec, s[42:43]
    buffer_store_dword v8, v6, s[20:23], s33 offen
    """)
    a.label("L_prep_fin")
    stamp_end(a, 0, 1)
    a.label("L_prep_end")
    a("s_endpgm")
    return dict(name=name, vgpr=192, grid=NPREP2, block=256, lds=15360 + 64)
```

```python
import sys
from gen_common import *
from gen import build
from k4_prep import gen_prep4
from k4_mega import gen_mega

if __name__ == "__main__":
    out = sys.argv[1] if len(sys.argv) > 1 else "cdna_kernels/" + NAME + ".s"
    build([gen_prep4, gen_mega], ["prep_kernel", "mega_kernel"], out)
```

```python
from k5_base import *
from k5_conv import conv_flag

YR = 80
RES = 100
VRM = 110
VYF, VYA = 78, 79
PROF2 = int(os.environ.get('PROF2', '0'))
LANE32 = "s[50:51]"

def astamp(a, k):
    if not PROF: return
    a(f"s_lshl_b32 s41, s32, 3")
    a(f"s_add_u32 s41, s41, {32 + k}")
    stamp5(a, "s41")

def slot_of(a, sd, sz, add):
    a(f"""
    s_add_u32 s40, s{sz}, {add}
    s_mul_i32 s41, s40, 205
    s_lshr_b32 s41, s41, 10
    s_mul_i32 s41, s41, 5
    s_sub_u32 s40, s40, s41
    s_mul_i32 s40, s40, {STGS}
    s_add_u32 s{sd}, s40, {L_STG}
    """)

def byte_wait(a, vaddr, t, val="s49"):
    L = newlab("bw"); X = newlab("bwx")
    a(f"""
    {L}:
    ds_read_b32 v{t}, v{vaddr}
    s_waitcnt lgkmcnt(0)
    v_readfirstlane_b32 s40, v{t}
    s_cmp_eq_u32 s40, {val}
    s_cbranch_scc1 {X}
    """)
    budget(a, X)
    a(f"s_branch {L}")
    a.label(X)

def wo_load(a):
    a(f"""
    s_cmp_lt_u32 s21, 24
    s_cselect_b32 s42, 4, 1
    """)
    lds_wait(a, C_CVD, "s42", 8)
    a(f"""
    s_mul_i32 s40, s24, {WOQ_CG}
    s_mul_i32 s41, s31, 27648
    s_add_u32 s40, s40, s41
    s_add_u32 s40, s40, {W5_WOQ}
    s_mov_b32 m0, s41
    """)
    for i in range(27):
        if i and i % 4 == 0:
            a("s_add_u32 s41, s41, 4096")
            a("s_add_u32 s40, s40, 4096")
            a("s_mov_b32 m0, s41")
        a(f"buffer_load_dwordx4 v3, s[4:7], s40 offen offset:{1024*(i&3)}{BSC} lds")

def y_loads(a, vm=None):
    a(f"""
    v_lshrrev_b32 v{VYA}, 4, v2
    v_lshlrev_b32 v{VYA}, 9, v{VYA}
    v_and_b32 v{VYF}, 15, v2
    v_lshl_add_u32 v{VYA}, v{VYF}, 1, v{VYA}
    s_add_u32 s42, s17, 4096
    s_add_u32 s43, s17, 8192
    """)
    for t in range(5):
        if t == 4: a(f"s_mov_b64 exec, {LANE32}")
        for r in range(4):
            so = (17, 42, 43)[t >> 1]
            tx = f"buffer_load_short_d16_hi v{YR+4*t+r}, v{VYA}, s[4:7], s{so} offen offset:{(16*(t&1)+r)*128}{BSC}"
            if vm: vm.issue(tx)
            else: a(tx)
    a("s_mov_b64 exec, -1")

def attention(a):
    lg = Cnt(a, "lgkmcnt", 15)
    Q = 8; KV = 18; S_ = 48; T = 60; P = 68; O = 48; PK = 8
    B = (5, 6, 7); A = (74, 75, 76)
    V = (5, 6, 7); VQ = (74, 75, 76)
    slot_of(a, 12, 38, 0); slot_of(a, 13, 38, 1); slot_of(a, 14, 38, 2)
    a(f"""
    v_mov_b32 v8, s12
    v_mov_b32 v9, s13
    v_mov_b32 v10, s14
    v_cndmask_b32 v11, v8, v9, s[52:53]
    v_cndmask_b32 v12, v9, v10, s[52:53]
    v_and_b32 v13, 15, v2
    v_mul_u32_u24 v13, {RS}, v13
    v_add_u32 v{A[2]}, v11, v13
    v_add_u32 v{A[0]}, v12, v13
    v_subrev_u32 v13, {4*RS}, v{A[2]}
    v_add_u32 v14, {4*RS}, v{A[0]}
    v_cndmask_b32 v{A[1]}, v14, v13, s[60:61]
    v_and_b32 v13, 32, v2
    v_add_u32 v{B[0]}, v13, v{A[0]}
    v_add_u32 v{B[1]}, v13, v{A[1]}
    v_add_u32 v{B[2]}, v13, v{A[2]}
    v_and_b32 v13, 3, v2
    v_bfe_u32 v14, v2, 2, 2
    v_lshl_add_u32 v13, v13, 2, v14
    v_mul_u32_u24 v13, {RS}, v13
    v_add_u32 v73, v11, v13
    v_add_u32 v71, v12, v13
    v_subrev_u32 v13, {4*RS}, v73
    v_add_u32 v14, {4*RS}, v71
    v_cndmask_b32 v72, v14, v13, s[62:63]
    v_add_u32 v77, s38, v2
    v_add_u32 v77, 5, v77
    v_cmp_le_u32 vcc, 9, v77
    v_subb_co_u32 v13, vcc, v77, 0, vcc
    v_cmp_eq_u32 vcc, 8, v77
    v_cndmask_b32 v13, v13, 20, vcc
    v_lshl_add_u32 v77, v13, 2, v{VM}
    s_sub_u32 s40, s38, s32
    s_min_u32 s41, s31, 1
    s_add_u32 s40, s40, s41
    s_add_u32 s40, s40, {1 + C_QD}
    v_mov_b32 v13, s40
    v_lshl_add_u32 v13, v13, 2, v{VM}
    v_and_b32 v4, 4, v2
    v_cndmask_b32 v14, 8, 0, s[52:53]
    v_add_u32 v4, v4, v14
    """)
    a(f"""
    s_cmp_lg_u32 s31, 0
    s_cbranch_scc1 L5_nhr
    s_lshl_b32 s40, s32, 4
    s_sub_u32 s40, {4*(C_FR+20)}, s40
    v_add_u32 v14, s40, v{VM}
    """)
    byte_wait(a, 14, 15, "2")
    a(f"""
    s_cmp_lg_u32 s23, 0
    s_cbranch_scc1 L5_hr1
    v_mov_b32 v16, 0
    v_mov_b32 v17, 0
    v_mov_b32 v18, 0
    v_mov_b32 v19, 0
    v_add_u32 v14, s14, v3
    ds_write_b128 v14, v[16:19]
    ds_write_b128 v14, v[16:19] offset:1024
    ds_write_b128 v14, v[16:19] offset:2048
    s_mov_b32 exec_hi, 0xffff
    ds_write_b128 v14, v[16:19] offset:3072
    s_mov_b64 exec, -1
    s_branch L5_nhr
    L5_hr1:
    s_sub_u32 s43, s15, {16*4096}
    v_mov_b32 v14, 0
    """)
    vpoll(a, 14, 43, 15, imm=HL_FLAG)
    a(f"""
    s_mov_b32 m0, s14
    s_nop 0
    buffer_load_dwordx4 v3, s[4:7], s43 offen{BSC} lds
    buffer_load_dwordx4 v3, s[4:7], s43 offen offset:1024{BSC} lds
    buffer_load_dwordx4 v3, s[4:7], s43 offen offset:2048{BSC} lds
    s_mov_b32 exec_hi, 0xffff
    buffer_load_dwordx4 v3, s[4:7], s43 offen offset:3072{BSC} lds
    s_mov_b64 exec, -1
    s_waitcnt vmcnt(0)
    L5_nhr:
    s_cmp_lg_u32 s32, 0
    s_cbranch_scc1 L5_nyp
    s_mov_b32 exec_lo, 0xffffff
    s_mov_b32 exec_hi, 0
    buffer_load_dword v{VYF}, v{VYA}, s[4:7], 0 offen sc1
    s_mov_b64 exec, -1
    L5_nyp:
    """)
    byte_wait(a, 13, 15)
    astamp(a, 0)
    lg.issue(f"ds_read_b128 {vr(Q,4)}, v{B[2]}")
    for c in range(3): lg.issue(f"ds_read_b128 {vr(KV+10*c,4)}, v{B[c]} offset:64")
    lg.issue(f"ds_read_b128 {vr(Q+4,4)}, v{B[2]} offset:16")
    for c in range(3): lg.issue(f"ds_read_b128 {vr(KV+10*c+4,4)}, v{B[c]} offset:80")
    lg.issue(f"ds_read_b64 {vr(Q+8,2)}, v{A[2]} offset:128")
    for c in range(3): lg.issue(f"ds_read_b64 {vr(KV+10*c+8,2)}, v{A[c]} offset:136")
    a(f"""
    v_lshrrev_b32 v70, 5, v2
    v_mul_u32_u24 v70, 40, v70
    v_add_u32 v{V[0]}, v70, v71
    v_add_u32 v{V[1]}, v70, v72
    v_add_u32 v{V[2]}, v70, v73
    v_mov_b32 v{VQ[0]}, v71
    v_mov_b32 v{VQ[1]}, v72
    v_mov_b32 v{VQ[2]}, v73
    """)
    for kk in range(5):
        if kk == 4:
            lg.wait(rset(Q + 8, 2))
            a(f"v_cndmask_b32 v{Q+8}, 0, v{Q+8}, {LANE32}")
            a(f"v_cndmask_b32 v{Q+9}, v{Q+9}, 0, {LANE32}")
        for c in range(3):
            lg.wait(rset(KV + 10 * c + 2 * kk, 2) | rset(Q + 2 * kk, 2))
            cin = "0" if kk == 0 else vr(S_ + 4 * c, 4)
            a(f"v_mfma_f32_4x4x4_16b_bf16 {vr(S_+4*c,4)}, {vr(KV+10*c+2*kk,2)}, {vr(Q+2*kk,2)}, {cin}")
    for c in range(3):
        for dg in range(5):
            if dg < 4: lg.issue(f"ds_read_b64_tr_b16 {vr(KV+6*dg+2*c,2)}, v{V[c]} offset:{144 + 8*dg}")
            else: lg.issue(f"ds_read_b64_tr_b16 {vr(KV+6*dg+2*c,2)}, v{VQ[c]} offset:176")
    masks = {1: 54, 2: 56, 3: 58}
    for m in (1, 2, 3):
        a(f"v_cndmask_b32 v{S_+m}, v{S_+m+8}, v{S_+m}, s[{masks[m]}:{masks[m]+1}]")
    lr = [S_ + i for i in range(1, 9)]
    TT = [T, T + 1, T + 2, T + 3]
    round_pairs(a, lr, TT)
    for r in lr: a(f"v_mul_f32 v{r}, {f2u(18 ** -0.5):#x}, v{r}")
    round_pairs(a, lr, TT)
    L = newlab("nomask")
    a(f"""
    s_or_b32 s40, s23, s31
    s_cmp_lg_u32 s40, 0
    s_cbranch_scc1 {L}
    v_mov_b32 v{T}, 0xce6e0000
    """)
    for m in (1, 2, 3):
        a(f"v_mov_b32 v{T+1}, {m+8}")
        a(f"v_mov_b32 v{T+2}, {m}")
        a(f"v_cndmask_b32 v{T+1}, v{T+1}, v{T+2}, s[{masks[m]}:{masks[m]+1}]")
        a(f"v_add_u32 v{T+1}, v{T+1}, v4")
        a(f"v_cmp_le_u32 vcc, 8, v{T+1}")
        a(f"v_cndmask_b32 v{S_+m}, v{T}, v{S_+m}, vcc")
    for sg in range(4, 8):
        a(f"v_cmp_le_u32 vcc, {8-sg}, v4")
        a(f"v_cndmask_b32 v{S_+sg}, v{T}, v{S_+sg}, vcc")
    a.label(L)
    a("s_nop 1")
    a(f"""
    v_max3_f32 v{T}, v{lr[0]}, v{lr[1]}, v{lr[2]}
    v_max3_f32 v{T+1}, v{lr[3]}, v{lr[4]}, v{lr[5]}
    v_max3_f32 v{T}, v{T}, v{lr[6]}, v{lr[7]}
    v_max_f32 v{T}, v{T}, v{T+1}
    """)
    for r in lr: a(f"v_sub_f32 v{r}, v{r}, v{T}")
    for r in lr: a(f"v_mul_f32 v{r}, {f2u(1.4426950408889634):#x}, v{r}")
    for r in lr: a(f"v_exp_f32 v{r}, v{r}")
    a(f"""
    v_add_f32 v{T}, v{lr[0]}, v{lr[1]}
    v_add_f32 v{T+1}, v{lr[2]}, v{lr[3]}
    v_add_f32 v{T+2}, v{lr[4]}, v{lr[5]}
    v_add_f32 v{T+3}, v{lr[6]}, v{lr[7]}
    v_add_f32 v{T}, v{T}, v{T+1}
    v_add_f32 v{T+2}, v{T+2}, v{T+3}
    v_add_f32 v{T}, v{T}, v{T+2}
    v_rcp_f32 v{T}, v{T}
    """)
    for r in lr: a(f"v_mul_f32 v{r}, v{r}, v{T}")
    for m in (1, 2, 3):
        a(f"v_cndmask_b32 v{S_+m+8}, v{S_+m}, 0, s[{masks[m]}:{masks[m]+1}]")
        a(f"v_cndmask_b32 v{S_+m}, 0, v{S_+m}, s[{masks[m]}:{masks[m]+1}]")
    a(f"v_cvt_pk_bf16_f32 v{P}, 0, v{S_+1}")
    for i in range(1, 6):
        a(f"v_cvt_pk_bf16_f32 v{P+i}, v{S_+2*i}, v{S_+2*i+1}")
    for c in range(3):
        for dg in range(5):
            lg.wait(rset(KV + 6 * dg + 2 * c, 2))
            cin = "0" if c == 0 else vr(O + 4 * dg, 4)
            a(f"v_mfma_f32_4x4x4_16b_bf16 {vr(O+4*dg,4)}, {vr(KV+6*dg+2*c,2)}, {vr(P+2*c,2)}, {cin}")
    a(f"""
    s_cmp_lg_u32 s31, 3
    s_cbranch_scc1 L5_nhs
    v_add_u32 v4, s12, v3
    ds_read_b128 v[18:21], v4
    ds_read_b128 v[22:25], v4 offset:1024
    ds_read_b128 v[26:29], v4 offset:2048
    ds_read_b128 v[30:33], v4 offset:3072
    s_waitcnt lgkmcnt(0)
    buffer_store_dwordx4 v[18:21], v3, s[4:7], s15 offen sc1
    buffer_store_dwordx4 v[22:25], v3, s[4:7], s15 offen offset:1024 sc1
    buffer_store_dwordx4 v[26:29], v3, s[4:7], s15 offen offset:2048 sc1
    s_mov_b32 exec_hi, 0xffff
    buffer_store_dwordx4 v[30:33], v3, s[4:7], s15 offen offset:3072 sc1
    L5_nhs:
    s_mov_b64 exec, 7
    v_cndmask_b32 v76, 1, 2, s[18:19]
    ds_add_u32 v77, v76 offset:{4*C_FR}
    s_mov_b64 exec, -1
    """)
    a(f"""
    v_and_b32 v5, 15, v2
    v_lshlrev_b32 v5, 4, v5
    v_add_u32 v6, 18432, v5
    v_cndmask_b32 v5, v6, v5, s[52:53]
    v_lshrrev_b32 v7, 5, v2
    v_lshl_add_u32 v6, v7, 9, v5
    v_lshl_add_u32 v5, v7, 2, v5
    s_lshl_b32 s40, s22, 10
    s_add_u32 s43, s33, s40
    s_lshr_b32 s40, s22, 1
    s_lshl_b32 s40, s40, 8
    s_and_b32 s41, s22, 1
    s_lshl_b32 s41, s41, 3
    s_add_u32 s40, s40, s41
    s_add_u32 s44, s33, s40
    s_add_u32 s44, s44, 16384
    """)
    for j in range(10):
        a(f"v_cvt_pk_bf16_f32 v{PK+j}, v{O+2*j}, v{O+2*j+1}")
    a(f"""
    v_cndmask_b32 v{PK+8}, v{PK+9}, v{PK+8}, {LANE32}
    buffer_store_dwordx4 {vr(PK,4)}, v6, s[4:7], s43 offen
    buffer_store_dwordx4 {vr(PK+4,4)}, v6, s[4:7], s43 offen offset:256
    buffer_store_dword v{PK+8}, v5, s[4:7], s44 offen
    s_lshl_b32 s40, s22, 2
    s_add_u32 s45, s34, s40
    """)

X = 8; AC = 28; T_ = 48; TT = [68, 69, 70, 71]; ST = 72; NW = 10; WF = 72
def p_mma(a, with_y):
    vm = Cnt(a, "vmcnt", 63); lg = Cnt(a, "lgkmcnt", 15)
    vm.q = [rset(4 * s, 4, 'a') for s in range(18)]
    if with_y: y_loads(a, vm)
    def wread(f):
        s, t = divmod(f, 5)
        reg = WF + 4 * (f % NW)
        h, s = divmod(s, 9)
        if t < 4: return f"ds_read_b128 {vr(reg,4,'a')}, v{4+h} offset:{s*4608 + 1024*t}"
        return f"ds_read_b128 {vr(reg,4,'a')}, v{6+h} offset:{s*4608}"
    lg.q = [rset(WF + 4 * f, 4, 'a') for f in range(NW)]
    for f in range(90):
        s, t = divmod(f, 5)
        reg = WF + 4 * (f % NW)
        if t == 0: vm.wait(rset(4 * s, 4, 'a'))
        if t == 0 and s in (0, 6, 12, 17) and PROF2:
            a(f"s_lshl_b32 s41, s32, 2")
            a(f"s_add_u32 s41, s41, {48 + (0,6,12,17).index(s)}")
            stamp5(a, "s41")
        lg.wait(rset(reg, 4, 'a'))
        cin = "0" if s == 0 else vr(AC + 4 * t, 4)
        a(f"v_mfma_f32_16x16x32_bf16 {vr(AC+4*t,4)}, {vr(reg,4,'a')}, {vr(4*s,4,'a')}, {cin}")
        if f + NW < 90: lg.issue(wread(f + NW))
    return wread

def unpack(a, dst, src, n):
    for i in range(n):
        a(f"v_lshlrev_b32 v{dst+2*i}, 16, v{src+i}")
        a(f"v_and_b32 v{dst+2*i+1}, 0xffff0000, v{src+i}")
def pack(a, dst, src, n):
    for i in range(n): a(f"v_cvt_pk_bf16_f32 v{dst+i}, v{src+2*i}, v{src+2*i+1}")
def pk(a, op, dst, x, y, n, bc=False):
    for i in range(n):
        yy = vr(y, 2) if bc else vr(y + 2 * i, 2)
        a(f"v_pk_{op}_f32 {vr(dst+2*i,2)}, {vr(x+2*i,2)}, {yy}" + (f" op_sel:[0,{bc-1}] op_sel_hi:[1,{bc-1}]" if bc else ""))
def stats(a, src):
    for i in range(10):
        c = "0" if i < 2 else f"v{ST+(i&1)*2}"
        c2 = "0" if i < 2 else f"v{ST+(i&1)*2+1}"
        a(f"v_dot2_f32_bf16 v{ST+(i&1)*2}, v{src+i}, s48, {c}")
        a(f"v_dot2_f32_bf16 v{ST+(i&1)*2+1}, v{src+i}, v{src+i}, {c2}")
    a(f"v_pk_add_f32 {vr(ST,2)}, {vr(ST,2)}, {vr(ST+2,2)}")
    xlane_sum(a, [ST, ST + 1], ST + 2)

def p_phase(a):
    a(f"""
    v_mov_b32 v4, v3
    v_add_u32 v5, {9*4608}, v3
    v_lshrrev_b32 v6, 4, v2
    v_and_b32 v7, 7, v2
    v_lshl_add_u32 v6, v6, 3, v7
    v_lshlrev_b32 v6, 4, v6
    v_add_u32 v6, 4096, v6
    v_add_u32 v7, {9*4608}, v6
    v_and_b32 v{ST}, 15, v2
    v_lshlrev_b32 v{ST}, 2, v{ST}
    s_mul_i32 s42, s25, 18432
    s_add_u32 s42, s42, s33
    s_waitcnt vmcnt(0)
    """)
    flag_store(a, 45, t=ST + 2)
    a(f"""
    s_cmp_lg_u32 s31, 3
    s_cbranch_scc1 L5_nhf
    """)
    flag_store(a, 15, HL_FLAG, True, t=ST + 2)
    a.label("L5_nhf")
    astamp(a, 1)
    unpack(a, X, RES, 10)
    a(f"""
    s_cmp_lg_u32 s32, 0
    s_cbranch_scc1 L5_p1
    v_cmp_ne_u32 vcc, s{SN}, v{VYF}
    s_and_b32 s40, vcc_lo, 0xffffff
    s_cselect_b32 s37, 0, 1
    """)
    lds_wait(a, C_WOD, 3, ST + 1)
    a.label("L5_p1")
    vpoll(a, ST, 34, ST + 1)
    astamp(a, 2)
    for s in range(18):
        if s % 4 == 0 and s: a("s_add_u32 s42, s42, 4096")
        a(f"buffer_load_dwordx4 {vr(4*s,4,'a')}, v3, s[4:7], s42 offen offset:{1024*(s%4)}{BSC}")
    class Dummy:
        def __call__(self, t): pass
    wread = p_mma(Dummy(), False)
    for f in range(NW): a(wread(f))
    a(f"""
    s_cmp_eq_u32 s37, 1
    s_cbranch_scc1 L5_py
    """)
    p_mma(a, False)
    a("s_branch L5_pj")
    a.label("L5_py")
    a("s_mov_b32 s37, 2")
    p_mma(a, True)
    a.label("L5_pj")
    astamp(a, 3)
    for r in range(4): a(f"v_cndmask_b32 v{AC+16+r}, 0, v{AC+16+r}, {LANE32}")
    pack(a, T_, AC, 10)
    unpack(a, AC, T_, 10)
    pk(a, "add", X, X, AC, 10)
    pack(a, T_, X, 10)
    stats(a, T_)
    a(f"""
    v_mov_b32 v{ST+2}, s{SN}
    v_mov_b32 v{ST+3}, 0
    s_lshl_b32 s40, s24, 8
    s_add_u32 s40, s40, s16
    s_mov_b64 exec, 0xffff
    buffer_store_dwordx4 {vr(ST,4)}, v3, s[4:7], s40 offen
    s_mov_b64 exec, -1
    """)
    unpack(a, X, T_, 10)
    a(f"""
    s_cmp_lg_u32 s37, 0
    s_cbranch_scc1 L5_py2
    s_mov_b32 s37, 2
    v_min_u32 v4, 23, v2
    v_lshlrev_b32 v4, 7, v4
    s_lshl_b32 s42, s24, 12
    s_add_u32 s42, s42, {W5_FG + FG_Y}
    """)
    vpoll(a, 4, 42, 5)
    y_loads(a)
    a.label("L5_py2")
    L = newlab("sp"); LX = newlab("spx")
    a(f"""
    {L}:
    buffer_load_dwordx4 {vr(ST,4)}, v3, s[4:7], s16 offen sc1
    buffer_load_dwordx4 {vr(ST+4,4)}, v3, s[4:7], s16 offen offset:1024 sc1
    s_waitcnt vmcnt(0)
    v_cmp_ne_u32 vcc, s{SN}, v{ST+2}
    v_cmp_ne_u32 s[42:43], s{SN}, v{ST+6}
    s_or_b64 vcc, vcc, s[42:43]
    s_cbranch_vccz {LX}
    """)
    budget(a, LX)
    a(f"s_branch {L}")
    a.label(LX)
    astamp(a, 4)
    a(f"v_pk_add_f32 {vr(ST,2)}, {vr(ST,2)}, {vr(ST+4,2)}")
    xlane_sum(a, [ST, ST + 1], ST + 2)
    ln_params(a, ST, ST + 1, ST + 2, ST + 3)
    pk(a, "add", T_, X, ST, 10, bc=1)
    pack(a, AC, T_, 10); unpack(a, T_, AC, 10)
    pk(a, "mul", T_, T_, ST, 10, bc=2)
    pack(a, AC, T_, 10); unpack(a, T_, AC, 10)
    pk(a, "mul", T_, T_, YR, 10)
    pack(a, AC, T_, 10); unpack(a, T_, AC, 10)
    pk(a, "add", X, X, T_, 10)
    pack(a, RES, X, 10)
    a(f"""
    s_cmp_lg_u32 s32, 0
    s_cbranch_scc1 L5_pout
    s_add_u32 s40, s36, {W5_X2}
    """)
    for t in range(5):
        if t == 4: a(f"s_mov_b64 exec, {LANE32}")
        a(f"buffer_store_dwordx2 {vr(RES+2*t,2)}, v{VRM}, s[4:7], s40 offen offset:{32*t}")
    a("s_mov_b64 exec, -1")
    stats(a, RES)
    a(f"""
    v_lshlrev_b32 v4, 6, v2
    s_lshl_b32 s40, s35, 10
    s_lshl_b32 s41, s24, 3
    s_add_u32 s40, s40, s41
    s_add_u32 s40, s40, s26
    s_add_u32 s40, s40, {OS_XS + 16384}
    s_mov_b64 exec, 0xffff
    buffer_store_dwordx2 {vr(ST,2)}, v4, s[4:7], s40 offen
    s_mov_b64 exec, -1
    s_lshl_b32 s40, s35, 5
    s_lshl_b32 s41, s24, 2
    s_add_u32 s40, s40, s41
    s_add_u32 s40, s40, s27
    s_waitcnt vmcnt(0)
    """)
    flag_store(a, 40, FL_X2, t=4)
    astamp(a, 5)

def aux_main(a):
    tok_wait(a)
    srd(a, 8, P_X, XB)
    a(f"""
    s_mov_b32 s32, 0
    s_mov_b32 s37, 0
    s_cmp_eq_u32 s31, 3
    s_cselect_b32 s18, 3, 2
    s_cmp_eq_u32 s31, 0
    s_cselect_b32 s18, 6, s18
    s_mov_b32 s19, 0
    s_mov_b32 s48, 0x3f803f80
    s_mov_b32 s49, 0x01010101
    s_mov_b32 s50, -1
    s_mov_b32 s51, 0
    s_mov_b32 s52, 0xffff0000
    s_mov_b32 s53, 0xffff0000
    s_mov_b32 s54, 0x11111111
    s_mov_b32 s55, 0x11111111
    s_mov_b32 s56, 0x33333333
    s_mov_b32 s57, 0x33333333
    s_mov_b32 s58, 0x77777777
    s_mov_b32 s59, 0x77777777
    s_mov_b32 s60, 0xf0f0f0f0
    s_mov_b32 s61, 0xf0f0f0f0
    s_mov_b32 s62, 0xaaaaaaaa
    s_mov_b32 s63, 0xaaaaaaaa
    s_lshl_b32 s40, s30, 3
    s_lshl_b32 s41, s31, 1
    s_add_u32 s40, s40, s41
    s_add_u32 s35, s40, s25
    s_mul_i32 s33, s40, 18432
    s_add_u32 s33, s33, s26
    s_sub_u32 s38, 6, s41
    s_lshl_b32 s40, s30, 8
    s_lshl_b32 s41, s38, 5
    s_add_u32 s34, s40, s41
    s_add_u32 s34, s34, s27
    s_add_u32 s34, s34, {FL_O}
    s_lshl_b32 s40, s20, 4
    s_add_u32 s40, s40, s35
    s_mul_i32 s36, s40, 18432
    s_mul_i32 s41, s24, 144
    s_add_u32 s36, s36, s41
    s_lshl_b32 s40, s23, 4
    s_add_u32 s40, s40, s22
    s_lshl_b32 s40, s40, 12
    s_add_u32 s15, s40, {W5_HL}
    s_lshl_b32 s40, s35, 11
    s_add_u32 s16, s40, s26
    s_add_u32 s16, s16, {OS_ST}
    s_lshl_b32 s40, s23, 1
    s_add_u32 s40, s40, s25
    s_lshl_b32 s40, s40, 3
    s_add_u32 s40, s40, s24
    s_mul_i32 s17, s40, 9216
    s_lshl_b32 s41, s31, 5
    s_add_u32 s17, s17, s41
    s_add_u32 s17, s17, {W5_YT}
    v_and_b32 v4, 7, v2
    v_bfe_u32 v5, v2, 3, 1
    v_lshl_add_u32 v4, v4, 1, v5
    v_mul_u32_u24 v4, 1152, v4
    v_lshrrev_b32 v5, 4, v2
    v_lshl_add_u32 v{VRM}, v5, 3, v4
    v_mov_b32 v{RES+8}, 0
    v_mov_b32 v{RES+9}, 0
    v_lshlrev_b32 v{VYA}, 7, v2
    s_lshl_b32 s42, s24, 12
    s_add_u32 s42, s42, {W5_FG + FG_Y}
    v_add_u32 v{VYA}, s42, v{VYA}
    v_mov_b32 v{VYF}, 0
    """)
    for t in range(5):
        if t == 4: a(f"s_mov_b64 exec, {LANE32}")
        a(f"buffer_load_dwordx2 {vr(RES+2*t,2)}, v{VRM}, s[8:11], s36 offen offset:{32*t}")
    a("s_mov_b64 exec, -1")
    for i in range(20): a(f"v_mov_b32 v{YR+i}, 0")
    srd(a, 8, P_OUT, XB)
    a(f"""
    s_cmp_eq_u32 s31, 3
    s_cbranch_scc1 L5_al
    """)
    wo_load(a)
    a(f"""
    s_cmp_ge_u32 s21, 24
    s_cbranch_scc1 L5_ancf
    """)
    conv_flag(a, 32)
    a(f"""
    L5_ancf:
    s_waitcnt vmcnt(0)
    """)
    lds_sig(a, C_WOD, (8,))
    stamp5(a, 11)
    a.label("L5_al")
    attention(a)
    p_phase(a)
    if STOP == 3: a("s_branch L5_fin")
    a(f"""
    s_mov_b32 s32, 1
    s_add_u32 s38, s38, 9
    s_add_u32 s33, s33, {16*18432}
    s_add_u32 s34, s34, 512
    s_add_u32 s15, s15, {16*16*4096}
    s_add_u32 s16, s16, 32768
    s_branch L5_al
    L5_pout:
    """)
    for t in range(5):
        if t == 4: a(f"s_mov_b64 exec, {LANE32}")
        a(f"buffer_store_dwordx2 {vr(RES+2*t,2)}, v{VRM}, s[8:11], s36 offen offset:{32*t}")
    a("s_mov_b64 exec, -1")
    astamp(a, 5)
```

```python
import os
from m5_common import *
from k_qkv import xlane_sum, ln_params, f2u
from k_prep import round_pairs

BUDGET = 200000
BSC = os.environ.get('BSC', ' sc1')
STOP = int(os.environ.get("STOP", "99"))
CPF = int(os.environ.get("CPF", "1"))
FORCEFB = int(os.environ.get("FORCEFB", "0"))
P_X, P_WQKV, P_WO, P_BQ, P_K, P_V, P_SHK, P_SSMK, P_SSMD, P_OUT, P_DBG, P_WS = [64 + 2 * i for i in range(12)]
VM = 1
PV = 111

_lab = [0]
def newlab(p):
    _lab[0] += 1
    return f"L_{p}{_lab[0]}"

def stamp5(a, i):
    if not PROF: return
    a("s_memtime s[98:99]")
    a("s_waitcnt lgkmcnt(0)")
    a("s_sub_u32 s98, s98, s96")
    if isinstance(i, int): a(f"v_writelane_b32 v{PV}, s98, {i}")
    else:
        a(f"s_mov_b32 m0, {i}")
        a(f"v_writelane_b32 v{PV}, s98, m0")

def stamp_dump(a):
    if not PROF: return
    a(f"""
    s_mov_b64 exec, -1
    s_lshl_b32 s40, s21, 3
    s_add_u32 s40, s40, s20
    s_lshl_b32 s40, s40, 3
    s_add_u32 s40, s40, s3
    s_lshl_b32 s40, s40, 8
    s_add_u32 s40, s40, {W5_PROF}
    v_writelane_b32 v{PV}, s97, 63
    v_lshlrev_b32 v0, 2, v2
    buffer_store_dword v{PV}, v0, s[4:7], s40 offen
    """)

def budget(a, X):
    a(f"""
    s_cmp_eq_u32 s28, 0
    s_cbranch_scc1 {X}
    s_sub_u32 s28, s28, 1
    """)

def lds_sig(a, idx, t=(0,), vaddr=None, rtn=None):
    va = VM if vaddr is None else vaddr
    a(f"""
    v_mov_b32 v{t[0]}, 1
    s_mov_b64 exec, 1
    ds_add_u32 v{va}, v{t[0]} offset:{4*idx}
    s_mov_b64 exec, -1
    """)

def lds_wait(a, idx, val, t=0, vaddr=None, sleep=0):
    va = VM if vaddr is None else vaddr
    L = newlab("lw"); X = newlab("lwx")
    a.label(L)
    a(f"""
    ds_read_b32 v{t}, v{va} offset:{4*idx}
    s_waitcnt lgkmcnt(0)
    v_readfirstlane_b32 s40, v{t}
    s_cmp_ge_u32 s40, {val}
    s_cbranch_scc1 {X}
    """)
    budget(a, X)
    if sleep: a(f"s_sleep {sleep}")
    a(f"s_branch {L}")
    a.label(X)

def gpoll(a, vaddr, soff, val, t, sleep=0):
    L = newlab("gp"); X = newlab("gpx")
    a.label(L)
    a(f"""
    buffer_load_dword v{t}, v{vaddr}, s[4:7], s{soff} offen sc1
    s_waitcnt vmcnt(0)
    v_cmp_ne_u32 vcc, {val}, v{t}
    s_cbranch_vccz {X}
    """)
    budget(a, X)
    if sleep: a(f"s_sleep {sleep}")
    a(f"s_branch {L}")
    a.label(X)

def tok_wait(a, t=8):
    L = newlab("tok"); X = newlab("tokx")
    a.label(L)
    a(f"""
    ds_read_b64 v[{t}:{t+1}], v{VM}
    s_waitcnt lgkmcnt(0)
    v_readfirstlane_b32 s40, v{t}
    v_readfirstlane_b32 s41, v{t+1}
    s_cmp_eq_u32 s40, 2
    s_cbranch_scc1 L5_fallback
    s_cmp_eq_u32 s40, 1
    s_cbranch_scc1 {X}
    """)
    budget(a, X)
    a("s_sleep 1")
    a(f"s_branch {L}")
    a.label(X)

def head(a, name):
    kernel_head(a, name)
    a(f"""
    s_cmp_ge_u32 s2, 256
    s_cbranch_scc1 L5_end
    """)
    if PROF:
        a("s_memtime s[96:97]")
        a("s_memrealtime s[98:99]")
    a(f"""
    s_load_dwordx16 s[64:79], s[0:1], 0
    s_load_dwordx8 s[80:87], s[0:1], 64
    """)
    if CPF:
        a(f"""
        s_getpc_b64 s[92:93]
        L5_pc:
        s_bfe_u32 s40, s2, 0x30003
        s_lshl_b32 s40, s40, 13
        v_lshlrev_b32 v4, 7, v0
        v_add_u32 v4, s40, v4
        v_min_u32 v4, L5_codeend-L5_pc, v4
        v_cmp_gt_u32 vcc, 64, v0
        s_mov_b64 exec, vcc
        global_load_dword a143, v4, s[92:93]
        s_mov_b64 exec, -1
        """)
    a(f"""
    v_lshrrev_b32 v1, 6, v0
    v_and_b32 v2, 63, v0
    s_getreg_b32 s20, hwreg(HW_REG_XCC_ID, 0, 3)
    v_readfirstlane_b32 s3, v1
    s_lshr_b32 s21, s2, 3
    v_lshlrev_b32 v3, 4, v2
    s_mov_b32 s28, {BUDGET}
    s_mov_b32 s29, 0
    v_mov_b32 v{VM}, {L_MISC}
    """)
    if PROF: a(f"v_mov_b32 v{PV}, 0")
    a(f"""
    s_branch L5_restart
    L5_fallback:
    s_mov_b32 s21, s41
    s_mov_b32 s29, 1
    s_mov_b32 s28, {BUDGET}
    s_waitcnt lgkmcnt(0)
    s_load_dwordx16 s[64:79], s[0:1], 0
    s_load_dwordx8 s[80:87], s[0:1], 64
    s_waitcnt vmcnt(0) lgkmcnt(0)
    s_barrier
    L5_restart:
    s_and_b32 s22, s21, 15
    s_lshr_b32 s30, s21, 4
    s_lshl_b32 s23, s20, 1
    s_add_u32 s23, s23, s30
    s_and_b32 s24, s21, 7
    s_bfe_u32 s25, s21, 0x10003
    s_mul_i32 s26, s20, {OS_G}
    s_add_u32 s26, s26, {W5_OS}
    s_lshl_b32 s27, s20, 12
    s_add_u32 s27, s27, {W5_FL}
    s_cmp_lg_u32 s3, 7
    s_cbranch_scc1 L5_nz
    """)
    a(f"""
    v_mov_b32 v8, 0
    v_mov_b32 v9, 0
    v_lshl_add_u32 v12, v2, 3, v{VM}
    v_lshl_add_u32 v13, v2, 2, v{VM}
    ds_write_b64 v12, v[8:9]
    v_mov_b32 v14, 2
    s_mov_b64 exec, 0x1f
    ds_write_b32 v13, v14 offset:{4*C_FR}
    s_mov_b64 exec, -1
    """)
    a.label("L5_nz")
    a("s_waitcnt lgkmcnt(0)")
    if PROF: a("s_mov_b32 s97, s98")
    srd(a, 4, P_WS, W5_TOT)


SN = 94
def non_wait(a, t=8):
    L = newlab("nw"); X = newlab("nwx")
    a(f"""
    {L}:
    ds_read_b32 v{t}, v{VM} offset:{4*C_NON}
    s_waitcnt lgkmcnt(0)
    v_readfirstlane_b32 s{SN}, v{t}
    s_cmp_lg_u32 s{SN}, 0
    s_cbranch_scc1 {X}
    """)
    budget(a, X)
    a("s_sleep 1")
    a(f"s_branch {L}")
    a.label(X)
    a(f"s_mov_b32 s{SN+1}, s{SN}")

def vpoll(a, vaddr, soff, t, sleep=0, imm=0):
    L = newlab("vp"); X = newlab("vpx")
    a(f"""
    {L}:
    buffer_load_dword v{t}, v{vaddr}, s[4:7], s{soff} offen offset:{imm} sc1
    s_waitcnt vmcnt(0)
    v_cmp_ne_u32 vcc, s{SN}, v{t}
    s_cbranch_vccz {X}
    """)
    budget(a, X)
    if sleep: a(f"s_sleep {sleep}")
    a(f"s_branch {L}")
    a.label(X)

def flag_store(a, soff, imm=0, sc1=False, t=8):
    a(f"""
    v_mov_b32 v{t}, 0
    v_mov_b32 v{t+1}, s{SN}
    s_mov_b64 exec, 1
    buffer_store_dword v{t+1}, v{t}, s[4:7], s{soff} offen offset:{imm}{" sc1" if sc1 else ""}
    s_mov_b64 exec, -1
    """)

def nonce_write(a):
    a(f"""
    s_lshl_b32 s40, s29, 1
    s_or_b32 s40, s2, s40
    s_cmp_lg_u32 s40, 1
    s_cbranch_scc1 L5_nnw
    s_memrealtime s[40:41]
    """)
    srd(a, 88, P_DBG, 256)
    a(f"""
    v_mov_b32 v8, 0
    s_waitcnt lgkmcnt(0)
    s_or_b32 s40, s40, 1
    v_mov_b32 v9, s40
    s_mov_b64 exec, 1
    buffer_store_dword v9, v8, s[88:91], 0 offen sc1
    s_mov_b64 exec, -1
    L5_nnw:
    """)

def reload_ptrs(a):
    a(f"""
    s_load_dwordx16 s[64:79], s[0:1], 0
    s_load_dwordx8 s[80:87], s[0:1], 64
    """)

PSL = int(os.environ.get("PSL", "2"))
NLEAD = int(os.environ.get("NLEAD", "2"))
NSL = int(os.environ.get("NSL", "3"))
def poller(a):
    srd(a, 88, P_DBG, 256)
    a(f"""
    v_mov_b32 v8, 0
    v_mov_b32 v10, 0
    v_lshlrev_b32 v12, 7, v2
    v_add_u32 v12, {W5_FG + FG_R}, v12
    v_min_u32 v11, 24, v2
    v_lshlrev_b32 v11, 4, v11
    s_sub_u32 s40, s27, {8*16 - FL_G}
    v_add_u32 v11, s40, v11
    v_add_u32 v13, {FL_WL - 16*16 + 8*16 - FL_G}, v11
    v_cmp_gt_u32 vcc, 16, v2
    v_cndmask_b32 v11, v13, v11, vcc
    v_cmp_gt_u32 vcc, 8, v2
    v_cndmask_b32 v11, v11, v12, vcc
    v_mov_b32 v12, 0
    v_mov_b32 v13, 0
    v_mov_b32 v14, 0
    v_mov_b32 v15, 0
    L5_pn:
    buffer_load_dword v8, v10, s[88:91], 0 offen sc1
    s_sleep {NSL}
    s_waitcnt vmcnt(30)
    v_readfirstlane_b32 s{SN}, v8
    s_cmp_lg_u32 s{SN}, 0
    s_cbranch_scc1 L5_pnx
    """)
    budget(a, "L5_pnx")
    a(f"""
    s_branch L5_pn
    L5_pnx:
    v_mov_b32 v9, s{SN}
    ds_write_b32 v{VM}, v9 offset:{4*C_NON}
    s_mov_b32 s{SN+1}, s{SN}
    s_lshl_b32 s40, s2, 2
    s_add_u32 s40, s40, s27
    s_mov_b64 exec, 1
    buffer_store_dword v9, v10, s[4:7], s40 offen offset:{FL_U}
    s_mov_b64 exec, -1
    s_mov_b32 s16, 0
    s_mov_b32 s17, 0
    s_mov_b32 s15, 0
    """)
    stamp5(a, 8)
    if FORCEFB:
        a(f"""
        s_cmp_eq_u32 s29, 0
        s_cbranch_scc1 L5_pu
        """)
    a(f"""
    s_mov_b32 s13, 0xffff
    s_cmp_ge_u32 s21, {32 - NLEAD}
    s_cselect_b32 s14, 3, 0
    s_cselect_b32 s13, 0x1ffffff, s13
    s_add_u32 s12, s20, 7
    s_and_b32 s12, s12, 7
    s_lshl_b32 s12, s12, 7
    s_add_u32 s12, s12, {W5_FG + FG_R}
    v_cmp_eq_u32 vcc, 22, v2
    v_cndmask_b32 v26, -1, 0, vcc
    L5_pl:
    s_mov_b32 exec_lo, s13
    s_mov_b32 exec_hi, 0
    buffer_load_dwordx4 v[12:15], v11, s[4:7], 0 offen sc1
    s_mov_b64 exec, -1
    s_sleep {PSL}
    s_waitcnt vmcnt(12)
    v_xor_b32 v16, s{SN}, v12
    v_xor_b32 v17, s{SN}, v13
    v_xor_b32 v18, s{SN}, v14
    v_xor_b32 v19, s{SN}, v15
    v_cmp_eq_u32 vcc, 0, v16
    v_cmp_eq_u32 s[46:47], 0, v17
    v_or3_b32 v16, v16, v17, v18
    v_and_b32 v17, v26, v19
    v_cmp_eq_u32 s[44:45], 0, v19
    v_or_b32 v16, v16, v17
    s_and_b32 s40, vcc_lo, 0xff
    v_cmp_eq_u32 vcc, 0, v16
    s_ff0_i32_b32 s40, s40
    s_cmp_eq_u32 s14, 0
    s_cbranch_scc1 L5_pnl
    s_bfe_u32 s41, vcc_lo, 0x70010
    s_cmp_eq_u32 s41, 0x7f
    s_cselect_b32 s41, 1, 0
    s_and_b32 s41, s41, s14
    s_cbranch_scc0 L5_pl2
    s_andn2_b32 s14, s14, 1
    """)
    flag_store(a, 12, 0, True, 20)
    stamp5(a, 10)
    a(f"""
    L5_pl2:
    s_bfe_u32 s41, vcc_lo, 0x20017
    s_bfe_u32 s43, s44, 0x10016
    s_add_u32 s41, s41, s43
    s_cmp_eq_u32 s41, 4
    s_cselect_b32 s41, 2, 0
    s_and_b32 s41, s41, s14
    s_cbranch_scc0 L5_pnl
    s_andn2_b32 s14, s14, 2
    """)
    flag_store(a, 12, 4, True, 20)
    a(f"""
    L5_pnl:
    s_bfe_u32 s42, vcc_lo, 0x80008
    s_cmp_eq_u32 s40, s16
    s_cbranch_scc1 L5_pg
    s_mov_b32 s16, s40
    s_mul_i32 s40, s40, 27
    v_mov_b32 v9, s40
    ds_write_b32 v{VM}, v9 offset:{4*C_WR}
    """)
    if PROF:
        a("s_add_u32 s41, s16, 20")
        stamp5(a, "s41")
    a(f"""
    L5_pg:
    s_cmp_lg_u32 s17, 0
    s_cbranch_scc1 L5_pe
    s_cmp_lg_u32 s42, 0xff
    s_cbranch_scc1 L5_pf
    s_mov_b32 s17, 1
    v_mov_b32 v9, 1
    ds_write_b32 v{VM}, v9
    """)
    stamp5(a, 9)
    a(f"""
    L5_pe:
    s_lshl_b32 s40, s14, 4
    s_add_u32 s40, s40, 8
    s_andn2_b32 s41, 0xff, s46
    s_add_u32 s40, s40, s41
    s_cmp_ge_u32 s16, s40
    s_cbranch_scc1 L5_px
    L5_pf2:
    """)
    budget(a, "L5_px")
    a(f"""
    s_branch L5_pl
    L5_pf:
    s_add_u32 s15, s15, 1
    s_and_b32 s40, s15, 63
    s_or_b32 s40, s40, s29
    s_cmp_lg_u32 s40, 0
    s_cbranch_scc1 L5_pf2
    L5_pu:
    buffer_load_dwordx4 v[20:23], v3, s[4:7], s27 offen offset:{FL_U} sc1
    v_lshlrev_b32 v24, 2, v2
    s_mov_b32 s43, 0
    s_mov_b64 s[44:45], 0
    s_mov_b32 s41, 0
    s_waitcnt vmcnt(0)
    """)
    for k in range(4):
        a(f"""
        v_cmp_eq_u32 s[50:51], s{SN}, v{20+k}
        s_bcnt1_i32_b64 s42, s[50:51]
        s_add_u32 s43, s43, s42
        s_or_b64 s[44:45], s[44:45], s[50:51]
        v_add_u32 v25, {k}, v24
        v_cmp_gt_u32 vcc, s2, v25
        s_and_b64 s[46:47], vcc, s[50:51]
        s_bcnt1_i32_b64 s46, s[46:47]
        s_add_u32 s41, s41, s46
        """)
    if FORCEFB:
        a(f"""
        s_cmp_ge_u32 s43, 32
        s_cbranch_scc1 L5_pu2
        """)
        budget(a, "L5_px")
        a(f"""
        s_branch L5_pu
        L5_pu2:
        s_sub_u32 s41, 31, s41
        """)
    else:
        a(f"""
        s_cmp_lt_u32 s43, 32
        s_cbranch_scc1 L5_pf2
        s_lshr_b64 s[46:47], s[44:45], 1
        s_or_b64 s[44:45], s[44:45], s[46:47]
        s_mov_b32 s46, 0x55555555
        s_mov_b32 s47, 0x55555555
        s_and_b64 s[44:45], s[44:45], s[46:47]
        s_cmp_eq_u64 s[44:45], s[46:47]
        s_cbranch_scc1 L5_pf2
        """)
    a(f"""
    s_and_b32 s41, s41, 31
    v_mov_b32 v8, 2
    v_mov_b32 v9, s41
    ds_write_b64 v{VM}, v[8:9]
    v_mov_b32 v9, 216
    ds_write_b32 v{VM}, v9 offset:{4*C_WR}
    s_branch L5_fallback
    L5_px:
    """)
    lds_sig(a, C_CVD, (8,))
    a("s_waitcnt vmcnt(0)")
```

```python
from k5_base import *

WM = 8
WR = 104
KR = 40; VR = 58; PA_ = 76; PB_ = 85; GO = 94
def kv_weights(a):
    srd(a, 16, P_SHK, 4608)
    a(f"""
    s_mov_b32 s34, s3
    s_add_u32 s35, s3, 6
    s_sub_u32 s40, s3, 1
    s_cmp_lt_u32 s40, 2
    s_cselect_b32 s35, s35, -1
    s_cselect_b32 s41, 384, 0
    v_and_b32 v4, 7, v2
    v_lshlrev_b32 v4, 3, v4
    s_mul_i32 s40, s20, 576
    s_lshl_b32 s42, s3, 6
    s_add_u32 s40, s40, s42
    s_add_u32 s41, s41, s40
    buffer_load_dwordx2 v[{WR}:{WR+1}], v4, s[16:19], s40 offen
    buffer_load_dwordx2 v[{WR+2}:{WR+3}], v4, s[16:19], s41 offen
    """)

def kv_issue(a):
    a(f"""
    s_cmp_eq_u32 s3, 4
    s_cselect_b64 s[8:9], s[{P_K}:{P_K+1}], s[{P_V}:{P_V+1}]
    s_cselect_b32 s41, 0, {KVS}
    s_add_u32 s41, s41, {L_KV}
    s_mov_b32 s10, {XB}
    s_mov_b32 s11, 0x00020000
    v_mul_u32_u24 v4, 57, v2
    v_lshrrev_b32 v4, 9, v4
    v_mul_u32_u24 v5, 9, v4
    v_sub_u32 v5, v2, v5
    v_mul_u32_u24 v4, 1152, v4
    v_lshl_add_u32 v4, v5, 4, v4
    s_mul_i32 s40, s21, {64*1152}
    s_mul_i32 s42, s20, 144
    s_add_u32 s40, s40, s42
    s_sub_u32 s40, s40, {4*1152}
    v_add_u32 v4, s40, v4
    s_mov_b32 exec_hi, 0x7fffffff
    """)
    for i in range(10):
        a(f"s_add_u32 m0, s41, {1008*i}")
        if i: a(f"v_add_u32 v4, {7*1152}, v4")
        else: a("s_nop 0")
        if i == 9: a("s_mov_b64 exec, 0x00001fffffffffff" if False else "s_mov_b32 exec_hi, 0x1fff")
        a("buffer_load_dwordx4 v4, s[8:11], 0 offen nt lds")
    a("s_mov_b64 exec, -1")

def conv_pads(a):
    a(f"""
    s_mul_i32 s41, s31, {CH}
    v_mov_b32 v8, 0
    v_mov_b32 v9, 0
    v_mov_b32 v10, 0
    v_mov_b32 v11, 0
    v_add_u32 v12, {L_CV + FREG}, v3
    v_subrev_u32 v13, 32, v2
    v_lshrrev_b32 v14, 2, v13
    v_mul_u32_u24 v14, {CS_}, v14
    v_and_b32 v13, 3, v13
    v_lshl_add_u32 v13, v13, 4, v14
    v_add_u32 v13, {L_CV + 4096}, v13
    v_cmp_gt_u32 vcc, 32, v2
    v_cndmask_b32 v12, v13, v12, vcc
    v_add_u32 v12, s41, v12
    s_mov_b32 s40, -1
    s_mov_b32 s41, 0xffff
    s_mov_b64 exec, s[40:41]
    ds_write_b128 v12, v[8:11]
    s_mov_b64 exec, -1
    """)

def d_load(a):
    srd(a, 12, P_SSMD, 1152)
    a(f"""
    s_mul_i32 s41, s20, 24
    s_add_u32 s40, s21, s41
    s_mul_i32 s40, s40, 3
    s_add_u32 s40, s40, s31
    s_lshl_b32 s43, s40, 1
    v_mov_b32 v7, 0
    buffer_load_ushort v110, v7, s[12:15], s43 offen
    """)

def ssm_issue(a):
    srd(a, 8, P_SSMK, XB)
    a(f"""
    s_mul_i32 s41, s20, 24
    s_add_u32 s40, s21, s41
    s_mul_i32 s40, s40, {3*4096}
    """)
    for c in range(3):
        a(f"s_mov_b32 m0, {c*CH + L_CV + FREG + 512}")
        if c: a("s_add_u32 s40, s40, 4096")
        else: a("s_nop 0")
        for i in range(4):
            a(f"buffer_load_dwordx4 v3, s[8:11], s40 offen offset:{1024*i} nt lds")

def kv_section(a):
    a(f"""
    v_lshrrev_b32 v4, 4, v2
    v_bfe_u32 v5, v2, 1, 1
    v_lshl_add_u32 v4, v4, 1, v5
    v_bfe_u32 v5, v2, 2, 2
    v_lshl_add_u32 v4, v4, 3, v5
    v_mul_u32_u24 v4, 144, v4
    v_and_b32 v5, 1, v2
    v_lshl_add_u32 v7, v5, 3, v4
    v_add_u32 v7, {L_KV}, v7
    v_and_b32 v5, 7, v2
    v_mul_u32_u24 v5, {2*GS}, v5
    v_lshrrev_b32 v6, 3, v2
    v_sub_u32 v6, 7, v6
    v_lshl_add_u32 v5, v6, 4, v5
    s_mov_b32 s19, 0x3f803f80
    """)
    lds_wait(a, C_KVL, 2, 8)
    stamp5(a, 1)
    a.label("L5_kvu")
    a(f"""
    s_lshl_b32 s40, s34, 4
    v_add_u32 v4, s40, v7
    """)
    lg = Cnt(a, "lgkmcnt", 15)
    for b in range(3): lg.issue(f"ds_read_b64_tr_b16 {vr(KR+2*b,2)}, v4 offset:{576*b}")
    for b in range(3): lg.issue(f"ds_read_b64_tr_b16 {vr(VR+2*b,2)}, v4 offset:{KVS + 576*b}")
    for dw in range(2):
        r = WR + dw; m = WM + 4 * dw
        a(f"""
        v_and_b32 v{m}, 0xffff, v{r}
        v_lshlrev_b32 v{m+1}, 16, v{r}
        v_lshrrev_b32 v{m+2}, 16, v{r}
        v_and_b32 v{m+3}, 0xffff0000, v{r}
        """)
    a(f"""
    s_mul_i32 s16, s20, 9
    s_add_u32 s16, s16, s34
    s_mul_i32 s16, s16, {16*GS}
    s_add_u32 s18, s16, {W5_G}
    s_lshl_b32 s17, s21, 7
    s_sub_u32 s16, s18, s17
    s_add_u32 s16, s16, {1984*2}
    s_add_u32 s17, s16, {GS}
    s_cmp_lg_u32 s21, 0
    s_cbranch_scc1 L5_nzt
    v_mov_b32 v76, 0
    v_mov_b32 v77, 0
    v_mov_b32 v78, 0
    v_mov_b32 v79, 0
    v_mul_u32_u24 v6, {GS}, v2
    v_add_u32 v6, 4096, v6
    s_mov_b64 exec, 0xffff
    buffer_store_dwordx4 v[76:79], v6, s[4:7], s18 offen
    s_mov_b64 exec, -1
    L5_nzt:
    """)
    X = list(range(-1, 8))
    def prod(dst, x, d):
        e = x - d + 4
        a(f"v_dot2_f32_bf16 v{dst}, v{KR+(e>>1)}, v{WM+2*d+(e&1)}, 0")
    lg.wait(rset(KR, 6))
    for i, x in enumerate(X): prod(PA_ + i, x, 3)
    for d in (2, 1, 0):
        for i, x in enumerate(X): prod(PB_ + i, x, d)
        for i in range(9): a(f"v_cvt_pk_bf16_f32 v{PA_+i}, v{PA_+i}, v{PB_+i}")
        for i in range(9): a(f"v_dot2_f32_bf16 v{PA_+i}, v{PA_+i}, s19, 0")
    for i, x in enumerate(X):
        a(f"v_cvt_pk_bf16_f32 v{PA_+i}, v{PA_+i}, 0" if (x + 4) & 1 == 0 else f"v_cvt_pk_bf16_f32 v{PA_+i}, 0, v{PA_+i}")
    lg.wait(rset(VR, 6))
    for i, x in enumerate(X): a(f"v_dot2_f32_bf16 v{PA_+i}, v{PA_+i}, v{VR+((x+4)>>1)}, 0")
    f = lambda x: PA_ + x + 1
    for e in range(4): a(f"v_cvt_pk_bf16_f32 v{GO+e}, v{f(7-2*e)}, v{f(6-2*e)}")
    for e in range(4): a(f"v_cvt_pk_bf16_f32 v{GO+4+e}, v{f(6-2*e)}, v{f(5-2*e)}")
    a(f"""
    buffer_store_dwordx4 {vr(GO,4)}, v5, s[4:7], s16 offen
    buffer_store_dwordx4 {vr(GO+4,4)}, v5, s[4:7], s17 offen
    s_mov_b32 s34, s35
    s_mov_b32 s35, -1
    v_mov_b32 v{WR}, v{WR+2}
    v_mov_b32 v{WR+1}, v{WR+3}
    s_cmp_lg_u32 s34, -1
    s_cbranch_scc1 L5_kvu
    """)
    stamp5(a, 2)
    non_wait(a)
    a(f"""
    v_mov_b32 v8, 1
    s_waitcnt vmcnt(0)
    s_mov_b64 exec, 1
    ds_add_rtn_u32 v9, v{VM}, v8 offset:{4*C_KVD}
    s_mov_b64 exec, -1
    s_lshl_b32 s40, s21, 2
    s_add_u32 s40, s40, s27
    s_waitcnt lgkmcnt(0)
    v_readfirstlane_b32 s41, v9
    s_cmp_lg_u32 s41, 6
    s_cbranch_scc1 L5_kvx
    """)
    flag_store(a, 40, FL_G)
    a.label("L5_kvx")
    stamp5(a, 3)

CACC = 8; KVR = 40; PRD = 72
def conv_reads(p, base):
    R = []
    for x in range(8):
        aa = 7 - x
        R.append(f"ds_read_b128 {vr(64*p+32+4*x,4,'a')}, v5 offset:{base + 512*x}")
        R.append(f"ds_read_b64 {vr(64*p+4*aa,2,'a')}, v4 offset:{base + 512*(7-aa)}")
        R.append(f"ds_read_b64 {vr(64*p+4*aa+2,2,'a')}, v4 offset:{base + 512*(7-aa) + 8}")
    return R
def cmf(a, p, aa, d):
    acc = CACC + 4 * (aa + d)
    a(f"v_mfma_f32_16x16x32_bf16 {vr(acc,4)}, {vr(64*p+4*aa,4,'a')}, {vr(64*p+32+4*d,4,'a')}, {vr(acc,4)}")
def conv_step(a, p, nxt):
    ops = [(aa, d) for aa in range(7, -1, -1) for d in range(8 - aa)]
    a("s_waitcnt lgkmcnt(0)")
    nxt = list(nxt)
    per = (len(nxt) + 31) // 32
    for i, (aa, d) in enumerate(ops):
        cmf(a, p, aa, d)
        for _ in range(per):
            if nxt: a(nxt.pop(0))

def conv(a):
    a(f"""
    s_mul_i32 s40, s21, 3
    s_add_u32 s40, s40, s31
    s_mul_i32 s41, s20, 72
    s_add_u32 s39, s40, s41
    s_mul_i32 s39, s39, {2*GS}
    s_add_u32 s39, s39, {W5_G}
    s_mul_i32 s37, s20, 9216
    s_lshl_b32 s40, s40, 7
    s_add_u32 s37, s37, s40
    s_add_u32 s37, s37, {W5_YT}
    s_mul_i32 s35, s31, {CH}
    """)
    a(f"""
    v_and_b32 v18, 15, v2
    v_lshrrev_b32 v19, 4, v2
    v_and_b32 v20, 7, v18
    v_lshrrev_b32 v21, 3, v18
    v_lshl_add_u32 v20, v20, 1, v21
    v_sub_u32 v21, 3, v20
    v_and_b32 v21, 3, v21
    v_add_u32 v20, v20, v21
    v_and_b32 v22, 1, v19
    v_lshrrev_b32 v23, 1, v19
    v_lshlrev_b32 v4, 3, v22
    v_sub_u32 v4, v4, v20
    v_lshlrev_b32 v5, 4, v23
    v_sub_u32 v4, v4, v5
    v_lshlrev_b32 v4, 1, v4
    v_mul_u32_u24 v21, {CS_}, v21
    v_add_u32 v4, v4, v21
    s_add_u32 s40, s35, {L_CV + 2*2047 - 64 - 3584}
    v_add_u32 v4, s40, v4
    v_sub_u32 v5, v18, v23
    v_lshlrev_b32 v5, 5, v5
    v_lshl_add_u32 v5, v22, 4, v5
    s_add_u32 s40, s35, {L_CV + FREG + 512 - 64}
    v_add_u32 v5, s40, v5
    v_lshlrev_b32 v6, 5, v18
    v_lshl_add_u32 v6, v22, 4, v6
    v_sub_u32 v6, {4080 - 3584}, v6
    s_add_u32 s40, s35, {L_CV}
    v_add_u32 v6, s40, v6
    v_lshrrev_b32 v7, 3, v18
    v_and_b32 v20, 1, v18
    v_lshl_add_u32 v7, v7, 1, v20
    v_mul_u32_u24 v7, {8*9216}, v7
    v_bfe_u32 v20, v18, 1, 2
    v_lshl_add_u32 v7, v20, 5, v7
    v_lshl_add_u32 v7, v19, 3, v7
    v_lshlrev_b32 v20, 16, v110
    v_cmp_gt_u32 vcc, 32, v2
    v_cndmask_b32 v110, v110, v20, vcc
    s_mov_b32 s36, 0x3f803f80
    """)
    for i in range(32): a(f"v_mov_b32 v{CACC+i}, 0")
    tok_wait(a, 108)
    stamp5(a, 4)
    for cp in range(4):
        a(f"s_add_u32 s40, s39, {(cp&1)*GS + (cp>>1)*4}")
        a(f"s_add_u32 m0, s35, {L_CV + cp*CS_}")
        for i in range(4):
            a(f"buffer_load_dwordx4 v3, s[4:7], s40 offen offset:{1024*i}{BSC} lds")
    a(f"""
    s_mov_b32 s38, 0
    s_waitcnt vmcnt(0)
    """)
    stamp5(a, 5)
    for t in conv_reads(0, 64): a(t)
    a.label("L5_cvl")
    conv_step(a, 0, conv_reads(1, 0) + [f"ds_read_b128 {vr(KVR+4*n,4)}, v6 offset:{512*(7-n)}" for n in range(8)])
    a(f"""
    s_cmp_eq_u32 s38, 3
    s_cbranch_scc1 L5_cvx
    s_add_u32 s38, s38, 1
    """)
    conv_step(a, 1, ["v_subrev_u32 v4, 128, v4", "v_subrev_u32 v5, 128, v5"] + conv_reads(0, 64))
    a("s_branch L5_cvl")
    a.label("L5_cvx")
    fill = [(1, ("sig",))]
    dd = [[(0, f"v_dot2_f32_bf16 v{PRD+4*n+r}, v{KVR+4*n+3-r}, v110, 0") for r in range(4)] for n in range(8)]
    done = {n: (n + 1) * (n + 2) // 2 for n in range(8)}
    epi = []
    for n in range(8):
        t0 = done[n] + 2
        acc = CACC + 4 * n; pr = PRD + 4 * n
        for r in range(4): epi.append((t0, f"v_cvt_pk_bf16_f32 v{pr+r}, v{acc+r}, v{pr+r}"))
        for r in range(4): epi.append((t0, f"v_dot2_f32_bf16 v{pr+r}, v{pr+r}, s36, 0"))
        epi.append((t0, f"v_cvt_pk_bf16_f32 v{pr}, v{pr}, v{pr+1}"))
        epi.append((t0, f"v_cvt_pk_bf16_f32 v{pr+1}, v{pr+2}, v{pr+3}"))
        epi.append((t0, f"buffer_store_dwordx2 {vr(pr,2)}, v7, s[4:7], s37 offen sc1"))
        if n < 7: epi.append((t0, f"s_add_u32 s37, s37, {4*8*9216}"))
    order = []
    ei = 0
    per = [[e for e in epi if e[0] == done[n] + 2] for n in range(8)]
    for n in range(8):
        order += dd[n]
    q = fill + order[:16]
    q += per[0] + per[1] + order[16:24] + per[2] + order[24:] + per[3] + per[4] + per[5] + per[6] + per[7]
    fill = q
    ops = [(aa, n - aa) for n in range(8) for aa in range(n, -1, -1)]
    a("s_waitcnt lgkmcnt(0)")
    def emit(f):
        if isinstance(f, tuple): lds_sig(a, C_CVD, (108,))
        else: a(f)
    for i, (aa, d) in enumerate(ops):
        cmf(a, 1, aa, d)
        k = 0
        while fill and fill[0][0] <= i + 1 and k < 3:
            emit(fill.pop(0)[1]); k += 1
    stamp5(a, 6)
    while fill: emit(fill.pop(0)[1])

def conv_flag(a, n=0):
    X = newlab("cf")
    a(f"""
    v_mov_b32 v8, 1
    s_waitcnt vmcnt({n})
    s_mov_b64 exec, 1
    ds_add_rtn_u32 v9, v{VM}, v8 offset:{4*C_YD}
    s_mov_b64 exec, -1
    s_lshl_b32 s40, s20, 12
    s_lshl_b32 s41, s21, 7
    s_add_u32 s40, s40, s41
    s_add_u32 s40, s40, {W5_FG + FG_Y}
    s_waitcnt lgkmcnt(0)
    v_readfirstlane_b32 s41, v9
    s_cmp_lg_u32 s41, 2
    s_cbranch_scc1 {X}
    """)
    flag_store(a, 40, 0, True)
    a.label(X)
    stamp5(a, 7)
```

```python
from k5_base import *
from k5_rp import *

XE, XO = 4, 5
CP_, CQ_ = 6, 8
VCD, VCB, VONE = 10, 11, 12
VST = 13; SGA, SGB = 14, 15; WA, WB = 16, 17; T0, T1 = 18, 19
STD = 20; CSR = 24
ACA, ACB, AX0, AX1 = 32, 40, 48, 56
PST3 = 36
FT = 64; XR_ = 72; ONES = 96; VPL, VPA = 100, 101
LAG = int(os.environ.get('LAG', '18'))
XLATE = int(os.environ.get('XLATE', '0'))

XROW = [16, 20, 24, 28, 32, 36, 46, 50, 54]
def x_stats(a):
    a("s_mov_b32 s40, 0x3f803f80")
    for i in range(36):
        x = XROW[i >> 2] + (i & 3)
        c = "0" if i < 4 else f"v{8+(i&3)}"
        c2 = "0" if i < 4 else f"v{12+(i&3)}"
        a(f"v_dot2_f32_bf16 v{8+(i&3)}, v{x}, s40, {c}")
        a(f"v_dot2_f32_bf16 v{12+(i&3)}, v{x}, v{x}, {c2}")
    a(f"""
    v_add_f32 v8, v8, v9
    v_add_f32 v10, v10, v11
    v_add_f32 v12, v12, v13
    v_add_f32 v14, v14, v15
    v_add_f32 v8, v8, v10
    v_add_f32 v9, v12, v14
    """)
    for m in ("quad_perm:[1,0,3,2]", "quad_perm:[2,3,0,1]", "row_half_mirror"):
        a(f"v_add_f32_dpp v8, v8, v8 {m} row_mask:0xf bank_mask:0xf")
        a(f"v_add_f32_dpp v9, v9, v9 {m} row_mask:0xf bank_mask:0xf")
    a(f"""
    v_and_b32 v11, 7, v2
    v_cmp_eq_u32 vcc, 0, v11
    v_cndmask_b32 v8, 0, v8, vcc
    v_cndmask_b32 v9, 0, v9, vcc
    v_lshrrev_b32 v10, 3, v2
    v_and_b32 v12, 1, v10
    v_lshrrev_b32 v10, 1, v10
    v_lshl_add_u32 v10, v12, 3, v10
    v_lshlrev_b32 v10, 6, v10
    v_lshl_add_u32 v10, v11, 3, v10
    s_lshr_b32 s40, s21, 1
    s_lshl_b32 s40, s40, 10
    s_and_b32 s41, s21, 1
    s_lshl_b32 s41, s41, 8
    s_add_u32 s40, s40, s41
    s_add_u32 s40, s40, s26
    s_add_u32 s46, s40, {OS_XS}
    """)

def x_rows_issue(a):
    srd(a, 8, P_X, XB)
    a(f"""
    v_lshrrev_b32 v4, 3, v2
    v_mul_u32_u24 v4, 1152, v4
    v_and_b32 v5, 7, v2
    v_lshl_add_u32 v4, v5, 4, v4
    s_lshl_b32 s40, s20, 5
    s_add_u32 s40, s40, s21
    s_mul_i32 s40, s40, {8*1152}
    """)
    for t in range(9):
        a(f"buffer_load_dwordx4 {vr(XROW[t],4)}, v4, s[8:11], s40 offen offset:{128*t}")

def q_consts(a, m):
    a(f"""
    v_and_b32 v{T0}, 7, v2
    v_lshrrev_b32 v{T1}, 4, v2
    v_xor_b32 v{XE}, v{T0}, v{T1}
    v_lshlrev_b32 v{XE}, 4, v{XE}
    v_lshl_add_u32 v{XE}, v{T0}, 7, v{XE}
    v_bfe_u32 v{T0}, v2, 3, 1
    v_mul_u32_u24 v{T0}, 9216, v{T0}
    v_add_u32 v{XE}, v{XE}, v{T0}
    v_xor_b32 v{XO}, 64, v{XE}
    v_add_u32 v{CP_}, {L_XS}, v{XE}
    v_add_u32 v{CP_+1}, {L_XS}, v{XO}
    v_mov_b32 v{VONE}, 1
    v_add_u32 v{VCD}, 12, v{VM}
    v_add_u32 v{VCB}, s3, v{VCD}
    v_and_b32 v{T0}, 15, v2
    v_lshlrev_b32 v{VST}, 4, v{T0}
    v_add_u32 v{VST}, {L_STAB}, v{VST}
    v_mul_u32_u24 v{SGA}, {RS}, v{T0}
    v_mov_b32 v{ONES}, 0x3f803f80
    v_mov_b32 v{ONES+1}, 0x3f803f80
    v_mov_b32 v{ONES+2}, 0x3f803f80
    v_mov_b32 v{ONES+3}, 0x3f803f80
    s_mov_b32 s51, 0x01010101
    s_mov_b32 s50, 0
    s_mul_i32 s35, s22, {WQ_HG}
    """)
    if m:
        a(f"""
        v_lshlrev_b32 v{T0}, 3, v{T1}
        v_add_u32 v{T0}, 128, v{T0}
        v_mul_u32_u24 v{SGB}, 40, v{T1}
        v_add_u32 v{SGB}, 96, v{SGB}
        v_cmp_gt_u32 vcc, 32, v2
        v_cndmask_b32 v{T0}, v{SGB}, v{T0}, vcc
        v_add_u32 v{SGA}, v{SGA}, v{T0}
        s_add_u32 s35, s35, {W5_WQ + 4096}
        v_and_b32 v{T0}, 15, v2
        v_cmp_gt_u32 vcc, 12, v{T0}
        v_mov_b32 v{SGB}, 0x7fffffff
        v_cndmask_b32 v{SGB}, v{SGB}, v3, vcc
        """)
    else:
        a(f"""
        v_lshl_add_u32 v{SGA}, v{T1}, 3, v{SGA}
        s_lshl_b32 s40, s3, 6
        s_lshr_b32 s41, s3, 1
        s_lshl_b32 s42, s41, 4
        s_add_u32 s40, s40, s42
        s_lshl_b32 s42, s41, 3
        s_add_u32 s42, s42, 32
        v_add_u32 v{SGA}, s40, v{SGA}
        v_add_u32 v{SGB}, s42, v{SGA}
        s_lshl_b32 s40, s3, 11
        s_lshl_b32 s41, s41, 10
        s_add_u32 s35, s35, s40
        s_add_u32 s35, s35, s41
        s_add_u32 s35, s35, {W5_WQ}
        """)

def gate(a, need):
    L = newlab("gt"); X = newlab("gtx")
    a(f"""
    s_cmp_ge_u32 s50, {need}
    s_cbranch_scc1 {X}
    {L}:
    ds_read_b32 v{VPL}, v{VM} offset:{4*C_WR}
    s_waitcnt lgkmcnt(0)
    v_readfirstlane_b32 s50, v{VPL}
    s_cmp_ge_u32 s50, {need}
    s_cbranch_scc1 {X}
    """)
    budget(a, X)
    a("s_sleep 1")
    a(f"s_branch {L}")
    a.label(X)

def fold_ops(NT, acc):
    R = []
    for t in range(NT):
        for r in range(4): R.append(f"v_fma_f32 v{FT+4*t+r}, v{CSR+4*t+r}, v{STD}, v{acc+4*t+r}")
        for r in range(4): R.append(f"v_mul_f32 v{FT+4*t+r}, v{FT+4*t+r}, v{STD+1}")
        R.append(f"v_cvt_pk_bf16_f32 v{FT+4*t}, v{FT+4*t}, v{FT+4*t+1}")
        R.append(f"v_cvt_pk_bf16_f32 v{FT+4*t+1}, v{FT+4*t+2}, v{FT+4*t+3}")
    R.append(f"v_add_u32 v{WA}, v{SGA}, v{STD+2}")
    if NT == 2: R.append(f"v_add_u32 v{WB}, v{SGB}, v{STD+2}")
    return R

def fr_spin(a, off):
    L = newlab("fr"); X = newlab("frx")
    a(f"""
    {L}:
    ds_read_b32 v{T0}, v{VCD} offset:{off}
    s_waitcnt lgkmcnt(0)
    v_readfirstlane_b32 s40, v{T0}
    s_cmp_ge_u32 s40, 2
    s_cbranch_scc1 {X}
    """)
    budget(a, X)
    a(f"s_branch {L}")
    a.label(X)

def epi_alone(a, NT, acc, stoff, dn, fr=True):
    a(f"ds_read_b128 {vr(STD,4)}, v{VST} offset:{stoff}")
    if fr: fr_spin(a, 4 * (C_FR + dn))
    else: a("s_waitcnt lgkmcnt(0)")
    for t in fold_ops(NT, acc): a(t)
    a(f"ds_write_b64 v{WA}, {vr(FT,2)}")
    if NT == 2: a(f"ds_write_b64 v{WB}, {vr(FT+4,2)}")
    a(f"ds_write_b8 v{VCB}, v{VONE} offset:{4*(C_QD+dn)}")

def phase_k(a, NT):
    vm = Cnt(a, "vmcnt", 63); lg = Cnt(a, "lgkmcnt", 15)
    accs = (AX0, AX1, ACA)
    wl = 3 if NT == 2 else SGB
    if NT == 1: vm.q.append("xs")
    def xreads(s):
        for i in range(3):
            lg.issue(f"ds_read_b128 {vr(XR_+12*(s&1)+4*i,4)}, v{CP_+(s&1)} offset:{18432*i + 1024*(s>>1)}")
    def mma(s):
        if s + 1 < 18: xreads(s + 1)
        vm.wait(rset(4 * NT * s, 4 * NT, 'a'))
        for t in range(NT):
            w = vr(4 * NT * s + 4 * t, 4, 'a')
            c = CSR + 4 * t
            a(f"v_mfma_f32_16x16x32_bf16 {vr(c,4)}, {w}, {vr(ONES,4)}, {'0' if s == 0 else vr(c,4)}")
        for i in range(3):
            lg.wait(rset(XR_ + 12 * (s & 1) + 4 * i, 4))
            for t in range(NT):
                w = vr(4 * NT * s + 4 * t, 4, 'a')
                c = accs[i] + 4 * t
                a(f"v_mfma_f32_16x16x32_bf16 {vr(c,4)}, {w}, {vr(XR_+12*(s&1)+4*i,4)}, {'0' if s == 0 else vr(c,4)}")
    if NT == 1:
        vm.wait("xs")
        a(f"""
        s_lshl_b32 s40, s21, 2
        s_add_u32 s40, s40, s27
        """)
        flag_store(a, 40, FL_XS0, t=64)
        a(f"""
        s_lshl_b32 s42, s30, 6
        s_add_u32 s42, s42, s27
        s_add_u32 s42, s42, {FL_XS0}
        v_and_b32 v64, 15, v2
        v_lshlrev_b32 v64, 2, v64
        L5_xp:
        buffer_load_dword v65, v64, s[4:7], s42 offen sc1
        ds_read_b64 v[66:67], v{VM}
        s_waitcnt vmcnt(0) lgkmcnt(0)
        v_readfirstlane_b32 s40, v66
        v_readfirstlane_b32 s41, v67
        v_cmp_ne_u32 vcc, s{SN}, v65
        s_cmp_eq_u32 s40, 2
        s_cbranch_scc1 L5_fallback
        s_cbranch_vccz L5_xpx
        """)
        budget(a, "L5_xpx")
        a("s_branch L5_xp")
        a.label("L5_xpx")
        vm.q = []
        a("s_sub_u32 s42, s39, 2048")
        for i in range(3):
            vm.issue(f"buffer_load_dwordx4 {vr(PST3+4*i,4)}, v3, s[4:7], s42 offen offset:{2048-1024*i}{BSC}")
    for s in range(18 + LAG):
        if s < 18:
            gate(a, 12 * (s + 1))
            for t in range(NT):
                vm.issue(f"buffer_load_dwordx4 {vr(4*NT*s+4*t,4,'a')}, v{wl}, s[4:7], s35 offen offset:{1024*t}{BSC}")
            if s < 17: a("s_add_u32 s35, s35, 7168")
        if NT == 1 and s == min(LAG, 17):
            vm.wait(rset(PST3, 12))
            for i in range(3):
                fetch_stats(a, 36, PST3 + 4 * i, lg)
                a("s_add_u32 s36, s36, 1")
            lg.issue(f"ds_write_b32 v{VM}, v{VONE} offset:{4*(C_XR+1)}", tag="w")
            lg.wait_all()
        if s == LAG:
            lds_wait(a, C_XR + 2, 3, T0)
            xreads(0)
        if s >= LAG: mma(s - LAG)
        if s == LAG: stamp5(a, 5)
    for i in range(3): a(f"ds_write_b8 v{VCB}, v{VONE} offset:{4*(C_XF+i-3)}")
    stamp5(a, 6)
    tok_wait(a, T0)
    if NT == 2: lds_wait(a, C_XR + 1, 1, T0)
    epi_alone(a, NT, AX0, 0, -3, fr=False)
    epi_alone(a, NT, AX1, 256, -2, fr=False)
    stamp5(a, 7)

def body(a, lg, odd):
    acc, pacc = (ACB, ACA) if odd else (ACA, ACB)
    cur, nxt = (CQ_, CP_) if odd else (CP_, CQ_)
    dn = 0 if odd else 1
    fo = fold_ops(2, pacc)
    Ls = newlab("frs"); Lb = newlab("frb")
    fill = {k: [] for k in range(18)}
    fill[0] = [("lds", f"ds_read_b32 v{T0}, v{VCD} offset:{4*(C_FR+dn-1)}"), ("lds", f"ds_read_b128 {vr(STD,4)}, v{VST} offset:{256*dn}")]
    fill[2] = [("wait", rset(T0) | rset(STD, 4)), ("i", f"v_readfirstlane_b32 s40, v{T0}"), ("i", fo.pop(0)), ("i", "s_cmp_lt_u32 s40, 2")]
    fill[3] = [("i", f"s_cbranch_scc1 {Ls}"), ("lab", Lb)]
    for k in range(3, 10):
        for _ in range(3):
            if fo: fill[k].append(("i", fo.pop(0)))
    fill[8].append(("lds", f"ds_read_b32 v{T1}, v{VCD} offset:{4*(C_XR+dn+1)}"))
    assert not fo or len(fo) <= 2, len(fo)
    fill[10] = [("i", t) for t in fo] + [("lds", f"ds_write_b64 v{WA}, {vr(FT,2)}"), ("lds", f"ds_write_b64 v{WB}, {vr(FT+4,2)}"),
                 ("lds", f"ds_write_b8 v{VCB}, v{VONE} offset:{4*(C_QD+dn-1)}")]
    fill[11] = [("wait", rset(T1)), ("i", f"v_add_u32 v{nxt}, v{XE}, v{T1}"), ("i", f"v_add_u32 v{nxt+1}, v{XO}, v{T1}"), ("i", f"v_readfirstlane_b32 s37, v{T1}")]
    fill[12] = [("lds", f"ds_write_b8 v{VCB}, v{VONE} offset:{4*(C_XF+dn)}")]
    if not odd:
        fill[14] = [("i", f"v_xor_b32 v{VST}, 512, v{VST}"), ("i", f"v_add_u32 v{VCD}, 8, v{VCD}"), ("i", f"v_add_u32 v{VCB}, 8, v{VCB}")]
    for k in range(18):
        x = XR_ + 4 * (k % 6)
        if k % 2 == 0: lg.wait(rset(x, 4) | rset(XR_ + 4 * ((k + 1) % 6), 4))
        f = fill[k]
        def emit(n):
            while f and n > 0:
                kind, v = f.pop(0)
                if kind == "i": a(v)
                elif kind == "lds": lg.issue(v, tag=(Ins(v).dst or "w"))
                elif kind == "wait": lg.wait(v)
                elif kind == "lab": a.label(v); continue
                n -= 1
        for t in range(2):
            a(f"v_mfma_f32_16x16x32_bf16 {vr(acc+4*t,4)}, {vr(8*k+4*t,4,'a')}, {vr(x,4)}, {'0' if k == 0 else vr(acc+4*t,4)}")
            if t == 0: emit(2)
        kk = k + 6
        if kk < 18: lg.issue(f"ds_read_b128 {vr(x,4)}, v{cur+(kk&1)} offset:{1024*(kk>>1)}")
        else: lg.issue(f"ds_read_b128 {vr(x,4)}, v{nxt+(kk&1)} offset:{1024*((kk-18)>>1)}")
        emit(99)
    return (Ls, Lb, 4 * (C_FR + dn - 1))

def xr_spin(a, off, nxt):
    L = newlab("xr"); X = newlab("xrx")
    a(f"""
    {L}:
    ds_read_b32 v{T1}, v{VCD} offset:{off}
    s_waitcnt lgkmcnt(0)
    v_readfirstlane_b32 s37, v{T1}
    s_cmp_lg_u32 s37, 0
    s_cbranch_scc1 {X}
    """)
    budget(a, X)
    a(f"s_branch {L}")
    a.label(X)
    a(f"v_add_u32 v{nxt}, v{XE}, v{T1}")
    a(f"v_add_u32 v{nxt+1}, v{XO}, v{T1}")
    for k in range(6):
        a(f"ds_read_b128 {vr(XR_+4*k,4)}, v{nxt+(k&1)} offset:{1024*(k>>1)}")
    a("s_waitcnt lgkmcnt(0)")

def q_main2(a):
    a(f"""
    v_xor_b32 v{VST}, 512, v{VST}
    s_mov_b32 s32, 3
    """)
    xr_spin(a, 4 * C_XR, CQ_)
    lg = Cnt(a, "lgkmcnt", 15)
    a.label("L5_qo")
    if PROF:
        a("s_add_u32 s38, s32, 8")
        stamp5(a, "s38")
    lg.q = [rset(XR_ + 4 * k, 4) for k in range(6)]
    s1 = body(a, lg, True)
    a(f"""
    s_cmp_eq_u32 s37, 0
    s_cbranch_scc1 L5_qo_slow
    L5_qe:
    """)
    if PROF:
        a("s_add_u32 s38, s32, 9")
        stamp5(a, "s38")
    lg.q = [rset(XR_ + 4 * k, 4) for k in range(6)]
    s2 = body(a, lg, False)
    a(f"""
    s_add_u32 s32, s32, 2
    s_cmp_lg_u32 s37, 0
    s_cbranch_scc1 L5_qo
    """)
    epi_alone(a, 2, ACA, 0, -1)
    xr_spin(a, 4 * C_XR, CQ_)
    a("s_branch L5_qo")
    a.label("L5_qo_slow")
    epi_alone(a, 2, ACB, 256, 0)
    a(f"""
    s_cmp_ge_u32 s32, 15
    s_cbranch_scc1 L5_fin
    """)
    xr_spin(a, 4 * (C_XR + 1), CP_)
    a("s_branch L5_qe")
    for Ls, Lb, off in (s1, s2):
        a.label(Ls)
        fr_spin(a, off)
        a(f"s_branch {Lb}")

FV0, FV1 = 102, 103; PST = 104
SSEG = 54
def fetch_consts(a):
    a(f"""
    v_lshrrev_b32 v{T0}, 3, v2
    v_and_b32 v{T1}, 7, v2
    v_xor_b32 v{T1}, v{T1}, v{T0}
    v_mul_u32_u24 v{FV0}, 2304, v{T0}
    v_lshl_add_u32 v{FV0}, v{T1}, 4, v{FV0}
    v_add_u32 v{FV1}, 1152, v{FV0}
    v_lshrrev_b32 v{WB}, 2, v2
    v_lshlrev_b32 v{WB}, 4, v{WB}
    v_add_u32 v{WB}, {L_STAB}, v{WB}
    s_mov_b32 s10, 32768
    s_mov_b32 s11, 0x00020000
    s_lshl_b32 s39, s30, 13
    s_add_u32 s39, s39, s26
    s_add_u32 s39, s39, {OS_XS + 7*1024}
    """)
    for seg in range(9):
        a(f"s_movk_i32 s{SSEG+seg}, {2688 + 128*seg - 1024*(seg&3)}")

def stats_load(a, sf, dst=PST):
    a(f"""
    s_lshr_b32 s40, s{sf}, 3
    s_mul_i32 s40, s40, {16384 + 8192}
    s_lshl_b32 s41, s{sf}, 10
    s_sub_u32 s40, s40, s41
    s_add_u32 s40, s40, s39
    buffer_load_dwordx4 {vr(dst,4)}, v3, s[4:7], s40 offen{BSC}
    """)

PFL, PFA = 108, 109
def poll_issue(a, sf):
    a(f"""
    s_lshl_b32 s40, s{sf}, 5
    s_sub_u32 s40, s52, s40
    buffer_load_dword v{PFL}, v{PFA}, s[4:7], s40 offen sc1
    """)

def fetch_dma(a, sf, sl=34):
    a(f"""
    s_and_b32 s40, s{sf}, 7
    s_lshl_b32 s41, s23, 3
    s_add_u32 s41, s41, 7
    s_sub_u32 s40, s41, s40
    s_mul_i32 s40, s40, 18432
    s_add_u32 s42, s{P_WS}, {W5_X2}
    s_addc_u32 s43, s{P_WS+1}, 0
    s_cmp_lt_u32 s{sf}, 8
    s_cselect_b64 s[42:43], s[{P_X}:{P_X+1}], s[42:43]
    s_add_u32 s8, s42, s40
    s_addc_u32 s9, s43, 0
    s_sub_u32 s8, s8, 2688
    s_subb_u32 s9, s9, 0
    """)
    for rh in range(2):
        for seg in range(9):
            if seg % 4 == 0:
                a(f"s_add_u32 m0, s{sl}, {9216*rh + 1024*seg}")
                a("s_nop 0")
            a(f"buffer_load_dwordx4 v{FV0+rh}, s[8:11], s{SSEG+seg} offen offset:{1024*(seg&3)}{BSC} lds")

WB2 = 9; PCW = 0
def fetch_stats(a, sf, src=PST, lg=None, tmp=T0):
    a(f"""
    v_add_f32 v{src}, v{src}, v{src+2}
    v_add_f32 v{src+1}, v{src+1}, v{src+3}
    """)
    for m in ("quad_perm:[1,0,3,2]", "quad_perm:[2,3,0,1]"):
        a(f"v_add_f32_dpp v{src}, v{src}, v{src} {m} row_mask:0xf bank_mask:0xf")
        a(f"v_add_f32_dpp v{src+1}, v{src+1}, v{src+1} {m} row_mask:0xf bank_mask:0xf")
    ln_params(a, src, src + 1, src + 2, src + 3)
    a(f"""
    v_mov_b32 v{src+2}, s33
    s_and_b32 s40, s{sf}, 3
    s_lshl_b32 s40, s40, 8
    v_add_u32 v{tmp}, s40, v{WB}
    """)
    t = f"ds_write_b128 v{tmp}, {vr(src,4)}"
    if lg: lg.issue(t, tag="w")
    else: a(t)
    a(f"""
    s_cmp_eq_u32 s{sf}, 7
    s_cselect_b32 s40, {STGS}, 0
    s_add_u32 s33, s33, s40
    s_add_u32 s33, s33, {STGS}
    s_sub_u32 s40, s33, {5*STGS}
    s_cmp_ge_u32 s33, {L_STG + 5*STGS}
    s_cselect_b32 s33, s40, s33
    """)

def w3_init(a):
    fetch_consts(a)
    a(f"""
    s_mov_b32 s36, 0
    s_mov_b32 s33, {L_STG}
    s_mov_b32 s34, {L_XS}
    s_lshl_b32 s52, s30, 8
    s_add_u32 s52, s52, s27
    s_add_u32 s52, s52, {FL_X2}
    v_lshlrev_b32 v{PFA}, 2, v2
    """)

def dma_setup(a, sf):
    a(f"""
    s_and_b32 s40, s{sf}, 7
    s_lshl_b32 s41, s23, 3
    s_add_u32 s41, s41, 7
    s_sub_u32 s40, s41, s40
    s_mul_i32 s40, s40, 18432
    s_add_u32 s42, s{P_WS}, {W5_X2}
    s_addc_u32 s43, s{P_WS+1}, 0
    s_cmp_lt_u32 s{sf}, 8
    s_cselect_b64 s[42:43], s[{P_X}:{P_X+1}], s[42:43]
    s_add_u32 s8, s42, s40
    s_addc_u32 s9, s43, 0
    s_sub_u32 s8, s8, 2688
    s_subb_u32 s9, s9, 0
    """)
def dma1(a, i, sl=34, m0=False):
    rh, seg = divmod(i, 9)
    if seg % 4 == 0 or m0:
        a(f"s_add_u32 m0, s{sl}, {9216*rh + 1024*(seg & ~3)}")
        a("s_nop 0")
    a(f"buffer_load_dwordx4 v{FV0+rh}, s[8:11], s{SSEG+seg} offen offset:{1024*(seg&3)}{BSC} lds")

NPRE = int(os.environ.get("NPRE", "10"))
PT0 = int(os.environ.get("PT0", "-1"))
def wstamp(a, k, sr=32):
    if not PROF or PT0 < 0: return
    a(f"""
    s_sub_u32 s40, s{sr}, {PT0}
    s_lshl_b32 s40, s40, 2
    s_add_u32 s40, s40, {24 + k}
    s_min_u32 s40, s40, 62
    """)
    stamp5(a, "s40")
XA = 72
class Rec:
    def __init__(self): self.L = []
    def __call__(self, text):
        for ln in text.strip("\n").split("\n"):
            if ln.strip(): self.L.append(ln.strip())
    def label(self, n): self.L.append(n + ":")

def sgroups(L):
    G = []
    for t in L:
        if G and t.startswith(("s_addc", "s_subb", "s_cselect", "s_cbranch")): G[-1].append(t)
        else: G.append([t])
    return G

def next_setup(a):
    a(f"""
    s_add_u32 s14, s36, 1
    s_and_b32 s40, s14, 7
    s_lshl_b32 s41, s23, 3
    s_add_u32 s41, s41, 7
    s_sub_u32 s40, s41, s40
    s_mul_i32 s40, s40, 18432
    s_add_u32 s42, s{P_WS}, {W5_X2 - 2688}
    s_addc_u32 s43, s{P_WS+1}, 0
    s_cmp_lt_u32 s14, 8
    s_cselect_b64 s[42:43], s[16:17], s[42:43]
    s_add_u32 s12, s42, s40
    s_addc_u32 s13, s43, 0
    s_lshr_b32 s40, s14, 3
    s_mul_i32 s40, s40, {16384 + 8192}
    s_lshl_b32 s41, s14, 10
    s_sub_u32 s40, s40, s41
    s_add_u32 s15, s40, s39
    """)

def w3_win(a, fetch, comp):
    A0, A1 = 72, 76
    lg = Cnt(a, "lgkmcnt", 15)
    gaps = [[] for _ in range(19)]
    if comp:
        a(f"""
        v_add_u32 v{CP_}, s46, v{XE}
        v_add_u32 v{CP_+1}, s46, v{XO}
        v_mov_b32 v{WA}, s46
        s_and_b32 s40, s32, 3
        s_lshl_b32 s40, s40, 8
        v_add_u32 v{T1}, s40, v{VST}
        s_waitcnt vmcnt(0)
        ds_write_b32 v{VCD}, v{WA} offset:{4*C_XR}
        """)
        if PROF:
            a("s_add_u32 s40, s32, 8")
            stamp5(a, "s40")
        for k in range(18): lg.issue(f"ds_read_b128 {vr(XA+4*k,4,'a')}, v{CP_+(k&1)} offset:{1024*(k>>1)}")
        lg.issue(f"ds_write_b8 v{VCB}, v{VONE} offset:{4*C_XF}", tag="w")
        lg.issue(f"ds_read_b128 {vr(STD,4)}, v{T1}")
        lg.issue(f"ds_read_b32 v{T0}, v{VCD} offset:{4*C_FR}")
        a(f"""
        s_add_u32 s46, s46, 18432
        s_cmp_ge_u32 s46, {L_XS + 3*18432}
        s_cselect_b32 s46, {L_XS}, s46
        """)
    if fetch:
        a(f"buffer_load_dword v{PFL}, v{PFA}, s[4:7], s52 offen sc1")
        a(f"buffer_load_dwordx4 {vr(PST,4)}, v3, s[4:7], s15 offen{BSC}")
        r = Rec(); next_setup(r)
        for i, t in enumerate(sgroups(r.L)): gaps[1 + i // 2] += t
        r = Rec(); fetch_stats(r, 36, tmp=WB2)
        g0 = 12
        gaps[g0] += [f"s_waitcnt vmcnt({g0 + 1})", f"v_cmp_eq_u32 s[44:45], s{SN}, v{PFL}"]
        G = sgroups(r.L)
        per = (len(G) + 5) // 6
        for i, gr in enumerate(G): gaps[g0 + i // per] += [("lds", t) if t.startswith("ds_") else t for t in gr]
        for g in range(18):
            dma1(a, g)
            for it in gaps[g]:
                if isinstance(it, str): a(it)
                elif it[0] == "lds": lg.issue(it[1], tag=(Ins(it[1]).dst or "w"))
        wstamp(a, 1, 36)
        a(f"""
        s_mov_b64 s[8:9], s[12:13]
        v_add_u32 v{CQ_}, 4, v{CQ_}
        s_add_u32 s34, s34, 18432
        s_cmp_ge_u32 s34, {L_XS + 3*18432}
        s_cselect_b32 s34, {L_XS}, s34
        s_add_u32 s36, s36, 1
        """)
    if comp:
        for k in range(18):
            acc = A0 if k % 2 == 0 else A1
            lg.wait(rset(XA + 4 * k, 4, 'a'))
            a(f"v_mfma_f32_16x16x32_bf16 {vr(acc,4)}, {vr(4*k,4,'a')}, {vr(XA+4*k,4,'a')}, {'0' if k < 2 else vr(acc,4)}")
            if k == 15 and fetch: lg.issue(f"ds_read_b32 v{VPL}, v{CQ_} offset:{4*C_XF}")
    elif fetch: lg.issue(f"ds_read_b32 v{VPL}, v{CQ_} offset:{4*C_XF}")
    if comp:
        Lf = newlab("mfr")
        wstamp(a, 2)
        lg.wait(rset(T0) | rset(STD, 4))
        a(f"""
        v_readfirstlane_b32 s40, v{T0}
        s_cmp_ge_u32 s40, 2
        s_cbranch_scc1 {Lf}
        """)
        fr_spin(a, 4 * C_FR)
        a.label(Lf)
        for r in range(4): a(f"v_add_f32 v{A0+r}, v{A0+r}, v{A1+r}")
        for t in fold_ops(1, A0): a(t)
        a(f"""
        ds_write_b64 v{WA}, {vr(FT,2)}
        ds_write_b8 v{VCB}, v{VONE} offset:{4*C_QD}
        v_add_u32 v{VCD}, 4, v{VCD}
        v_add_u32 v{VCB}, 4, v{VCB}
        """)
        wstamp(a, 3)
        a("s_add_u32 s32, s32, 1")
    if fetch:
        a(f"s_waitcnt lgkmcnt({2 if comp else 0})")
        a("s_branch L5_m2")
    else: a("s_branch L5_m")

def w3_main(a):
    a(f"""
    s_sub_u32 s16, s{P_X}, 2688
    s_subb_u32 s17, s{P_X+1}, 0
    s_mov_b32 s36, 2
    """)
    next_setup(a)
    epi_alone(a, 1, ACA, 512, -1, fr=False)
    a(f"""
    s_mov_b32 s36, 3
    s_mov_b64 s[8:9], s[12:13]
    s_mov_b32 s32, 3
    s_mov_b32 s46, {L_XS}
    s_mov_b64 s[44:45], 0
    v_mov_b32 v{CQ_}, v{VM}
    v_mov_b32 v{PFL}, 0
    L5_m:
    ds_read_b32 v{VPL}, v{CQ_} offset:{4*C_XF}
    s_waitcnt lgkmcnt(0)
    L5_m2:
    s_lshl_b32 s40, s36, 3
    s_sub_u32 s40, 120, s40
    s_lshr_b64 s[42:43], s[44:45], s40
    s_cmp_lt_u32 s36, 8
    s_cselect_b32 s42, 0xff, s42
    s_and_b32 s42, s42, 0xff
    s_cmp_ge_u32 s36, 16
    s_cselect_b32 s42, 0, s42
    v_readfirstlane_b32 s40, v{VPL}
    s_cmp_lg_u32 s40, s51
    s_cselect_b32 s42, 0, s42
    s_cmp_lg_u32 s42, 0xff
    s_cbranch_scc1 L5_m_nf
    """)
    wstamp(a, 0, 36)
    a(f"""
    s_cmp_lt_u32 s32, s36
    s_cbranch_scc0 L5_m_f
    """)
    w3_win(a, True, True)
    a.label("L5_m_f")
    w3_win(a, True, False)
    a.label("L5_m_nf")
    a(f"""
    s_cmp_lt_u32 s32, s36
    s_cbranch_scc0 L5_m_idle
    PCW:
    """.replace("PCW:", newlab("pcw") + ":"))
    if PCW:
        pass
    w3_win(a, False, True)
    a(f"""
    L5_m_idle:
    s_cmp_ge_u32 s36, 16
    s_cbranch_scc1 L5_fin
    s_cmp_lt_u32 s36, 8
    s_cbranch_scc1 L5_m_np
    buffer_load_dword v{PFL}, v{PFA}, s[4:7], s52 offen sc1
    s_waitcnt vmcnt(0)
    v_cmp_eq_u32 s[44:45], s{SN}, v{PFL}
    L5_m_np:
    """)
    budget(a, "L5_fin")
    a("s_branch L5_m")

def q_main(a):
    a(f"""
    s_cmp_eq_u32 s3, 3
    s_cbranch_scc1 L5_q3
    """)
    lds_sig(a, C_XR + 2, (8,))
    a(f"""
    s_cmp_eq_u32 s3, 1
    s_cselect_b32 s40, s32, -1
    s_cmp_eq_u32 s40, -1
    s_cbranch_scc1 L5_q_nf
    """)
    rp_flag(a)
    a.label("L5_q_nf")
    q_consts(a, False)
    phase_k(a, 2)
    if STOP == 2: a("s_branch L5_fin")
    q_main2(a)
    a.label("L5_q3")
    x_stats(a)
    a("buffer_store_dwordx2 v[8:9], v10, s[4:7], s46 offen")
    q_consts(a, True)
    w3_init(a)
    phase_k(a, 1)
    if STOP == 2: a("s_branch L5_fin")
    w3_main(a)
```

```python
from k5_base import *
RPV = 50
def rp_issue(a):
    a(f"""
    s_add_u32 s40, s20, 7
    s_and_b32 s40, s40, 7
    s_mul_i32 s40, s40, 27
    s_add_u32 s40, s40, s21
    s_mul_i32 s41, s20, 9
    s_add_u32 s41, s41, s21
    s_mul_i32 s42, s3, 5
    s_add_u32 s41, s41, s42
    s_add_u32 s38, s21, s42
    s_add_u32 s41, s41, {216 - 27}
    s_cmp_lt_u32 s21, 27
    s_cselect_b32 s32, s40, s41
    s_sub_u32 s40, s38, 32
    s_cmp_lt_u32 s40, 4
    s_cselect_b32 s40, s32, -1
    s_cmp_eq_u32 s3, 0
    s_cselect_b32 s32, s32, s40
    s_mul_i32 s33, s3, 18432
    s_add_u32 s33, s33, {L_XS}
    s_cmp_eq_u32 s32, -1
    s_cbranch_scc1 L5_rp_no
    v_mul_u32_u24 v59, 911, v2
    s_mov_b32 s15, 0x00020000
    s_cmp_ge_u32 s32, 216
    s_cbranch_scc1 L5_rp_wo
    s_mov_b64 s[12:13], s[{P_WQKV}:{P_WQKV+1}]
    s_mov_b32 s14, {576*3456}
    s_mul_i32 s36, s32, 171
    s_lshr_b32 s36, s36, 9
    s_mul_i32 s37, s36, 3
    s_sub_u32 s37, s32, s37
    s_mul_i32 s40, s36, {8*3456}
    s_mul_i32 s41, s37, 1152
    s_add_u32 s40, s40, s41
    s_movk_i32 s41, 2304
    s_mov_b32 s42, 16
    s_branch L5_rp_j
    L5_rp_wo:
    s_mov_b64 s[12:13], s[{P_WO}:{P_WO+1}]
    s_mov_b32 s14, {576*1152}
    s_sub_u32 s36, s32, 216
    s_lshr_b32 s40, s36, 2
    s_mul_i32 s40, s40, 36
    s_and_b32 s41, s36, 3
    s_lshl_b32 s42, s41, 3
    s_add_u32 s40, s40, s42
    s_and_b32 s41, s41, 2
    s_lshl_b32 s41, s41, 1
    s_add_u32 s40, s40, s41
    s_sub_u32 s41, s36, 64
    s_mul_i32 s41, s41, 72
    s_add_u32 s41, s41, 16
    s_cmp_ge_u32 s36, 64
    s_cselect_b32 s40, s41, s40
    s_cselect_b32 s41, {32*1152}, 0
    s_mul_i32 s40, s40, 1152
    s_mov_b32 s42, 18
    L5_rp_j:
    s_mov_b32 m0, s33
    """)
    for i in range(9):
        r = RPV + i
        if i: a(f"v_add_u32 v{r}, {64*911*i}, v59")
        a(f"v_lshrrev_b32 v{r}, s42, v{r if i else 59}")
        a(f"v_mad_u32_u24 v{r}, v{r}, s41, v3")
        if i and i % 4 == 0:
            a("s_add_u32 s40, s40, 4096")
            a(f"s_add_u32 m0, s33, {4096*(i>>2)}")
            a("s_nop 0")
        a(f"buffer_load_dwordx4 v{r}, s[12:15], s40 offen offset:{1024*(i&3)} nt lds")
    a.label("L5_rp_no")

def rp_process(a):
    D = 10
    a(f"""
    v_bfe_u32 v8, v2, 2, 2
    v_mul_u32_u24 v8, 1152, v8
    v_add_u32 v8, s33, v8
    v_lshrrev_b32 v9, 4, v2
    v_and_b32 v10, 3, v2
    v_and_b32 v11, 15, v2
    s_lshr_b32 s42, s36, 2
    s_and_b32 s43, s36, 3
    s_cmp_ge_u32 s32, 216
    s_cbranch_scc1 L5_rq_wo
    """)
    for wo in (0, 1):
        lg = Cnt(a, "lgkmcnt", 15)
        if wo:
            a(f"""
            L5_rq_wo:
            v_lshl_add_u32 v4, v9, 5, v8
            v_lshl_add_u32 v4, v10, 3, v4
            v_lshrrev_b32 v5, 1, v10
            v_lshl_add_u32 v5, v9, 1, v5
            v_mul_u32_u24 v5, 144, v5
            v_and_b32 v6, 1, v2
            v_lshl_add_u32 v5, v6, 3, v5
            v_add_u32 v5, v5, v8
            v_lshlrev_b32 v6, 10, v9
            v_lshl_add_u32 v6, v11, 4, v6
            v_lshrrev_b32 v7, 3, v2
            v_mul_u32_u24 v7, {WOQ_CG}, v7
            v_and_b32 v8, 7, v2
            v_lshl_add_u32 v7, v8, 4, v7
            """)
        else:
            a(f"""
            v_mul_u32_u24 v4, 288, v9
            v_lshl_add_u32 v4, v10, 3, v4
            v_add_u32 v4, v4, v8
            v_lshl_add_u32 v5, v9, 2, v10
            v_mul_u32_u24 v5, 72, v5
            v_add_u32 v5, v5, v8
            v_mul_u32_u24 v6, {4*WQ_HG}, v9
            v_lshl_add_u32 v6, v11, 4, v6
            v_lshrrev_b32 v7, 2, v2
            v_mul_u32_u24 v7, {WQ_HG}, v7
            v_lshl_add_u32 v7, v10, 4, v7
            """)
        def rd(t):
            if t < 8:
                off = 144 * t if wo else 72 * (t >> 1) + 40 * (t & 1)
                for h in range(2): lg.issue(f"ds_read_b64_tr_b16 {vr(D+4*t+2*h,2)}, v4 offset:{4608*h + off}")
            else:
                for h in range(2): lg.issue(f"ds_read_b64_tr_b16 {vr(D+4*t+2*h,2)}, v5 offset:{4608*h + (128 if wo else 32)}")
        a("s_waitcnt vmcnt(0)")
        stamp5(a, 4)
        for t in range(7): rd(t)
        if wo:
            a(f"""
            s_mul_i32 s44, s42, 4608
            s_add_u32 s44, s44, {W5_WOQ}
            s_lshl_b32 s45, s43, 7
            s_add_u32 s45, s45, s44
            s_add_u32 s45, s45, 4096
            s_lshl_b32 s43, s43, 8
            s_add_u32 s44, s44, s43
            """)
        else:
            a(f"""
            s_mul_i32 s44, s42, 7168
            s_lshl_b32 s43, s43, 8
            s_add_u32 s44, s44, s43
            s_add_u32 s44, s44, {W5_WQ}
            s_lshl_b32 s45, s37, 6
            s_add_u32 s45, s45, s44
            s_add_u32 s45, s45, 4096
            s_lshl_b32 s46, s37, 11
            s_lshr_b32 s47, s37, 1
            s_lshl_b32 s47, s47, 10
            s_add_u32 s44, s44, s46
            s_add_u32 s44, s44, s47
            """)
        for t in range(9):
            lg.wait(rset(D + 4 * t, 4))
            if t < 8: a(f"buffer_store_dwordx4 {vr(D+4*t,4)}, v6, s[4:7], s44 offen offset:{0 if wo else 1024*(t&1)} sc1")
            else: a(f"buffer_store_dwordx4 {vr(D+4*t,4)}, v7, s[4:7], s45 offen sc1")
            if t < 2: rd(7 + t)
            if wo:
                if t < 7: a(f"s_add_u32 s44, s44, {WOQ_CG}")
            elif t & 1 and t < 7: a(f"s_add_u32 s44, s44, {WQ_HG}")
        if not wo: a("s_branch L5_rq_j")
    a.label("L5_rq_j")

def rp_flag(a):
    a(f"""
    s_lshl_b32 s40, s38, 2
    s_add_u32 s40, s40, s27
    s_cmp_ge_u32 s38, 27
    s_cselect_b32 s41, 20, 0
    s_add_u32 s40, s40, s41
    """)
    flag_store(a, 40, FL_WL)
```

```python
from gen_common import *
W5_G = 0x0
W5_YT = 0x500000
W5_X2 = 0x800000
W5_OS = 0xB00000
OS_ST = 589824
OS_XS = OS_ST + 65536
OS_G = OS_XS + 32768
W5_HL = 0x1100000
W5_FL = 0x1300000
FL_G = 0
FL_XS0 = 128
FL_O = 256
FL_X2 = 1280
FL_WL = 1792
FL_U = 2048
W5_FG = 0x1310000
FG_R = 0
FG_Y = 4096
HL_FLAG = 3968
W5_WQ = 0x1400000
WQ_HG = 18 * 7 * 1024
W5_WOQ = 0x1700000
WOQ_CG = 18 * 4608
W5_PROF = 0x2800000
W5_TOT = 0x3000000
CS_ = 4160; FREG = 4 * CS_
L_CV = 0; CH = FREG + 4608
L_XS = 82944
L_STG = 138240
L_KV = L_STG; KVS = 10080
RS = 240; STGS = 3840
L_MISC = 159744
L_STAB = L_MISC + 1024
LDS5 = 163840
C_TOK = 0; C_ROLE = 1; C_NON = 2; C_CVD = 3; C_GO = 4; C_WR = 5; C_KVL = 6; C_YD = 7; C_WOD = 13; C_KVD = 14
C_XR = 16
C_XF = 36
C_QD = 56
C_FR = 76
NCNT = 112
```

```python
import sys
from gen_common import *
from gen import HEADER
from k5_base import *
from k5_conv import *
from k5_rp import *
from k5_q import *

def gen_k5(a):
    name = NAME + "_kernel"
    head(a, name)
    a(f"""
    s_sub_u32 s31, s3, 4
    s_cmp_eq_u32 s3, 7
    s_cbranch_scc1 L5_w7
    """)
    kv_weights(a)
    a(f"""
    s_cmp_ge_u32 s3, 4
    s_cbranch_scc1 L5_a
    s_cmp_eq_u32 s3, 3
    s_cbranch_scc1 L5_w3
    """)
    a(f"""
    s_mov_b32 s32, -1
    s_mov_b32 s33, {L_XS + 2*18432}
    s_cmp_eq_u32 s3, 2
    s_cbranch_scc1 L5_rp_no
    """)
    rp_issue(a)
    fetch_consts(a)
    a(f"""
    s_barrier
    s_cmp_eq_u32 s32, -1
    s_cbranch_scc1 L5_q_nou
    """)
    rp_process(a)
    a(f"""
    v_mov_b32 v8, 1
    ds_write_b32 v{VM}, v8 offset:{4*C_GO}
    """)
    fetch_dma(a, 3, 33)
    a(f"""
    s_cmp_lg_u32 s3, 0
    s_cbranch_scc1 L5_kv
    """)
    non_wait(a)
    a("s_waitcnt vmcnt(18)")
    rp_flag(a)
    stamp5(a, 8)
    a("s_branch L5_kv")
    a.label("L5_q_nou")
    lds_wait(a, C_GO, 1, 8, sleep=1)
    fetch_dma(a, 3, 33)
    a("s_waitcnt vmcnt(18)")
    a("s_branch L5_kv")
    a.label("L5_w3")
    a("s_barrier")
    lds_wait(a, C_GO, 1, 8, sleep=1)
    x_rows_issue(a)
    a("s_waitcnt vmcnt(9)")
    a("s_branch L5_kv")
    a.label("L5_w7")
    nonce_write(a)
    a("s_barrier")
    poller(a)
    a("s_branch L5_aux")
    a.label("L5_a")
    a(f"""
    s_cmp_eq_u32 s3, 6
    s_cbranch_scc1 L5_w6
    """)
    a("s_barrier")
    kv_issue(a)
    a(f"""
    s_cmp_ge_u32 s21, 24
    s_cbranch_scc1 L5_a_nc
    """)
    d_load(a)
    conv_pads(a)
    a(f"""
    L5_a_nc:
    s_waitcnt vmcnt(0)
    """)
    lds_sig(a, C_KVL, (8,))
    a("s_branch L5_kv")
    a.label("L5_w6")
    a(f"""
    s_cmp_ge_u32 s21, 24
    s_cbranch_scc1 L5_a_nc6
    """)
    d_load(a)
    conv_pads(a)
    a("s_barrier")
    lds_wait(a, C_GO, 1, 8, sleep=1)
    ssm_issue(a)
    a(f"""
    s_waitcnt vmcnt(12)
    s_branch L5_kv
    L5_a_nc6:
    s_barrier
    s_waitcnt vmcnt(0)
    """)
    a.label("L5_kv")
    kv_section(a)
    a(f"""
    s_cmp_lt_u32 s3, 4
    s_cbranch_scc1 L5_q
    s_cmp_ge_u32 s21, 24
    s_cbranch_scc1 L5_aux
    """)
    conv(a)
    if STOP <= 2: conv_flag(a)
    a.label("L5_aux")
    if STOP > 2:
        from k5_aux import aux_main
        aux_main(a)
    else: tok_wait(a)
    a("s_branch L5_fin")
    a.label("L5_q")
    q_main(a)
    a.label("L5_fin")
    stamp_dump(a)
    a.label("L5_end")
    a.label("L5_codeend")
    a("s_endpgm")
    return dict(name=name, vgpr=256, accum=112, grid=256, block=512, lds=LDS5)

def build1(path):
    a = Asm()
    i = gen_k5(a)
    body = a.finish()
    s = HEADER
    s += f"; @launch grid=({i['grid']},1,1) block=({i['block']},1,1) lds={i['lds']}\n"
    s += '.amdgcn_target "amdgcn-amd-amdhsa--gfx950"\n.text\n'
    s += body
    s += '.section .rodata,"a"\n'
    s += kernel_desc(i["name"], i["vgpr"], i.get("accum"))
    open(path, "w").write(s)
    print("wrote", path, len(s), "bytes; nops inserted:", a.nnop)

if __name__ == "__main__":
    build1(sys.argv[1] if len(sys.argv) > 1 else "v5.s")
```

```python
from k5_base import *
from k5_conv import conv_flag

YR = 80
RES = 100
VRM = 110
VYF, VYA = 78, 79
PROF2 = int(os.environ.get('PROF2', '0'))
PFL2 = int(os.environ.get('PFL2', '0'))
OSC = os.environ.get('OSC', '')
LANE32 = "s[50:51]"

def astamp(a, k):
    if not PROF: return
    a(f"s_lshl_b32 s41, s32, 3")
    a(f"s_add_u32 s41, s41, {32 + k}")
    stamp5(a, "s41")

def slot_of(a, sd, sz, add):
    a(f"""
    s_add_u32 s40, s{sz}, {add}
    s_mul_i32 s41, s40, 205
    s_lshr_b32 s41, s41, 10
    s_mul_i32 s41, s41, 5
    s_sub_u32 s40, s40, s41
    s_mul_i32 s40, s40, {STGS}
    s_add_u32 s{sd}, s40, {L_STG}
    """)

def byte_wait(a, vaddr, t, val="s49"):
    L = newlab("bw"); X = newlab("bwx")
    a(f"""
    {L}:
    ds_read_b32 v{t}, v{vaddr}
    s_waitcnt lgkmcnt(0)
    v_readfirstlane_b32 s40, v{t}
    s_cmp_eq_u32 s40, {val}
    s_cbranch_scc1 {X}
    """)
    budget(a, X)
    a(f"s_branch {L}")
    a.label(X)

def wo_load(a):
    a(f"""
    s_cmp_lt_u32 s21, 24
    s_cselect_b32 s42, 4, 1
    """)
    lds_wait(a, C_CVD, "s42", 8)
    lds_wait(a, C_WI, 4, 8, sleep=2)
    a(f"""
    s_mul_i32 s40, s24, {WOQ_CG}
    s_mul_i32 s41, s31, 27648
    s_add_u32 s40, s40, s41
    s_add_u32 s40, s40, {W5_WOQ}
    s_mov_b32 m0, s41
    """)
    for i in range(27):
        if i and i % 4 == 0:
            a("s_add_u32 s41, s41, 4096")
            a("s_add_u32 s40, s40, 4096")
            a("s_mov_b32 m0, s41")
        a(f"buffer_load_dwordx4 v3, s[4:7], s40 offen offset:{1024*(i&3)}{BSC} lds")

def y_loads(a, vm=None):
    a(f"""
    v_lshrrev_b32 v{VYA}, 4, v2
    v_lshlrev_b32 v{VYA}, 9, v{VYA}
    v_and_b32 v{VYF}, 15, v2
    v_lshl_add_u32 v{VYA}, v{VYF}, 1, v{VYA}
    s_add_u32 s42, s17, 4096
    s_add_u32 s43, s17, 8192
    """)
    for t in range(5):
        if t == 4: a(f"s_mov_b64 exec, {LANE32}")
        for r in range(4):
            so = (17, 42, 43)[t >> 1]
            tx = f"buffer_load_short_d16_hi v{YR+4*t+r}, v{VYA}, s[4:7], s{so} offen offset:{(16*(t&1)+r)*128}{BSC}"
            if vm: vm.issue(tx)
            else: a(tx)
    a("s_mov_b64 exec, -1")

def attention(a):
    lg = Cnt(a, "lgkmcnt", 15)
    Q = 8; KV = 18; S_ = 48; T = 60; P = 68; O = 48; PK = 8
    B = (5, 6, 7); A = (74, 75, 76)
    V = (5, 6, 7); VQ = (74, 75, 76)
    slot_of(a, 12, 38, 0); slot_of(a, 13, 38, 1); slot_of(a, 14, 38, 2)
    a(f"""
    v_mov_b32 v8, s12
    v_mov_b32 v9, s13
    v_mov_b32 v10, s14
    v_cndmask_b32 v11, v8, v9, s[52:53]
    v_cndmask_b32 v12, v9, v10, s[52:53]
    v_and_b32 v13, 15, v2
    v_mul_u32_u24 v13, {RS}, v13
    v_add_u32 v{A[2]}, v11, v13
    v_add_u32 v{A[0]}, v12, v13
    v_subrev_u32 v13, {4*RS}, v{A[2]}
    v_add_u32 v14, {4*RS}, v{A[0]}
    v_cndmask_b32 v{A[1]}, v14, v13, s[60:61]
    v_and_b32 v13, 32, v2
    v_add_u32 v{B[0]}, v13, v{A[0]}
    v_add_u32 v{B[1]}, v13, v{A[1]}
    v_add_u32 v{B[2]}, v13, v{A[2]}
    v_and_b32 v13, 3, v2
    v_bfe_u32 v14, v2, 2, 2
    v_lshl_add_u32 v13, v13, 2, v14
    v_mul_u32_u24 v13, {RS}, v13
    v_add_u32 v73, v11, v13
    v_add_u32 v71, v12, v13
    v_subrev_u32 v13, {4*RS}, v73
    v_add_u32 v14, {4*RS}, v71
    v_cndmask_b32 v72, v14, v13, s[62:63]
    v_add_u32 v77, s38, v2
    v_add_u32 v77, 5, v77
    v_cmp_le_u32 vcc, 9, v77
    v_subb_co_u32 v13, vcc, v77, 0, vcc
    v_cmp_eq_u32 vcc, 8, v77
    v_cndmask_b32 v13, v13, 20, vcc
    v_lshl_add_u32 v77, v13, 2, v{VM}
    s_sub_u32 s40, s38, s32
    s_min_u32 s41, s31, 1
    s_add_u32 s40, s40, s41
    s_add_u32 s40, s40, {1 + C_QD}
    v_mov_b32 v13, s40
    v_lshl_add_u32 v13, v13, 2, v{VM}
    v_and_b32 v4, 4, v2
    v_cndmask_b32 v14, 8, 0, s[52:53]
    v_add_u32 v4, v4, v14
    """)
    a(f"""
    s_cmp_lg_u32 s31, 0
    s_cbranch_scc1 L5_nhr
    s_lshl_b32 s40, s32, 4
    s_sub_u32 s40, {4*(C_FR+20)}, s40
    v_add_u32 v14, s40, v{VM}
    """)
    byte_wait(a, 14, 15, "2")
    a(f"""
    s_cmp_lg_u32 s23, 0
    s_cbranch_scc1 L5_hr1
    v_mov_b32 v16, 0
    v_mov_b32 v17, 0
    v_mov_b32 v18, 0
    v_mov_b32 v19, 0
    v_add_u32 v14, s14, v3
    ds_write_b128 v14, v[16:19]
    ds_write_b128 v14, v[16:19] offset:1024
    ds_write_b128 v14, v[16:19] offset:2048
    s_mov_b32 exec_hi, 0xffff
    ds_write_b128 v14, v[16:19] offset:3072
    s_mov_b64 exec, -1
    s_branch L5_nhr
    L5_hr1:
    s_sub_u32 s43, s15, {16*4096}
    v_mov_b32 v14, 0
    """)
    vpoll(a, 14, 43, 15, imm=HL_FLAG)
    a(f"""
    s_mov_b32 m0, s14
    s_nop 0
    buffer_load_dwordx4 v3, s[4:7], s43 offen{BSC} lds
    buffer_load_dwordx4 v3, s[4:7], s43 offen offset:1024{BSC} lds
    buffer_load_dwordx4 v3, s[4:7], s43 offen offset:2048{BSC} lds
    s_mov_b32 exec_hi, 0xffff
    buffer_load_dwordx4 v3, s[4:7], s43 offen offset:3072{BSC} lds
    s_mov_b64 exec, -1
    s_waitcnt vmcnt(0)
    L5_nhr:
    s_cmp_lg_u32 s32, 0
    s_cbranch_scc1 L5_nyp
    s_mov_b32 exec_lo, 0xffffff
    s_mov_b32 exec_hi, 0
    buffer_load_dword v{VYF}, v{VYA}, s[4:7], 0 offen sc1
    s_mov_b64 exec, -1
    L5_nyp:
    """)
    byte_wait(a, 13, 15)
    astamp(a, 0)
    lg.issue(f"ds_read_b128 {vr(Q,4)}, v{B[2]}")
    for c in range(3): lg.issue(f"ds_read_b128 {vr(KV+10*c,4)}, v{B[c]} offset:64")
    lg.issue(f"ds_read_b128 {vr(Q+4,4)}, v{B[2]} offset:16")
    for c in range(3): lg.issue(f"ds_read_b128 {vr(KV+10*c+4,4)}, v{B[c]} offset:80")
    lg.issue(f"ds_read_b64 {vr(Q+8,2)}, v{A[2]} offset:128")
    for c in range(3): lg.issue(f"ds_read_b64 {vr(KV+10*c+8,2)}, v{A[c]} offset:136")
    a(f"""
    v_lshrrev_b32 v70, 5, v2
    v_mul_u32_u24 v70, 40, v70
    v_add_u32 v{V[0]}, v70, v71
    v_add_u32 v{V[1]}, v70, v72
    v_add_u32 v{V[2]}, v70, v73
    v_mov_b32 v{VQ[0]}, v71
    v_mov_b32 v{VQ[1]}, v72
    v_mov_b32 v{VQ[2]}, v73
    """)
    for kk in range(5):
        if kk == 4:
            lg.wait(rset(Q + 8, 2))
            a(f"v_cndmask_b32 v{Q+8}, 0, v{Q+8}, {LANE32}")
            a(f"v_cndmask_b32 v{Q+9}, v{Q+9}, 0, {LANE32}")
        for c in range(3):
            lg.wait(rset(KV + 10 * c + 2 * kk, 2) | rset(Q + 2 * kk, 2))
            cin = "0" if kk == 0 else vr(S_ + 4 * c, 4)
            a(f"v_mfma_f32_4x4x4_16b_bf16 {vr(S_+4*c,4)}, {vr(KV+10*c+2*kk,2)}, {vr(Q+2*kk,2)}, {cin}")
    for c in range(3):
        for dg in range(5):
            if dg < 4: lg.issue(f"ds_read_b64_tr_b16 {vr(KV+6*dg+2*c,2)}, v{V[c]} offset:{144 + 8*dg}")
            else: lg.issue(f"ds_read_b64_tr_b16 {vr(KV+6*dg+2*c,2)}, v{VQ[c]} offset:176")
    masks = {1: 54, 2: 56, 3: 58}
    for m in (1, 2, 3):
        a(f"v_cndmask_b32 v{S_+m}, v{S_+m+8}, v{S_+m}, s[{masks[m]}:{masks[m]+1}]")
    lr = [S_ + i for i in range(1, 9)]
    TT = [T, T + 1, T + 2, T + 3]
    round_pairs(a, lr, TT)
    for r in lr: a(f"v_mul_f32 v{r}, {f2u(18 ** -0.5):#x}, v{r}")
    round_pairs(a, lr, TT)
    L = newlab("nomask")
    a(f"""
    s_or_b32 s40, s23, s31
    s_cmp_lg_u32 s40, 0
    s_cbranch_scc1 {L}
    v_mov_b32 v{T}, 0xce6e0000
    """)
    for m in (1, 2, 3):
        a(f"v_mov_b32 v{T+1}, {m+8}")
        a(f"v_mov_b32 v{T+2}, {m}")
        a(f"v_cndmask_b32 v{T+1}, v{T+1}, v{T+2}, s[{masks[m]}:{masks[m]+1}]")
        a(f"v_add_u32 v{T+1}, v{T+1}, v4")
        a(f"v_cmp_le_u32 vcc, 8, v{T+1}")
        a(f"v_cndmask_b32 v{S_+m}, v{T}, v{S_+m}, vcc")
    for sg in range(4, 8):
        a(f"v_cmp_le_u32 vcc, {8-sg}, v4")
        a(f"v_cndmask_b32 v{S_+sg}, v{T}, v{S_+sg}, vcc")
    a.label(L)
    a("s_nop 1")
    a(f"""
    v_max3_f32 v{T}, v{lr[0]}, v{lr[1]}, v{lr[2]}
    v_max3_f32 v{T+1}, v{lr[3]}, v{lr[4]}, v{lr[5]}
    v_max3_f32 v{T}, v{T}, v{lr[6]}, v{lr[7]}
    v_max_f32 v{T}, v{T}, v{T+1}
    """)
    for r in lr: a(f"v_sub_f32 v{r}, v{r}, v{T}")
    for r in lr: a(f"v_mul_f32 v{r}, {f2u(1.4426950408889634):#x}, v{r}")
    for r in lr: a(f"v_exp_f32 v{r}, v{r}")
    a(f"""
    v_add_f32 v{T}, v{lr[0]}, v{lr[1]}
    v_add_f32 v{T+1}, v{lr[2]}, v{lr[3]}
    v_add_f32 v{T+2}, v{lr[4]}, v{lr[5]}
    v_add_f32 v{T+3}, v{lr[6]}, v{lr[7]}
    v_add_f32 v{T}, v{T}, v{T+1}
    v_add_f32 v{T+2}, v{T+2}, v{T+3}
    v_add_f32 v{T}, v{T}, v{T+2}
    v_rcp_f32 v{T}, v{T}
    """)
    for r in lr: a(f"v_mul_f32 v{r}, v{r}, v{T}")
    for m in (1, 2, 3):
        a(f"v_cndmask_b32 v{S_+m+8}, v{S_+m}, 0, s[{masks[m]}:{masks[m]+1}]")
        a(f"v_cndmask_b32 v{S_+m}, 0, v{S_+m}, s[{masks[m]}:{masks[m]+1}]")
    a(f"v_cvt_pk_bf16_f32 v{P}, 0, v{S_+1}")
    for i in range(1, 6):
        a(f"v_cvt_pk_bf16_f32 v{P+i}, v{S_+2*i}, v{S_+2*i+1}")
    for c in range(3):
        for dg in range(5):
            lg.wait(rset(KV + 6 * dg + 2 * c, 2))
            cin = "0" if c == 0 else vr(O + 4 * dg, 4)
            a(f"v_mfma_f32_4x4x4_16b_bf16 {vr(O+4*dg,4)}, {vr(KV+6*dg+2*c,2)}, {vr(P+2*c,2)}, {cin}")
    a(f"""
    s_cmp_lg_u32 s31, 3
    s_cbranch_scc1 L5_nhs
    v_add_u32 v4, s12, v3
    ds_read_b128 v[18:21], v4
    ds_read_b128 v[22:25], v4 offset:1024
    ds_read_b128 v[26:29], v4 offset:2048
    ds_read_b128 v[30:33], v4 offset:3072
    s_waitcnt lgkmcnt(0)
    buffer_store_dwordx4 v[18:21], v3, s[4:7], s15 offen sc1
    buffer_store_dwordx4 v[22:25], v3, s[4:7], s15 offen offset:1024 sc1
    buffer_store_dwordx4 v[26:29], v3, s[4:7], s15 offen offset:2048 sc1
    s_mov_b32 exec_hi, 0xffff
    buffer_store_dwordx4 v[30:33], v3, s[4:7], s15 offen offset:3072 sc1
    L5_nhs:
    s_mov_b64 exec, 7
    v_cndmask_b32 v76, 1, 2, s[18:19]
    ds_add_u32 v77, v76 offset:{4*C_FR}
    s_mov_b64 exec, -1
    """)
    a(f"""
    v_and_b32 v5, 15, v2
    v_lshlrev_b32 v5, 4, v5
    v_add_u32 v6, 18432, v5
    v_cndmask_b32 v5, v6, v5, s[52:53]
    v_lshrrev_b32 v7, 5, v2
    v_lshl_add_u32 v6, v7, 9, v5
    v_lshl_add_u32 v5, v7, 2, v5
    s_lshl_b32 s40, s22, 10
    s_add_u32 s43, s33, s40
    s_lshr_b32 s40, s22, 1
    s_lshl_b32 s40, s40, 8
    s_and_b32 s41, s22, 1
    s_lshl_b32 s41, s41, 3
    s_add_u32 s40, s40, s41
    s_add_u32 s44, s33, s40
    s_add_u32 s44, s44, 16384
    """)
    for j in range(10):
        a(f"v_cvt_pk_bf16_f32 v{PK+j}, v{O+2*j}, v{O+2*j+1}")
    a(f"""
    v_cndmask_b32 v{PK+8}, v{PK+9}, v{PK+8}, {LANE32}
    buffer_store_dwordx4 {vr(PK,4)}, v6, s[4:7], s43 offen
    buffer_store_dwordx4 {vr(PK+4,4)}, v6, s[4:7], s43 offen offset:256
    buffer_store_dword v{PK+8}, v5, s[4:7], s44 offen
    s_lshl_b32 s40, s22, 2
    s_add_u32 s45, s34, s40
    """)

X = 8; AC = 28; T_ = 48; TT = [68, 69, 70, 71]; ST = 72; NW = 10; WF = 72
def p_mma(a, with_y):
    vm = Cnt(a, "vmcnt", 63); lg = Cnt(a, "lgkmcnt", 15)
    vm.q = [rset(4 * s, 4, 'a') for s in range(18)]
    if with_y: y_loads(a, vm)
    def wread(f):
        s, t = divmod(f, 5)
        reg = WF + 4 * (f % NW)
        h, s = divmod(s, 9)
        if t < 4: return f"ds_read_b128 {vr(reg,4,'a')}, v{4+h} offset:{s*4608 + 1024*t}"
        return f"ds_read_b128 {vr(reg,4,'a')}, v{6+h} offset:{s*4608}"
    lg.q = [rset(WF + 4 * f, 4, 'a') for f in range(NW)]
    for f in range(90):
        s, t = divmod(f, 5)
        reg = WF + 4 * (f % NW)
        if t == 0: vm.wait(rset(4 * s, 4, 'a'))
        if t == 0 and s in (0, 6, 12, 17) and PROF2:
            a(f"s_lshl_b32 s41, s32, 2")
            a(f"s_add_u32 s41, s41, {48 + (0,6,12,17).index(s)}")
            stamp5(a, "s41")
        lg.wait(rset(reg, 4, 'a'))
        cin = "0" if s == 0 else vr(AC + 4 * t, 4)
        a(f"v_mfma_f32_16x16x32_bf16 {vr(AC+4*t,4)}, {vr(reg,4,'a')}, {vr(4*s,4,'a')}, {cin}")
        if f + NW < 90: lg.issue(wread(f + NW))
    return wread

def unpack(a, dst, src, n):
    for i in range(n):
        a(f"v_lshlrev_b32 v{dst+2*i}, 16, v{src+i}")
        a(f"v_and_b32 v{dst+2*i+1}, 0xffff0000, v{src+i}")
def pack(a, dst, src, n):
    for i in range(n): a(f"v_cvt_pk_bf16_f32 v{dst+i}, v{src+2*i}, v{src+2*i+1}")
def pk(a, op, dst, x, y, n, bc=False):
    for i in range(n):
        yy = vr(y, 2) if bc else vr(y + 2 * i, 2)
        a(f"v_pk_{op}_f32 {vr(dst+2*i,2)}, {vr(x+2*i,2)}, {yy}" + (f" op_sel:[0,{bc-1}] op_sel_hi:[1,{bc-1}]" if bc else ""))
def stats(a, src):
    for i in range(10):
        c = "0" if i < 2 else f"v{ST+(i&1)*2}"
        c2 = "0" if i < 2 else f"v{ST+(i&1)*2+1}"
        a(f"v_dot2_f32_bf16 v{ST+(i&1)*2}, v{src+i}, s48, {c}")
        a(f"v_dot2_f32_bf16 v{ST+(i&1)*2+1}, v{src+i}, v{src+i}, {c2}")
    a(f"v_pk_add_f32 {vr(ST,2)}, {vr(ST,2)}, {vr(ST+2,2)}")
    xlane_sum(a, [ST, ST + 1], ST + 2)

def p_phase(a):
    a(f"""
    v_mov_b32 v4, v3
    v_add_u32 v5, {9*4608}, v3
    v_lshrrev_b32 v6, 4, v2
    v_and_b32 v7, 7, v2
    v_lshl_add_u32 v6, v6, 3, v7
    v_lshlrev_b32 v6, 4, v6
    v_add_u32 v6, 4096, v6
    v_add_u32 v7, {9*4608}, v6
    v_and_b32 v{ST}, 15, v2
    v_lshlrev_b32 v{ST}, 2, v{ST}
    s_mul_i32 s42, s25, 18432
    s_add_u32 s42, s42, s33
    s_waitcnt vmcnt(0)
    """)
    flag_store(a, 45, t=ST + 2)
    a(f"""
    s_cmp_lg_u32 s31, 3
    s_cbranch_scc1 L5_nhf
    """)
    flag_store(a, 15, HL_FLAG, True, t=ST + 2)
    a.label("L5_nhf")
    astamp(a, 1)
    unpack(a, X, RES, 10)
    a(f"""
    s_cmp_lg_u32 s32, 0
    s_cbranch_scc1 L5_p1
    v_cmp_ne_u32 vcc, s{SN}, v{VYF}
    s_and_b32 s40, vcc_lo, 0xffffff
    s_cselect_b32 s37, 0, 1
    """)
    lds_wait(a, C_WOD, 3, ST + 1)
    a.label("L5_p1")
    vpoll(a, ST, 34, ST + 1)
    astamp(a, 2)
    for s in range(18):
        if s % 4 == 0 and s: a("s_add_u32 s42, s42, 4096")
        a(f"buffer_load_dwordx4 {vr(4*s,4,'a')}, v3, s[4:7], s42 offen offset:{1024*(s%4)}{BSC}")
    class Dummy:
        def __call__(self, t): pass
    wread = p_mma(Dummy(), False)
    for f in range(NW): a(wread(f))
    a(f"""
    s_cmp_eq_u32 s37, 1
    s_cbranch_scc1 L5_py
    """)
    p_mma(a, False)
    a("s_branch L5_pj")
    a.label("L5_py")
    a("s_mov_b32 s37, 2")
    p_mma(a, True)
    a.label("L5_pj")
    astamp(a, 3)
    for r in range(4): a(f"v_cndmask_b32 v{AC+16+r}, 0, v{AC+16+r}, {LANE32}")
    pack(a, T_, AC, 10)
    unpack(a, AC, T_, 10)
    pk(a, "add", X, X, AC, 10)
    pack(a, T_, X, 10)
    stats(a, T_)
    a(f"""
    v_mov_b32 v{ST+2}, s{SN}
    v_mov_b32 v{ST+3}, 0
    s_lshl_b32 s40, s24, 8
    s_add_u32 s40, s40, s16
    s_mov_b64 exec, 0xffff
    buffer_store_dwordx4 {vr(ST,4)}, v3, s[4:7], s40 offen
    s_mov_b64 exec, -1
    """)
    unpack(a, X, T_, 10)
    a(f"""
    s_cmp_lg_u32 s37, 0
    s_cbranch_scc1 L5_py2
    s_mov_b32 s37, 2
    v_min_u32 v4, 23, v2
    v_lshlrev_b32 v4, 7, v4
    s_lshl_b32 s42, s24, 12
    s_add_u32 s42, s42, {W5_FG + FG_Y}
    """)
    vpoll(a, 4, 42, 5)
    y_loads(a)
    a.label("L5_py2")
    L = newlab("sp"); LX = newlab("spx")
    a(f"""
    {L}:
    buffer_load_dwordx4 {vr(ST,4)}, v3, s[4:7], s16 offen sc1
    buffer_load_dwordx4 {vr(ST+4,4)}, v3, s[4:7], s16 offen offset:1024 sc1
    s_waitcnt vmcnt(0)
    v_cmp_ne_u32 vcc, s{SN}, v{ST+2}
    v_cmp_ne_u32 s[42:43], s{SN}, v{ST+6}
    s_or_b64 vcc, vcc, s[42:43]
    s_cbranch_vccz {LX}
    """)
    budget(a, LX)
    a(f"s_branch {L}")
    a.label(LX)
    astamp(a, 4)
    a(f"v_pk_add_f32 {vr(ST,2)}, {vr(ST,2)}, {vr(ST+4,2)}")
    xlane_sum(a, [ST, ST + 1], ST + 2)
    ln_params(a, ST, ST + 1, ST + 2, ST + 3)
    pk(a, "add", T_, X, ST, 10, bc=1)
    pack(a, AC, T_, 10); unpack(a, T_, AC, 10)
    pk(a, "mul", T_, T_, ST, 10, bc=2)
    pack(a, AC, T_, 10); unpack(a, T_, AC, 10)
    pk(a, "mul", T_, T_, YR, 10)
    pack(a, AC, T_, 10); unpack(a, T_, AC, 10)
    pk(a, "add", X, X, T_, 10)
    pack(a, RES, X, 10)
    a(f"""
    s_cmp_lg_u32 s32, 0
    s_cbranch_scc1 L5_pout
    s_add_u32 s40, s36, {W5_X2}
    """)
    for t in range(5):
        if t == 4: a(f"s_mov_b64 exec, {LANE32}")
        a(f"buffer_store_dwordx2 {vr(RES+2*t,2)}, v{VRM}, s[4:7], s40 offen offset:{32*t}")
    a("s_mov_b64 exec, -1")
    stats(a, RES)
    a(f"""
    v_lshlrev_b32 v4, 6, v2
    s_lshl_b32 s40, s35, 10
    s_lshl_b32 s41, s24, 3
    s_add_u32 s40, s40, s41
    s_add_u32 s40, s40, s26
    s_add_u32 s40, s40, {OS_XS + 16384}
    s_mov_b64 exec, 0xffff
    buffer_store_dwordx2 {vr(ST,2)}, v4, s[4:7], s40 offen
    s_mov_b64 exec, -1
    s_lshl_b32 s40, s35, 5
    s_lshl_b32 s41, s24, 2
    s_add_u32 s40, s40, s41
    s_add_u32 s40, s40, s27
    s_waitcnt vmcnt(0)
    """)
    flag_store(a, 40, FL_X2, t=4)
    astamp(a, 5)

def aux_main(a):
    tok_wait(a)
    srd(a, 8, P_X, XB)
    a(f"""
    s_mov_b32 s32, 0
    s_mov_b32 s37, 0
    s_cmp_eq_u32 s31, 3
    s_cselect_b32 s18, 3, 2
    s_cmp_eq_u32 s31, 0
    s_cselect_b32 s18, 6, s18
    s_mov_b32 s19, 0
    s_mov_b32 s48, 0x3f803f80
    s_mov_b32 s49, 0x01010101
    s_mov_b32 s50, -1
    s_mov_b32 s51, 0
    s_mov_b32 s52, 0xffff0000
    s_mov_b32 s53, 0xffff0000
    s_mov_b32 s54, 0x11111111
    s_mov_b32 s55, 0x11111111
    s_mov_b32 s56, 0x33333333
    s_mov_b32 s57, 0x33333333
    s_mov_b32 s58, 0x77777777
    s_mov_b32 s59, 0x77777777
    s_mov_b32 s60, 0xf0f0f0f0
    s_mov_b32 s61, 0xf0f0f0f0
    s_mov_b32 s62, 0xaaaaaaaa
    s_mov_b32 s63, 0xaaaaaaaa
    s_lshl_b32 s40, s30, 3
    s_lshl_b32 s41, s31, 1
    s_add_u32 s40, s40, s41
    s_add_u32 s35, s40, s25
    s_mul_i32 s33, s40, 18432
    s_add_u32 s33, s33, s26
    s_sub_u32 s38, 6, s41
    s_lshl_b32 s40, s30, 8
    s_lshl_b32 s41, s38, 5
    s_add_u32 s34, s40, s41
    s_add_u32 s34, s34, s27
    s_add_u32 s34, s34, {FL_O}
    s_lshl_b32 s40, s20, 4
    s_add_u32 s40, s40, s35
    s_mul_i32 s36, s40, 18432
    s_mul_i32 s41, s24, 144
    s_add_u32 s36, s36, s41
    s_lshl_b32 s40, s23, 4
    s_add_u32 s40, s40, s22
    s_lshl_b32 s40, s40, 12
    s_add_u32 s15, s40, {W5_HL}
    s_lshl_b32 s40, s35, 11
    s_add_u32 s16, s40, s26
    s_add_u32 s16, s16, {OS_ST}
    s_lshl_b32 s40, s23, 1
    s_add_u32 s40, s40, s25
    s_lshl_b32 s40, s40, 3
    s_add_u32 s40, s40, s24
    s_mul_i32 s17, s40, 9216
    s_lshl_b32 s41, s31, 5
    s_add_u32 s17, s17, s41
    s_add_u32 s17, s17, {W5_YT}
    v_and_b32 v4, 7, v2
    v_bfe_u32 v5, v2, 3, 1
    v_lshl_add_u32 v4, v4, 1, v5
    v_mul_u32_u24 v4, 1152, v4
    v_lshrrev_b32 v5, 4, v2
    v_lshl_add_u32 v{VRM}, v5, 3, v4
    v_mov_b32 v{RES+8}, 0
    v_mov_b32 v{RES+9}, 0
    v_lshlrev_b32 v{VYA}, 7, v2
    s_lshl_b32 s42, s24, 12
    s_add_u32 s42, s42, {W5_FG + FG_Y}
    v_add_u32 v{VYA}, s42, v{VYA}
    v_mov_b32 v{VYF}, 0
    """)
    for t in range(5):
        if t == 4: a(f"s_mov_b64 exec, {LANE32}")
        a(f"buffer_load_dwordx2 {vr(RES+2*t,2)}, v{VRM}, s[8:11], s36 offen offset:{32*t}")
    a("s_mov_b64 exec, -1")
    for i in range(20): a(f"v_mov_b32 v{YR+i}, 0")
    srd(a, 8, P_OUT, XB)
    a(f"""
    s_cmp_eq_u32 s31, 3
    s_cbranch_scc1 L5_al
    """)
    wo_load(a)
    a(f"""
    s_cmp_ge_u32 s21, 24
    s_cbranch_scc1 L5_ancf
    """)
    conv_flag(a, 32)
    if PFL2:
        a(f"""
        s_waitcnt vmcnt(0)
        s_branch L5_ancf2
        L5_ancf:
        s_sub_u32 s40, s21, 24
        s_mul_i32 s40, s40, 3
        s_add_u32 s40, s40, s31
        v_lshlrev_b32 v4, 7, v2
        s_mul_i32 s41, s40, {4*8192}
        s_add_u32 s41, s41, s26
        s_mul_i32 s42, s40, {12288}
        s_mul_i32 s43, s20, {256*1152}
        s_add_u32 s42, s42, s43
        s_add_u32 s42, s42, {W5_X2}
        s_add_u32 s43, s26, {OS_G - 8192}
        """)
        for i in range(4):
            a("s_min_u32 s41, s41, s43")
            a(f"buffer_load_dword a{140+i}, v4, s[4:7], s41 offen")
            a("s_add_u32 s41, s41, 8192")
        a(f"""
        buffer_load_dword a139, v4, s[4:7], s42 offen
        s_add_u32 s42, s42, 8192
        s_mov_b32 exec_hi, 0
        buffer_load_dword a138, v4, s[4:7], s42 offen
        s_mov_b64 exec, -1
        L5_ancf2:
        s_waitcnt vmcnt(6)
        """)
    else: a(f"""
    L5_ancf:
    s_waitcnt vmcnt(0)
    """)
    lds_sig(a, C_WOD, (8,))
    stamp5(a, 11)
    a.label("L5_al")
    attention(a)
    p_phase(a)
    if STOP == 3: a("s_branch L5_fin")
    a(f"""
    s_mov_b32 s32, 1
    s_add_u32 s38, s38, 9
    s_add_u32 s33, s33, {O_L1}
    s_add_u32 s34, s34, 512
    s_add_u32 s15, s15, {16*16*4096}
    s_add_u32 s16, s16, 32768
    s_branch L5_al
    L5_pout:
    """)
    for t in range(5):
        if t == 4: a(f"s_mov_b64 exec, {LANE32}")
        a(f"buffer_store_dwordx2 {vr(RES+2*t,2)}, v{VRM}, s[8:11], s36 offen offset:{32*t}{OSC}")
    a("s_mov_b64 exec, -1")
    astamp(a, 5)
```

```python
import os
from m5_common import *
from k_qkv import xlane_sum, ln_params, f2u
from k_prep import round_pairs

BUDGET = 200000
BSC = os.environ.get('BSC', ' sc1')
STOP = int(os.environ.get("STOP", "99"))
CPF = int(os.environ.get("CPF", "1"))
FORCEFB = int(os.environ.get("FORCEFB", "0"))
P_X, P_WQKV, P_WO, P_BQ, P_K, P_V, P_SHK, P_SSMK, P_SSMD, P_OUT, P_DBG, P_WS = [64 + 2 * i for i in range(12)]
VM = 1
PV = 111

_lab = [0]
def newlab(p):
    _lab[0] += 1
    return f"L_{p}{_lab[0]}"

def stamp5(a, i):
    if not PROF: return
    a("s_memtime s[98:99]")
    a("s_waitcnt lgkmcnt(0)")
    a("s_sub_u32 s98, s98, s96")
    if isinstance(i, int): a(f"v_writelane_b32 v{PV}, s98, {i}")
    else:
        a(f"s_mov_b32 m0, {i}")
        a(f"v_writelane_b32 v{PV}, s98, m0")

def stamp_dump(a):
    if not PROF: return
    a(f"""
    s_mov_b64 exec, -1
    s_lshl_b32 s40, s21, 3
    s_add_u32 s40, s40, s20
    s_lshl_b32 s40, s40, 3
    s_add_u32 s40, s40, s3
    s_lshl_b32 s40, s40, 8
    s_add_u32 s40, s40, {W5_PROF}
    v_writelane_b32 v{PV}, s97, 63
    v_lshlrev_b32 v0, 2, v2
    buffer_store_dword v{PV}, v0, s[4:7], s40 offen
    """)

def budget(a, X):
    a(f"""
    s_cmp_eq_u32 s28, 0
    s_cbranch_scc1 {X}
    s_sub_u32 s28, s28, 1
    """)

def lds_sig(a, idx, t=(0,), vaddr=None, rtn=None):
    va = VM if vaddr is None else vaddr
    a(f"""
    v_mov_b32 v{t[0]}, 1
    s_mov_b64 exec, 1
    ds_add_u32 v{va}, v{t[0]} offset:{4*idx}
    s_mov_b64 exec, -1
    """)

def lds_wait(a, idx, val, t=0, vaddr=None, sleep=0):
    va = VM if vaddr is None else vaddr
    L = newlab("lw"); X = newlab("lwx")
    a.label(L)
    a(f"""
    ds_read_b32 v{t}, v{va} offset:{4*idx}
    s_waitcnt lgkmcnt(0)
    v_readfirstlane_b32 s40, v{t}
    s_cmp_ge_u32 s40, {val}
    s_cbranch_scc1 {X}
    """)
    budget(a, X)
    if sleep: a(f"s_sleep {sleep}")
    a(f"s_branch {L}")
    a.label(X)

def gpoll(a, vaddr, soff, val, t, sleep=0):
    L = newlab("gp"); X = newlab("gpx")
    a.label(L)
    a(f"""
    buffer_load_dword v{t}, v{vaddr}, s[4:7], s{soff} offen sc1
    s_waitcnt vmcnt(0)
    v_cmp_ne_u32 vcc, {val}, v{t}
    s_cbranch_vccz {X}
    """)
    budget(a, X)
    if sleep: a(f"s_sleep {sleep}")
    a(f"s_branch {L}")
    a.label(X)

def tok_wait(a, t=8):
    L = newlab("tok"); X = newlab("tokx")
    a.label(L)
    a(f"""
    ds_read_b64 v[{t}:{t+1}], v{VM}
    s_waitcnt lgkmcnt(0)
    v_readfirstlane_b32 s40, v{t}
    v_readfirstlane_b32 s41, v{t+1}
    s_cmp_eq_u32 s40, 2
    s_cbranch_scc1 L5_fallback
    s_cmp_eq_u32 s40, 1
    s_cbranch_scc1 {X}
    """)
    budget(a, X)
    a("s_sleep 1")
    a(f"s_branch {L}")
    a.label(X)

def head(a, name):
    kernel_head(a, name)
    a(f"""
    s_cmp_ge_u32 s2, 256
    s_cbranch_scc1 L5_end
    """)
    if PROF:
        a("s_memtime s[96:97]")
        a("s_memrealtime s[98:99]")
    a(f"""
    s_load_dwordx16 s[64:79], s[0:1], 0
    s_load_dwordx8 s[80:87], s[0:1], 64
    """)
    if CPF:
        a(f"""
        s_getpc_b64 s[92:93]
        L5_pc:
        s_bfe_u32 s40, s2, 0x30003
        s_lshl_b32 s40, s40, 13
        v_lshlrev_b32 v4, 7, v0
        v_add_u32 v4, s40, v4
        v_min_u32 v4, L5_codeend-L5_pc, v4
        v_cmp_gt_u32 vcc, 64, v0
        s_mov_b64 exec, vcc
        global_load_dword a143, v4, s[92:93]
        s_mov_b64 exec, -1
        """)
    a(f"""
    v_lshrrev_b32 v1, 6, v0
    v_and_b32 v2, 63, v0
    s_getreg_b32 s20, hwreg(HW_REG_XCC_ID, 0, 3)
    v_readfirstlane_b32 s3, v1
    s_lshr_b32 s21, s2, 3
    v_lshlrev_b32 v3, 4, v2
    s_mov_b32 s28, {BUDGET}
    s_mov_b32 s29, 0
    v_mov_b32 v{VM}, {L_MISC}
    """)
    if PROF: a(f"v_mov_b32 v{PV}, 0")
    a(f"""
    s_branch L5_restart
    L5_fallback:
    s_mov_b32 s21, s41
    s_mov_b32 s29, 1
    s_mov_b32 s28, {BUDGET}
    s_waitcnt lgkmcnt(0)
    s_load_dwordx16 s[64:79], s[0:1], 0
    s_load_dwordx8 s[80:87], s[0:1], 64
    s_waitcnt vmcnt(0) lgkmcnt(0)
    s_barrier
    L5_restart:
    s_and_b32 s22, s21, 15
    s_lshr_b32 s30, s21, 4
    s_lshl_b32 s23, s20, 1
    s_add_u32 s23, s23, s30
    s_and_b32 s24, s21, 7
    s_bfe_u32 s25, s21, 0x10003
    s_mul_i32 s26, s20, {OS_G}
    s_add_u32 s26, s26, {W5_OS}
    s_lshl_b32 s27, s20, 12
    s_add_u32 s27, s27, {W5_FL}
    s_cmp_lg_u32 s3, 7
    s_cbranch_scc1 L5_nz
    """)
    a(f"""
    v_mov_b32 v8, 0
    v_mov_b32 v9, 0
    v_lshl_add_u32 v12, v2, 3, v{VM}
    v_lshl_add_u32 v13, v2, 2, v{VM}
    ds_write_b64 v12, v[8:9]
    v_mov_b32 v14, 2
    s_mov_b64 exec, 0x1f
    ds_write_b32 v13, v14 offset:{4*C_FR}
    s_mov_b64 exec, -1
    """)
    a.label("L5_nz")
    a("s_waitcnt lgkmcnt(0)")
    if PROF: a("s_mov_b32 s97, s98")
    srd(a, 4, P_WS, W5_TOT)


SN = 94
def non_wait(a, t=8):
    L = newlab("nw"); X = newlab("nwx")
    a(f"""
    {L}:
    ds_read_b32 v{t}, v{VM} offset:{4*C_NON}
    s_waitcnt lgkmcnt(0)
    v_readfirstlane_b32 s{SN}, v{t}
    s_cmp_lg_u32 s{SN}, 0
    s_cbranch_scc1 {X}
    """)
    budget(a, X)
    a("s_sleep 1")
    a(f"s_branch {L}")
    a.label(X)
    a(f"s_mov_b32 s{SN+1}, s{SN}")

def vpoll(a, vaddr, soff, t, sleep=0, imm=0):
    L = newlab("vp"); X = newlab("vpx")
    a(f"""
    {L}:
    buffer_load_dword v{t}, v{vaddr}, s[4:7], s{soff} offen offset:{imm} sc1
    s_waitcnt vmcnt(0)
    v_cmp_ne_u32 vcc, s{SN}, v{t}
    s_cbranch_vccz {X}
    """)
    budget(a, X)
    if sleep: a(f"s_sleep {sleep}")
    a(f"s_branch {L}")
    a.label(X)

def flag_store(a, soff, imm=0, sc1=False, t=8):
    a(f"""
    v_mov_b32 v{t}, 0
    v_mov_b32 v{t+1}, s{SN}
    s_mov_b64 exec, 1
    buffer_store_dword v{t+1}, v{t}, s[4:7], s{soff} offen offset:{imm}{" sc1" if sc1 else ""}
    s_mov_b64 exec, -1
    """)

def nonce_write(a):
    a(f"""
    s_lshl_b32 s40, s29, 1
    s_or_b32 s40, s2, s40
    s_cmp_lg_u32 s40, 1
    s_cbranch_scc1 L5_nnw
    s_memrealtime s[40:41]
    """)
    srd(a, 88, P_DBG, 256)
    a(f"""
    v_mov_b32 v8, 0
    s_waitcnt lgkmcnt(0)
    s_or_b32 s40, s40, 1
    v_mov_b32 v9, s40
    s_mov_b64 exec, 1
    buffer_store_dword v9, v8, s[88:91], 0 offen sc1
    s_mov_b64 exec, -1
    L5_nnw:
    """)

def reload_ptrs(a):
    a(f"""
    s_load_dwordx16 s[64:79], s[0:1], 0
    s_load_dwordx8 s[80:87], s[0:1], 64
    """)

PSL = int(os.environ.get("PSL", "2"))
PDEP = int(os.environ.get("PDEP", "6"))
NSL = int(os.environ.get("NSL", "3"))
def poller(a):
    srd(a, 88, P_DBG, 256)
    a(f"""
    v_mov_b32 v8, 0
    v_mov_b32 v10, 0
    v_lshlrev_b32 v12, 8, v2
    s_lshl_b32 s40, s20, 5
    s_add_u32 s40, s40, s21
    s_lshl_b32 s40, s40, 8
    s_add_u32 s40, s40, {W5_MB}
    s_add_u32 s14, s{P_WS}, s40
    s_addc_u32 s15, s{P_WS+1}, 0
    s_add_u32 s10, s14, 128
    s_addc_u32 s11, s15, 0
    s_add_u32 s40, s27, {FL_WL}
    s_cmp_eq_u32 s21, 30
    s_cselect_b32 s41, 128, 0
    s_add_u32 s40, s40, s41
    s_add_u32 s8, s{P_WS}, s40
    s_addc_u32 s9, s{P_WS+1}, 0
    s_sub_u32 s12, 32, s21
    s_cmp_ge_u32 s21, 30
    s_cselect_b32 s12, s12, 0
    s_cselect_b64 s[8:9], s[8:9], s[14:15]
    s_add_u32 s40, s20, 7
    s_and_b32 s40, s40, 7
    s_add_u32 s41, s20, 8
    s_cmp_eq_u32 s21, 31
    s_cselect_b32 s18, s40, s41
    s_lshl_b32 s18, s18, 2
    s_add_u32 s18, s18, {W5_MB + 128}
    L5_pn:
    buffer_load_dword v8, v10, s[88:91], 0 offen sc1
    s_sleep {NSL}
    s_waitcnt vmcnt(30)
    v_readfirstlane_b32 s{SN}, v8
    s_cmp_lg_u32 s{SN}, 0
    s_cbranch_scc1 L5_pnx
    """)
    budget(a, "L5_pnx")
    a(f"""
    s_branch L5_pn
    L5_pnx:
    v_mov_b32 v9, s{SN}
    ds_write_b32 v{VM}, v9 offset:{4*C_NON}
    s_mov_b32 s{SN+1}, s{SN}
    s_lshl_b32 s40, s2, 2
    s_add_u32 s40, s40, s27
    s_mov_b64 exec, 1
    buffer_store_dword v9, v10, s[4:7], s40 offen offset:{FL_U}
    s_mov_b64 exec, -1
    s_mov_b32 s16, 0
    s_mov_b32 s17, 0
    """)
    stamp5(a, 8)
    if FORCEFB:
        a(f"""
        s_cmp_eq_u32 s29, 0
        s_cbranch_scc1 L5_pu
        """)
    a(f"""
    L5_pl:
    s_cmp_eq_u32 s12, 3
    s_cbranch_scc1 L5_pl1
    s_load_dwordx16 s[32:47], s[8:9], 0 glc
    s_load_dwordx16 s[48:63], s[8:9], 64 glc
    L5_pl1:
    s_load_dwordx16 s[64:79], s[10:11], 0 glc
    s_cmp_eq_u32 s12, 3
    s_waitcnt lgkmcnt(0)
    s_cbranch_scc1 L5_pw
    """)
    for i in range(4):
        a(f"s_cmp_eq_u64 s[{32+2*i}:{33+2*i}], s[{SN}:{SN+1}]")
        a("s_cbranch_scc0 L5_pw")
    a(f"""
    s_cmp_eq_u32 s40, s{SN}
    s_cbranch_scc0 L5_pw
    s_cmp_eq_u32 s12, 2
    s_cbranch_scc1 L5_pld
    """)
    for i in range(4, 13):
        a(f"s_cmp_eq_u64 s[{32+2*i}:{33+2*i}], s[{SN}:{SN+1}]")
        a("s_cbranch_scc0 L5_pw")
    a(f"""
    s_cmp_eq_u32 s58, s{SN}
    s_cbranch_scc0 L5_pw
    s_cmp_eq_u32 s12, 1
    s_cbranch_scc1 L5_pld
    """)
    for i in range(13, 16):
        a(f"s_cmp_eq_u64 s[{32+2*i}:{33+2*i}], s[{SN}:{SN+1}]")
        a("s_cbranch_scc0 L5_pw")
    a(f"""
    v_mov_b32 v9, 1
    ds_write_b32 v{VM}, v9
    s_mov_b32 s12, 3
    s_cmp_lt_u32 s21, 24
    s_cbranch_scc1 L5_ptk
    v_mov_b32 v9, 3
    ds_write_b32 v{VM}, v9 offset:{4*C_BG2}
    L5_ptk:
    """)
    stamp5(a, 9)
    a(f"""
    s_branch L5_pw
    L5_pld:
    v_mov_b32 v9, s{SN}
    """)
    for i in range(4):
        a(f"buffer_store_dword v9, v12, s[4:7], s18 offen sc1")
        if i < 3: a("s_add_u32 s18, s18, 16384")
    a(f"""
    s_mov_b32 s12, 0
    s_mov_b64 s[8:9], s[14:15]
    """)
    lds_sig(a, C_BG1, (9,))
    stamp5(a, 11)
    a(f"""
    L5_pw:
    s_mov_b32 s13, 0
    """)
    for i in range(8):
        a(f"""
        s_cmp_eq_u32 s{64+i}, s{SN}
        s_cbranch_scc0 L5_pw2
        s_mov_b32 s13, {i+1}
        """)
    a(f"""
    L5_pw2:
    s_cmp_le_u32 s13, s16
    s_cbranch_scc1 L5_pg
    s_mov_b32 s16, s13
    s_mul_i32 s40, s13, 27
    v_mov_b32 v9, s40
    ds_write_b32 v{VM}, v9 offset:{4*C_WR}
    """)
    if PROF:
        a("s_add_u32 s41, s16, 20")
        stamp5(a, "s41")
    a(f"""
    L5_pg:
    s_cmp_lg_u32 s12, 3
    s_cbranch_scc1 L5_pf
    s_cmp_lg_u32 s16, 8
    s_cbranch_scc1 L5_pf2
    """)
    for i in range(4):
        a(f"s_cmp_eq_u64 s[{72+2*i}:{73+2*i}], s[{SN}:{SN+1}]")
        a("s_cbranch_scc0 L5_pf2")
    a(f"""
    s_branch L5_px
    L5_pf2:
    """)
    budget(a, "L5_px")
    a(f"""
    s_branch L5_pl
    L5_pf:
    s_add_u32 s17, s17, 1
    s_and_b32 s40, s17, 15
    s_or_b32 s40, s40, s29
    s_cmp_lg_u32 s40, 0
    s_cbranch_scc1 L5_pf2
    L5_pu:
    buffer_load_dwordx4 v[20:23], v3, s[4:7], s27 offen offset:{FL_U} sc1
    v_lshlrev_b32 v24, 2, v2
    s_mov_b32 s43, 0
    s_mov_b64 s[44:45], 0
    s_mov_b32 s41, 0
    s_waitcnt vmcnt(0)
    """)
    for k in range(4):
        a(f"""
        v_cmp_eq_u32 s[50:51], s{SN}, v{20+k}
        s_bcnt1_i32_b64 s42, s[50:51]
        s_add_u32 s43, s43, s42
        s_or_b64 s[44:45], s[44:45], s[50:51]
        v_add_u32 v25, {k}, v24
        v_cmp_gt_u32 vcc, s2, v25
        s_and_b64 s[48:49], vcc, s[50:51]
        s_bcnt1_i32_b64 s48, s[48:49]
        s_add_u32 s41, s41, s48
        """)
    if FORCEFB:
        a(f"""
        s_cmp_ge_u32 s43, 32
        s_cbranch_scc1 L5_pu2
        """)
        budget(a, "L5_px")
        a(f"""
        s_branch L5_pu
        L5_pu2:
        s_sub_u32 s41, 31, s41
        """)
    else:
        a(f"""
        s_cmp_lt_u32 s43, 32
        s_cbranch_scc1 L5_pf2
        s_lshr_b64 s[48:49], s[44:45], 1
        s_or_b64 s[44:45], s[44:45], s[48:49]
        s_mov_b32 s48, 0x55555555
        s_mov_b32 s49, 0x55555555
        s_and_b64 s[44:45], s[44:45], s[48:49]
        s_cmp_eq_u64 s[44:45], s[48:49]
        s_cbranch_scc1 L5_pf2
        """)
    a(f"""
    s_and_b32 s41, s41, 31
    v_mov_b32 v8, 2
    v_mov_b32 v9, s41
    ds_write_b64 v{VM}, v[8:9]
    v_mov_b32 v9, 216
    ds_write_b32 v{VM}, v9 offset:{4*C_WR}
    ds_write_b32 v{VM}, v9 offset:{4*C_BG1}
    ds_write_b32 v{VM}, v9 offset:{4*C_BG2}
    s_branch L5_fallback
    L5_px:
    """)
    reload_ptrs(a)
    lds_sig(a, C_CVD, (8,))
    stamp5(a, 10)
    lds_wait(a, C_WI, 4, 8, sleep=2)
    l2_prefetch(a)

def l2_prefetch(a):
    n = OS_G // 32 // 128
    assert OS_G % 4096 == 0 and n == 96
    a(f"""
    v_lshlrev_b32 v4, 7, v2
    s_mul_i32 s40, s21, {OS_G // 32}
    s_add_u32 s40, s40, s26
    s_add_u32 s42, s40, 8192
    s_lshl_b32 s41, s20, 5
    s_add_u32 s41, s41, s21
    s_mul_i32 s41, s41, 9216
    s_add_u32 s41, s41, {W5_X2}
    s_add_u32 s43, s41, 8192
    buffer_load_dword a136, v4, s[4:7], s40 offen
    buffer_load_dword a137, v4, s[4:7], s41 offen
    s_mov_b32 exec_hi, 0
    buffer_load_dword a138, v4, s[4:7], s42 offen
    s_mov_b64 exec, 0xff
    buffer_load_dword a139, v4, s[4:7], s43 offen
    s_mov_b64 exec, -1
    """)
```

```python
from k5_base import *

WM = 8
WR = 104
KR = 40; VR = 58; PA_ = 76; PB_ = 85; GO = 94
def kv_weights(a):
    srd(a, 16, P_SHK, 4608)
    a(f"""
    s_mov_b32 s34, s3
    s_mul_i32 s40, s3, 4
    s_lshr_b32 s35, 0xff078ff, s40
    s_and_b32 s35, s35, 15
    s_cmp_eq_u32 s35, 15
    s_cselect_b32 s41, s3, s35
    s_cselect_b32 s35, -1, s35
    v_and_b32 v4, 7, v2
    v_lshlrev_b32 v4, 3, v4
    s_mul_i32 s40, s20, 576
    s_lshl_b32 s42, s3, 6
    s_lshl_b32 s41, s41, 6
    s_add_u32 s41, s41, s40
    s_add_u32 s40, s40, s42
    buffer_load_dwordx2 v[{WR}:{WR+1}], v4, s[16:19], s40 offen
    buffer_load_dwordx2 v[{WR+2}:{WR+3}], v4, s[16:19], s41 offen
    """)

GPF = int(os.environ.get("GPF", "0"))
def g_prefetch(a):
    a(f"""
    v_mul_u32_u24 v4, {GS}, v2
    s_mul_i32 s40, s20, {144*GS}
    s_lshl_b32 s41, s21, 7
    s_sub_u32 s40, s40, s41
    s_add_u32 s40, s40, {W5_G + 1984*2}
    s_add_u32 s41, s40, {64*GS}
    s_add_u32 s42, s40, {128*GS}
    buffer_load_dword a136, v4, s[4:7], s40 offen
    buffer_load_dword a137, v4, s[4:7], s41 offen
    s_mov_b64 exec, 0xffff
    buffer_load_dword a138, v4, s[4:7], s42 offen
    s_mov_b64 exec, -1
    """)

def kv_issue(a):
    a(f"""
    s_cmp_eq_u32 s3, 4
    s_cselect_b64 s[8:9], s[{P_K}:{P_K+1}], s[{P_V}:{P_V+1}]
    s_cselect_b32 s41, 0, {KVS}
    s_add_u32 s41, s41, {L_KV}
    s_mov_b32 s10, {XB}
    s_mov_b32 s11, 0x00020000
    v_mul_u32_u24 v4, 57, v2
    v_lshrrev_b32 v4, 9, v4
    v_mul_u32_u24 v5, 9, v4
    v_sub_u32 v5, v2, v5
    v_mul_u32_u24 v4, 1152, v4
    v_lshl_add_u32 v4, v5, 4, v4
    s_mul_i32 s40, s21, {64*1152}
    s_mul_i32 s42, s20, 144
    s_add_u32 s40, s40, s42
    s_sub_u32 s40, s40, {4*1152}
    v_add_u32 v4, s40, v4
    s_mov_b32 exec_hi, 0x7fffffff
    """)
    for i in range(10):
        a(f"s_add_u32 m0, s41, {1008*i}")
        if i: a(f"v_add_u32 v4, {7*1152}, v4")
        else: a("s_nop 0")
        if i == 9: a("s_mov_b64 exec, 0x00001fffffffffff" if False else "s_mov_b32 exec_hi, 0x1fff")
        a("buffer_load_dwordx4 v4, s[8:11], 0 offen nt lds")
    a("s_mov_b64 exec, -1")

def conv_pads(a):
    a(f"""
    s_mul_i32 s41, s31, {CH}
    v_mov_b32 v8, 0
    v_mov_b32 v9, 0
    v_mov_b32 v10, 0
    v_mov_b32 v11, 0
    v_add_u32 v12, {L_CV + FREG}, v3
    v_subrev_u32 v13, 32, v2
    v_lshrrev_b32 v14, 2, v13
    v_mul_u32_u24 v14, {CS_}, v14
    v_and_b32 v13, 3, v13
    v_lshl_add_u32 v13, v13, 4, v14
    v_add_u32 v13, {L_CV + 4096}, v13
    v_cmp_gt_u32 vcc, 32, v2
    v_cndmask_b32 v12, v13, v12, vcc
    v_add_u32 v12, s41, v12
    s_mov_b32 s40, -1
    s_mov_b32 s41, 0xffff
    s_mov_b64 exec, s[40:41]
    ds_write_b128 v12, v[8:11]
    s_mov_b64 exec, -1
    """)

def d_load(a):
    srd(a, 12, P_SSMD, 1152)
    a(f"""
    s_mul_i32 s41, s20, 24
    s_add_u32 s40, s21, s41
    s_mul_i32 s40, s40, 3
    s_add_u32 s40, s40, s31
    s_lshl_b32 s43, s40, 1
    v_mov_b32 v7, 0
    buffer_load_ushort v110, v7, s[12:15], s43 offen
    """)

def ssm_issue(a):
    srd(a, 8, P_SSMK, XB)
    a(f"""
    s_mul_i32 s41, s20, 24
    s_add_u32 s40, s21, s41
    s_mul_i32 s40, s40, {3*4096}
    """)
    for c in range(3):
        a(f"s_mov_b32 m0, {c*CH + L_CV + FREG + 512}")
        if c: a("s_add_u32 s40, s40, 4096")
        else: a("s_nop 0")
        for i in range(4):
            a(f"buffer_load_dwordx4 v3, s[8:11], s40 offen offset:{1024*i} nt lds")

def kv_section(a, mid=None):
    a(f"""
    v_lshrrev_b32 v4, 4, v2
    v_bfe_u32 v5, v2, 1, 1
    v_lshl_add_u32 v4, v4, 1, v5
    v_bfe_u32 v5, v2, 2, 2
    v_lshl_add_u32 v4, v4, 3, v5
    v_mul_u32_u24 v4, 144, v4
    v_and_b32 v5, 1, v2
    v_lshl_add_u32 v7, v5, 3, v4
    v_add_u32 v7, {L_KV}, v7
    v_and_b32 v5, 7, v2
    v_mul_u32_u24 v5, {2*GS}, v5
    v_lshrrev_b32 v6, 3, v2
    v_sub_u32 v6, 7, v6
    v_lshl_add_u32 v5, v6, 4, v5
    s_mov_b32 s19, 0x3f803f80
    """)
    lds_wait(a, C_KVL, 2, 8)
    stamp5(a, 1)
    a.label("L5_kvu")
    a(f"""
    s_lshl_b32 s40, s34, 4
    v_add_u32 v4, s40, v7
    """)
    lg = Cnt(a, "lgkmcnt", 15)
    for b in range(3): lg.issue(f"ds_read_b64_tr_b16 {vr(KR+2*b,2)}, v4 offset:{576*b}")
    for b in range(3): lg.issue(f"ds_read_b64_tr_b16 {vr(VR+2*b,2)}, v4 offset:{KVS + 576*b}")
    for dw in range(2):
        r = WR + dw; m = WM + 4 * dw
        a(f"""
        v_and_b32 v{m}, 0xffff, v{r}
        v_lshlrev_b32 v{m+1}, 16, v{r}
        v_lshrrev_b32 v{m+2}, 16, v{r}
        v_and_b32 v{m+3}, 0xffff0000, v{r}
        """)
    a(f"""
    s_mul_i32 s16, s20, 9
    s_add_u32 s16, s16, s34
    s_mul_i32 s16, s16, {16*GS}
    s_add_u32 s18, s16, {W5_G}
    s_lshl_b32 s17, s21, 7
    s_sub_u32 s16, s18, s17
    s_add_u32 s16, s16, {1984*2}
    s_add_u32 s17, s16, {GS}
    s_cmp_lg_u32 s21, 0
    s_cbranch_scc1 L5_nzt
    v_mov_b32 v76, 0
    v_mov_b32 v77, 0
    v_mov_b32 v78, 0
    v_mov_b32 v79, 0
    v_mul_u32_u24 v6, {GS}, v2
    v_add_u32 v6, 4096, v6
    s_mov_b64 exec, 0xffff
    buffer_store_dwordx4 v[76:79], v6, s[4:7], s18 offen
    s_mov_b64 exec, -1
    L5_nzt:
    """)
    X = list(range(-1, 8))
    def prod(dst, x, d):
        e = x - d + 4
        a(f"v_dot2_f32_bf16 v{dst}, v{KR+(e>>1)}, v{WM+2*d+(e&1)}, 0")
    lg.wait(rset(KR, 6))
    for i, x in enumerate(X): prod(PA_ + i, x, 3)
    for d in (2, 1, 0):
        for i, x in enumerate(X): prod(PB_ + i, x, d)
        for i in range(9): a(f"v_cvt_pk_bf16_f32 v{PA_+i}, v{PA_+i}, v{PB_+i}")
        for i in range(9): a(f"v_dot2_f32_bf16 v{PA_+i}, v{PA_+i}, s19, 0")
    for i, x in enumerate(X):
        a(f"v_cvt_pk_bf16_f32 v{PA_+i}, v{PA_+i}, 0" if (x + 4) & 1 == 0 else f"v_cvt_pk_bf16_f32 v{PA_+i}, 0, v{PA_+i}")
    lg.wait(rset(VR, 6))
    for i, x in enumerate(X): a(f"v_dot2_f32_bf16 v{PA_+i}, v{PA_+i}, v{VR+((x+4)>>1)}, 0")
    f = lambda x: PA_ + x + 1
    for e in range(4): a(f"v_cvt_pk_bf16_f32 v{GO+e}, v{f(7-2*e)}, v{f(6-2*e)}")
    for e in range(4): a(f"v_cvt_pk_bf16_f32 v{GO+4+e}, v{f(6-2*e)}, v{f(5-2*e)}")
    a(f"""
    buffer_store_dwordx4 {vr(GO,4)}, v5, s[4:7], s16 offen
    buffer_store_dwordx4 {vr(GO+4,4)}, v5, s[4:7], s17 offen
    s_mov_b32 s34, s35
    s_mov_b32 s35, -1
    v_mov_b32 v{WR}, v{WR+2}
    v_mov_b32 v{WR+1}, v{WR+3}
    s_cmp_lg_u32 s34, -1
    s_cbranch_scc1 L5_kvu
    """)
    stamp5(a, 2)
    mid(a)
    a(f"""
    v_mov_b32 v8, 1
    s_mov_b64 exec, 1
    ds_add_rtn_u32 v9, v{VM}, v8 offset:{4*C_KVD}
    s_mov_b64 exec, -1
    s_lshl_b32 s40, s21, 2
    s_lshl_b32 s42, s20, 13
    s_add_u32 s40, s40, s42
    s_add_u32 s40, s40, {W5_MB}
    v_lshlrev_b32 v10, 8, v2
    v_mov_b32 v11, s{SN}
    s_waitcnt lgkmcnt(0)
    v_readfirstlane_b32 s41, v9
    s_cmp_lg_u32 s41, 5
    s_cbranch_scc1 L5_kvx
    s_mov_b32 exec_hi, 0
    buffer_store_dword v11, v10, s[4:7], s40 offen
    s_mov_b64 exec, -1
    """)
    lds_sig(a, C_BG1, (8,))
    a.label("L5_kvx")
    stamp5(a, 3)

CACC = 8; KVR = 40; PRD = 72
def conv_reads(p, base):
    R = []
    for x in range(8):
        aa = 7 - x
        R.append(f"ds_read_b128 {vr(64*p+32+4*x,4,'a')}, v5 offset:{base + 512*x}")
        R.append(f"ds_read_b64 {vr(64*p+4*aa,2,'a')}, v4 offset:{base + 512*(7-aa)}")
        R.append(f"ds_read_b64 {vr(64*p+4*aa+2,2,'a')}, v4 offset:{base + 512*(7-aa) + 8}")
    return R
def cmf(a, p, aa, d):
    acc = CACC + 4 * (aa + d)
    a(f"v_mfma_f32_16x16x32_bf16 {vr(acc,4)}, {vr(64*p+4*aa,4,'a')}, {vr(64*p+32+4*d,4,'a')}, {vr(acc,4)}")
def conv_step(a, p, nxt):
    ops = [(aa, d) for aa in range(7, -1, -1) for d in range(8 - aa)]
    a("s_waitcnt lgkmcnt(0)")
    nxt = list(nxt)
    per = (len(nxt) + 31) // 32
    for i, (aa, d) in enumerate(ops):
        cmf(a, p, aa, d)
        for _ in range(per):
            if nxt: a(nxt.pop(0))

def conv(a):
    a(f"""
    s_cmp_lg_u32 s31, 2
    s_cbranch_scc1 L5_cv0
    """)
    lds_wait(a, C_BG1, 1, 8, sleep=1)
    ssm_issue(a)
    a.label("L5_cv0")
    a(f"""
    s_mul_i32 s40, s21, 3
    s_add_u32 s40, s40, s31
    s_mul_i32 s41, s20, 72
    s_add_u32 s39, s40, s41
    s_mul_i32 s39, s39, {2*GS}
    s_add_u32 s39, s39, {W5_G}
    s_mul_i32 s37, s20, 9216
    s_lshl_b32 s40, s40, 7
    s_add_u32 s37, s37, s40
    s_add_u32 s37, s37, {W5_YT}
    s_mul_i32 s35, s31, {CH}
    """)
    a(f"""
    v_and_b32 v18, 15, v2
    v_lshrrev_b32 v19, 4, v2
    v_and_b32 v20, 7, v18
    v_lshrrev_b32 v21, 3, v18
    v_lshl_add_u32 v20, v20, 1, v21
    v_sub_u32 v21, 3, v20
    v_and_b32 v21, 3, v21
    v_add_u32 v20, v20, v21
    v_and_b32 v22, 1, v19
    v_lshrrev_b32 v23, 1, v19
    v_lshlrev_b32 v4, 3, v22
    v_sub_u32 v4, v4, v20
    v_lshlrev_b32 v5, 4, v23
    v_sub_u32 v4, v4, v5
    v_lshlrev_b32 v4, 1, v4
    v_mul_u32_u24 v21, {CS_}, v21
    v_add_u32 v4, v4, v21
    s_add_u32 s40, s35, {L_CV + 2*2047 - 64 - 3584}
    v_add_u32 v4, s40, v4
    v_sub_u32 v5, v18, v23
    v_lshlrev_b32 v5, 5, v5
    v_lshl_add_u32 v5, v22, 4, v5
    s_add_u32 s40, s35, {L_CV + FREG + 512 - 64}
    v_add_u32 v5, s40, v5
    v_lshlrev_b32 v6, 5, v18
    v_lshl_add_u32 v6, v22, 4, v6
    v_sub_u32 v6, {4080 - 3584}, v6
    s_add_u32 s40, s35, {L_CV}
    v_add_u32 v6, s40, v6
    v_lshrrev_b32 v7, 3, v18
    v_and_b32 v20, 1, v18
    v_lshl_add_u32 v7, v7, 1, v20
    v_mul_u32_u24 v7, {8*9216}, v7
    v_bfe_u32 v20, v18, 1, 2
    v_lshl_add_u32 v7, v20, 5, v7
    v_lshl_add_u32 v7, v19, 3, v7
    v_lshlrev_b32 v20, 16, v110
    v_cmp_gt_u32 vcc, 32, v2
    v_cndmask_b32 v110, v110, v20, vcc
    s_mov_b32 s36, 0x3f803f80
    """)
    for i in range(32): a(f"v_mov_b32 v{CACC+i}, 0")
    tok_wait(a, 108)
    stamp5(a, 4)
    for cp in range(4):
        a(f"s_add_u32 s40, s39, {(cp&1)*GS + (cp>>1)*4}")
        a(f"s_add_u32 m0, s35, {L_CV + cp*CS_}")
        for i in range(4):
            a(f"buffer_load_dwordx4 v3, s[4:7], s40 offen offset:{1024*i}{BSC} lds")
    lds_sig(a, C_BG2, (108,))
    a(f"""
    s_mov_b32 s38, 0
    v_mov_b32 v108, 1
    s_waitcnt vmcnt(0)
    s_cmp_lg_u32 s31, 2
    s_cbranch_scc1 L5_cvs
    ds_write_b32 v{VM}, v108 offset:{4*C_GO}
    L5_cvs:
    """)
    lds_wait(a, C_GO, 1, 108)
    stamp5(a, 5)
    for t in conv_reads(0, 64): a(t)
    a.label("L5_cvl")
    conv_step(a, 0, conv_reads(1, 0) + [f"ds_read_b128 {vr(KVR+4*n,4)}, v6 offset:{512*(7-n)}" for n in range(8)])
    a(f"""
    s_cmp_eq_u32 s38, 3
    s_cbranch_scc1 L5_cvx
    s_add_u32 s38, s38, 1
    """)
    conv_step(a, 1, ["v_subrev_u32 v4, 128, v4", "v_subrev_u32 v5, 128, v5"] + conv_reads(0, 64))
    a("s_branch L5_cvl")
    a.label("L5_cvx")
    fill = [(1, ("sig",))]
    dd = [[(0, f"v_dot2_f32_bf16 v{PRD+4*n+r}, v{KVR+4*n+3-r}, v110, 0") for r in range(4)] for n in range(8)]
    done = {n: (n + 1) * (n + 2) // 2 for n in range(8)}
    epi = []
    for n in range(8):
        t0 = done[n] + 2
        acc = CACC + 4 * n; pr = PRD + 4 * n
        for r in range(4): epi.append((t0, f"v_cvt_pk_bf16_f32 v{pr+r}, v{acc+r}, v{pr+r}"))
        for r in range(4): epi.append((t0, f"v_dot2_f32_bf16 v{pr+r}, v{pr+r}, s36, 0"))
        epi.append((t0, f"v_cvt_pk_bf16_f32 v{pr}, v{pr}, v{pr+1}"))
        epi.append((t0, f"v_cvt_pk_bf16_f32 v{pr+1}, v{pr+2}, v{pr+3}"))
        epi.append((t0, f"buffer_store_dwordx2 {vr(pr,2)}, v7, s[4:7], s37 offen sc1"))
        if n < 7: epi.append((t0, f"s_add_u32 s37, s37, {4*8*9216}"))
    order = []
    ei = 0
    per = [[e for e in epi if e[0] == done[n] + 2] for n in range(8)]
    for n in range(8):
        order += dd[n]
    q = fill + order[:16]
    q += per[0] + per[1] + order[16:24] + per[2] + order[24:] + per[3] + per[4] + per[5] + per[6] + per[7]
    fill = q
    ops = [(aa, n - aa) for n in range(8) for aa in range(n, -1, -1)]
    a("s_waitcnt lgkmcnt(0)")
    def emit(f):
        if isinstance(f, tuple): lds_sig(a, C_CVD, (108,))
        else: a(f)
    for i, (aa, d) in enumerate(ops):
        cmf(a, 1, aa, d)
        k = 0
        while fill and fill[0][0] <= i + 1 and k < 3:
            emit(fill.pop(0)[1]); k += 1
    stamp5(a, 6)
    while fill: emit(fill.pop(0)[1])

def conv_flag(a, n=0):
    X = newlab("cf")
    a(f"""
    v_mov_b32 v8, 1
    s_waitcnt vmcnt({n})
    s_mov_b64 exec, 1
    ds_add_rtn_u32 v9, v{VM}, v8 offset:{4*C_YD}
    s_mov_b64 exec, -1
    s_lshl_b32 s40, s20, 12
    s_lshl_b32 s41, s21, 7
    s_add_u32 s40, s40, s41
    s_add_u32 s40, s40, {W5_FG + FG_Y}
    s_waitcnt lgkmcnt(0)
    v_readfirstlane_b32 s41, v9
    s_cmp_lg_u32 s41, 2
    s_cbranch_scc1 {X}
    """)
    flag_store(a, 40, 0, True)
    a.label(X)
    stamp5(a, 7)
```

```python
from k5_base import *
from k5_rp import *

XE, XO = 4, 5
CP_, CQ_ = 6, 8
VCD, VCB, VONE = 10, 11, 12
VST = 13; SGA, SGB = 14, 15; WA, WB = 16, 17; T0, T1 = 18, 19
STD = 20; CSR = 24
ACA, ACB, AX0, AX1 = 32, 40, 48, 56
PST3 = 36
FT = 64; XR_ = 72; ONES = 96; VPL, VPA = 100, 101
LAG = int(os.environ.get('LAG', '18'))
XLATE = int(os.environ.get('XLATE', '0'))

XROW = [16, 20, 24, 28, 32, 36, 46, 50, 54]
def x_stats(a):
    a("s_mov_b32 s40, 0x3f803f80")
    for i in range(36):
        x = XROW[i >> 2] + (i & 3)
        c = "0" if i < 4 else f"v{8+(i&3)}"
        c2 = "0" if i < 4 else f"v{12+(i&3)}"
        a(f"v_dot2_f32_bf16 v{8+(i&3)}, v{x}, s40, {c}")
        a(f"v_dot2_f32_bf16 v{12+(i&3)}, v{x}, v{x}, {c2}")
    a(f"""
    v_add_f32 v8, v8, v9
    v_add_f32 v10, v10, v11
    v_add_f32 v12, v12, v13
    v_add_f32 v14, v14, v15
    v_add_f32 v8, v8, v10
    v_add_f32 v9, v12, v14
    """)
    for m in ("quad_perm:[1,0,3,2]", "quad_perm:[2,3,0,1]", "row_half_mirror"):
        a(f"v_add_f32_dpp v8, v8, v8 {m} row_mask:0xf bank_mask:0xf")
        a(f"v_add_f32_dpp v9, v9, v9 {m} row_mask:0xf bank_mask:0xf")
    a(f"""
    v_and_b32 v11, 7, v2
    v_cmp_eq_u32 vcc, 0, v11
    v_cndmask_b32 v8, 0, v8, vcc
    v_cndmask_b32 v9, 0, v9, vcc
    v_lshrrev_b32 v10, 3, v2
    v_and_b32 v12, 1, v10
    v_lshrrev_b32 v10, 1, v10
    v_lshl_add_u32 v10, v12, 3, v10
    v_lshlrev_b32 v10, 6, v10
    v_lshl_add_u32 v10, v11, 3, v10
    s_lshr_b32 s40, s21, 1
    s_lshl_b32 s40, s40, 10
    s_and_b32 s41, s21, 1
    s_lshl_b32 s41, s41, 8
    s_add_u32 s40, s40, s41
    s_add_u32 s40, s40, s26
    s_add_u32 s46, s40, {OS_XS}
    """)

def x_rows_issue(a):
    srd(a, 8, P_X, XB)
    a(f"""
    v_lshrrev_b32 v4, 3, v2
    v_mul_u32_u24 v4, 1152, v4
    v_and_b32 v5, 7, v2
    v_lshl_add_u32 v4, v5, 4, v4
    s_lshl_b32 s40, s20, 5
    s_add_u32 s40, s40, s21
    s_mul_i32 s40, s40, {8*1152}
    """)
    for t in range(9):
        a(f"buffer_load_dwordx4 {vr(XROW[t],4)}, v4, s[8:11], s40 offen offset:{128*t}")

def q_consts(a, m):
    a(f"""
    v_and_b32 v{T0}, 7, v2
    v_lshrrev_b32 v{T1}, 4, v2
    v_xor_b32 v{XE}, v{T0}, v{T1}
    v_lshlrev_b32 v{XE}, 4, v{XE}
    v_lshl_add_u32 v{XE}, v{T0}, 7, v{XE}
    v_bfe_u32 v{T0}, v2, 3, 1
    v_mul_u32_u24 v{T0}, 9216, v{T0}
    v_add_u32 v{XE}, v{XE}, v{T0}
    v_xor_b32 v{XO}, 64, v{XE}
    v_add_u32 v{CP_}, {L_XS}, v{XE}
    v_add_u32 v{CP_+1}, {L_XS}, v{XO}
    v_mov_b32 v{VONE}, 1
    v_add_u32 v{VCD}, 12, v{VM}
    v_add_u32 v{VCB}, s3, v{VCD}
    v_and_b32 v{T0}, 15, v2
    v_lshlrev_b32 v{VST}, 4, v{T0}
    v_add_u32 v{VST}, {L_STAB}, v{VST}
    v_mul_u32_u24 v{SGA}, {RS}, v{T0}
    v_mov_b32 v{ONES}, 0x3f803f80
    v_mov_b32 v{ONES+1}, 0x3f803f80
    v_mov_b32 v{ONES+2}, 0x3f803f80
    v_mov_b32 v{ONES+3}, 0x3f803f80
    s_mov_b32 s51, 0x01010101
    s_mov_b32 s50, 0
    s_mul_i32 s35, s22, {WQ_HG}
    """)
    if m:
        a(f"""
        v_lshlrev_b32 v{T0}, 3, v{T1}
        v_add_u32 v{T0}, 128, v{T0}
        v_mul_u32_u24 v{SGB}, 40, v{T1}
        v_add_u32 v{SGB}, 96, v{SGB}
        v_cmp_gt_u32 vcc, 32, v2
        v_cndmask_b32 v{T0}, v{SGB}, v{T0}, vcc
        v_add_u32 v{SGA}, v{SGA}, v{T0}
        s_add_u32 s35, s35, {W5_WQ + 4096}
        v_and_b32 v{T0}, 15, v2
        v_cmp_gt_u32 vcc, 12, v{T0}
        v_mov_b32 v{SGB}, 0x7fffffff
        v_cndmask_b32 v{SGB}, v{SGB}, v3, vcc
        """)
    else:
        a(f"""
        v_lshl_add_u32 v{SGA}, v{T1}, 3, v{SGA}
        s_lshl_b32 s40, s3, 6
        s_lshr_b32 s41, s3, 1
        s_lshl_b32 s42, s41, 4
        s_add_u32 s40, s40, s42
        s_lshl_b32 s42, s41, 3
        s_add_u32 s42, s42, 32
        v_add_u32 v{SGA}, s40, v{SGA}
        v_add_u32 v{SGB}, s42, v{SGA}
        s_lshl_b32 s40, s3, 11
        s_lshl_b32 s41, s41, 10
        s_add_u32 s35, s35, s40
        s_add_u32 s35, s35, s41
        s_add_u32 s35, s35, {W5_WQ}
        """)

def gate(a, need):
    L = newlab("gt"); X = newlab("gtx")
    a(f"""
    s_cmp_ge_u32 s50, {need}
    s_cbranch_scc1 {X}
    {L}:
    ds_read_b32 v{VPL}, v{VM} offset:{4*C_WR}
    s_waitcnt lgkmcnt(0)
    v_readfirstlane_b32 s50, v{VPL}
    s_cmp_ge_u32 s50, {need}
    s_cbranch_scc1 {X}
    """)
    budget(a, X)
    a("s_sleep 1")
    a(f"s_branch {L}")
    a.label(X)

def fold_ops(NT, acc):
    R = []
    for t in range(NT):
        for r in range(4): R.append(f"v_fma_f32 v{FT+4*t+r}, v{CSR+4*t+r}, v{STD}, v{acc+4*t+r}")
        for r in range(4): R.append(f"v_mul_f32 v{FT+4*t+r}, v{FT+4*t+r}, v{STD+1}")
        R.append(f"v_cvt_pk_bf16_f32 v{FT+4*t}, v{FT+4*t}, v{FT+4*t+1}")
        R.append(f"v_cvt_pk_bf16_f32 v{FT+4*t+1}, v{FT+4*t+2}, v{FT+4*t+3}")
    R.append(f"v_add_u32 v{WA}, v{SGA}, v{STD+2}")
    if NT == 2: R.append(f"v_add_u32 v{WB}, v{SGB}, v{STD+2}")
    return R

def fr_spin(a, off):
    L = newlab("fr"); X = newlab("frx")
    a(f"""
    {L}:
    ds_read_b32 v{T0}, v{VCD} offset:{off}
    s_waitcnt lgkmcnt(0)
    v_readfirstlane_b32 s40, v{T0}
    s_cmp_ge_u32 s40, 2
    s_cbranch_scc1 {X}
    """)
    budget(a, X)
    a(f"s_branch {L}")
    a.label(X)

def epi_alone(a, NT, acc, stoff, dn, fr=True):
    a(f"ds_read_b128 {vr(STD,4)}, v{VST} offset:{stoff}")
    if fr: fr_spin(a, 4 * (C_FR + dn))
    else: a("s_waitcnt lgkmcnt(0)")
    for t in fold_ops(NT, acc): a(t)
    a(f"ds_write_b64 v{WA}, {vr(FT,2)}")
    if NT == 2: a(f"ds_write_b64 v{WB}, {vr(FT+4,2)}")
    a(f"ds_write_b8 v{VCB}, v{VONE} offset:{4*(C_QD+dn)}")

def phase_k(a, NT):
    vm = Cnt(a, "vmcnt", 63); lg = Cnt(a, "lgkmcnt", 15)
    accs = (AX0, AX1, ACA)
    wl = 3 if NT == 2 else SGB
    vm.q.append("xs")
    def xreads(s):
        for i in range(3):
            lg.issue(f"ds_read_b128 {vr(XR_+12*(s&1)+4*i,4)}, v{CP_+(s&1)} offset:{18432*i + 1024*(s>>1)}")
    def mma(s):
        if s + 1 < 18: xreads(s + 1)
        vm.wait(rset(4 * NT * s, 4 * NT, 'a'))
        for t in range(NT):
            w = vr(4 * NT * s + 4 * t, 4, 'a')
            c = CSR + 4 * t
            a(f"v_mfma_f32_16x16x32_bf16 {vr(c,4)}, {w}, {vr(ONES,4)}, {'0' if s == 0 else vr(c,4)}")
        for i in range(3):
            lg.wait(rset(XR_ + 12 * (s & 1) + 4 * i, 4))
            for t in range(NT):
                w = vr(4 * NT * s + 4 * t, 4, 'a')
                c = accs[i] + 4 * t
                a(f"v_mfma_f32_16x16x32_bf16 {vr(c,4)}, {w}, {vr(XR_+12*(s&1)+4*i,4)}, {'0' if s == 0 else vr(c,4)}")
    if NT == 1:
        vm.wait("xs")
        a(f"""
        s_lshl_b32 s40, s21, 2
        s_add_u32 s40, s40, s27
        """)
        flag_store(a, 40, FL_XS0, t=64)
        a(f"""
        s_lshl_b32 s42, s30, 6
        s_add_u32 s42, s42, s27
        s_add_u32 s42, s42, {FL_XS0}
        v_and_b32 v64, 15, v2
        v_lshlrev_b32 v64, 2, v64
        L5_xp:
        buffer_load_dword v65, v64, s[4:7], s42 offen sc1
        ds_read_b64 v[66:67], v{VM}
        s_waitcnt vmcnt(0) lgkmcnt(0)
        v_readfirstlane_b32 s40, v66
        v_readfirstlane_b32 s41, v67
        v_cmp_ne_u32 vcc, s{SN}, v65
        s_cmp_eq_u32 s40, 2
        s_cbranch_scc1 L5_fallback
        s_cbranch_vccz L5_xpx
        """)
        budget(a, "L5_xpx")
        a("s_branch L5_xp")
        a.label("L5_xpx")
        vm.q = []
        a("s_sub_u32 s42, s39, 2048")
        for i in range(3):
            vm.issue(f"buffer_load_dwordx4 {vr(PST3+4*i,4)}, v3, s[4:7], s42 offen offset:{2048-1024*i}{BSC}")
    for s in range(18 + LAG):
        if s < 18:
            gate(a, 12 * (s + 1))
            for t in range(NT):
                vm.issue(f"buffer_load_dwordx4 {vr(4*NT*s+4*t,4,'a')}, v{wl}, s[4:7], s35 offen offset:{1024*t}{BSC}")
            if s < 17: a("s_add_u32 s35, s35, 7168")
            else: lds_sig(a, C_WI, (T0,))
        if NT == 1 and s == min(LAG, 17):
            vm.wait(rset(PST3, 12))
            for i in range(3):
                fetch_stats(a, 36, PST3 + 4 * i, lg)
                a("s_add_u32 s36, s36, 1")
            lg.issue(f"ds_write_b32 v{VM}, v{VONE} offset:{4*(C_XR+1)}", tag="w")
            lg.wait_all()
        if s == LAG:
            if NT == 2:
                vm.wait("xs")
                lds_sig(a, C_XR + 2, (T0,))
            lds_wait(a, C_XR + 2, 3, T0)
            xreads(0)
        if s >= LAG: mma(s - LAG)
        if s == LAG: stamp5(a, 5)
    for i in range(3): a(f"ds_write_b8 v{VCB}, v{VONE} offset:{4*(C_XF+i-3)}")
    stamp5(a, 6)
    tok_wait(a, T0)
    if NT == 2: lds_wait(a, C_XR + 1, 1, T0)
    epi_alone(a, NT, AX0, 0, -3, fr=False)
    epi_alone(a, NT, AX1, 256, -2, fr=False)
    stamp5(a, 7)

def body(a, lg, odd):
    acc, pacc = (ACB, ACA) if odd else (ACA, ACB)
    cur, nxt = (CQ_, CP_) if odd else (CP_, CQ_)
    dn = 0 if odd else 1
    fo = fold_ops(2, pacc)
    Ls = newlab("frs"); Lb = newlab("frb")
    fill = {k: [] for k in range(18)}
    fill[0] = [("lds", f"ds_read_b32 v{T0}, v{VCD} offset:{4*(C_FR+dn-1)}"), ("lds", f"ds_read_b128 {vr(STD,4)}, v{VST} offset:{256*dn}")]
    fill[2] = [("wait", rset(T0) | rset(STD, 4)), ("i", f"v_readfirstlane_b32 s40, v{T0}"), ("i", fo.pop(0)), ("i", "s_cmp_lt_u32 s40, 2")]
    fill[3] = [("i", f"s_cbranch_scc1 {Ls}"), ("lab", Lb)]
    for k in range(3, 10):
        for _ in range(3):
            if fo: fill[k].append(("i", fo.pop(0)))
    fill[8].append(("lds", f"ds_read_b32 v{T1}, v{VCD} offset:{4*(C_XR+dn+1)}"))
    assert not fo or len(fo) <= 2, len(fo)
    fill[10] = [("i", t) for t in fo] + [("lds", f"ds_write_b64 v{WA}, {vr(FT,2)}"), ("lds", f"ds_write_b64 v{WB}, {vr(FT+4,2)}"),
                 ("lds", f"ds_write_b8 v{VCB}, v{VONE} offset:{4*(C_QD+dn-1)}")]
    fill[11] = [("wait", rset(T1)), ("i", f"v_add_u32 v{nxt}, v{XE}, v{T1}"), ("i", f"v_add_u32 v{nxt+1}, v{XO}, v{T1}"), ("i", f"v_readfirstlane_b32 s37, v{T1}")]
    fill[12] = [("lds", f"ds_write_b8 v{VCB}, v{VONE} offset:{4*(C_XF+dn)}")]
    if not odd:
        fill[14] = [("i", f"v_xor_b32 v{VST}, 512, v{VST}"), ("i", f"v_add_u32 v{VCD}, 8, v{VCD}"), ("i", f"v_add_u32 v{VCB}, 8, v{VCB}")]
    for k in range(18):
        x = XR_ + 4 * (k % 6)
        if k % 2 == 0: lg.wait(rset(x, 4) | rset(XR_ + 4 * ((k + 1) % 6), 4))
        f = fill[k]
        def emit(n):
            while f and n > 0:
                kind, v = f.pop(0)
                if kind == "i": a(v)
                elif kind == "lds": lg.issue(v, tag=(Ins(v).dst or "w"))
                elif kind == "wait": lg.wait(v)
                elif kind == "lab": a.label(v); continue
                n -= 1
        for t in range(2):
            a(f"v_mfma_f32_16x16x32_bf16 {vr(acc+4*t,4)}, {vr(8*k+4*t,4,'a')}, {vr(x,4)}, {'0' if k == 0 else vr(acc+4*t,4)}")
            if t == 0: emit(2)
        kk = k + 6
        if kk < 18: lg.issue(f"ds_read_b128 {vr(x,4)}, v{cur+(kk&1)} offset:{1024*(kk>>1)}")
        else: lg.issue(f"ds_read_b128 {vr(x,4)}, v{nxt+(kk&1)} offset:{1024*((kk-18)>>1)}")
        emit(99)
    return (Ls, Lb, 4 * (C_FR + dn - 1))

def xr_spin(a, off, nxt):
    L = newlab("xr"); X = newlab("xrx")
    a(f"""
    {L}:
    ds_read_b32 v{T1}, v{VCD} offset:{off}
    s_waitcnt lgkmcnt(0)
    v_readfirstlane_b32 s37, v{T1}
    s_cmp_lg_u32 s37, 0
    s_cbranch_scc1 {X}
    """)
    budget(a, X)
    a(f"s_branch {L}")
    a.label(X)
    a(f"v_add_u32 v{nxt}, v{XE}, v{T1}")
    a(f"v_add_u32 v{nxt+1}, v{XO}, v{T1}")
    for k in range(6):
        a(f"ds_read_b128 {vr(XR_+4*k,4)}, v{nxt+(k&1)} offset:{1024*(k>>1)}")
    a("s_waitcnt lgkmcnt(0)")

def q_main2(a):
    a(f"""
    v_xor_b32 v{VST}, 512, v{VST}
    s_mov_b32 s32, 3
    """)
    xr_spin(a, 4 * C_XR, CQ_)
    lg = Cnt(a, "lgkmcnt", 15)
    a.label("L5_qo")
    if PROF:
        a("s_add_u32 s38, s32, 8")
        stamp5(a, "s38")
    lg.q = [rset(XR_ + 4 * k, 4) for k in range(6)]
    s1 = body(a, lg, True)
    a(f"""
    s_cmp_eq_u32 s37, 0
    s_cbranch_scc1 L5_qo_slow
    L5_qe:
    """)
    if PROF:
        a("s_add_u32 s38, s32, 9")
        stamp5(a, "s38")
    lg.q = [rset(XR_ + 4 * k, 4) for k in range(6)]
    s2 = body(a, lg, False)
    a(f"""
    s_add_u32 s32, s32, 2
    s_cmp_lg_u32 s37, 0
    s_cbranch_scc1 L5_qo
    """)
    epi_alone(a, 2, ACA, 0, -1)
    xr_spin(a, 4 * C_XR, CQ_)
    a("s_branch L5_qo")
    a.label("L5_qo_slow")
    epi_alone(a, 2, ACB, 256, 0)
    a(f"""
    s_cmp_ge_u32 s32, 15
    s_cbranch_scc1 L5_fin
    """)
    xr_spin(a, 4 * (C_XR + 1), CP_)
    a("s_branch L5_qe")
    for Ls, Lb, off in (s1, s2):
        a.label(Ls)
        fr_spin(a, off)
        a(f"s_branch {Lb}")

FV0, FV1 = 102, 103; PST = 104
SSEG = 54
def fetch_consts(a):
    a(f"""
    v_lshrrev_b32 v{T0}, 3, v2
    v_and_b32 v{T1}, 7, v2
    v_xor_b32 v{T1}, v{T1}, v{T0}
    v_mul_u32_u24 v{FV0}, 2304, v{T0}
    v_lshl_add_u32 v{FV0}, v{T1}, 4, v{FV0}
    v_add_u32 v{FV1}, 1152, v{FV0}
    v_lshrrev_b32 v{WB}, 2, v2
    v_lshlrev_b32 v{WB}, 4, v{WB}
    v_add_u32 v{WB}, {L_STAB}, v{WB}
    s_mov_b32 s10, 32768
    s_mov_b32 s11, 0x00020000
    s_lshl_b32 s39, s30, 13
    s_add_u32 s39, s39, s26
    s_add_u32 s39, s39, {OS_XS + 7*1024}
    """)
    for seg in range(9):
        a(f"s_movk_i32 s{SSEG+seg}, {2688 + 128*seg - 1024*(seg&3)}")

def stats_load(a, sf, dst=PST):
    a(f"""
    s_lshr_b32 s40, s{sf}, 3
    s_mul_i32 s40, s40, {16384 + 8192}
    s_lshl_b32 s41, s{sf}, 10
    s_sub_u32 s40, s40, s41
    s_add_u32 s40, s40, s39
    buffer_load_dwordx4 {vr(dst,4)}, v3, s[4:7], s40 offen{BSC}
    """)

PFL, PFA = 108, 109
def poll_issue(a, sf):
    a(f"""
    s_lshl_b32 s40, s{sf}, 5
    s_sub_u32 s40, s52, s40
    buffer_load_dword v{PFL}, v{PFA}, s[4:7], s40 offen sc1
    """)

def fetch_dma(a, sf, sl=34):
    a(f"""
    s_and_b32 s40, s{sf}, 7
    s_lshl_b32 s41, s23, 3
    s_add_u32 s41, s41, 7
    s_sub_u32 s40, s41, s40
    s_mul_i32 s40, s40, 18432
    s_add_u32 s42, s{P_WS}, {W5_X2}
    s_addc_u32 s43, s{P_WS+1}, 0
    s_cmp_lt_u32 s{sf}, 8
    s_cselect_b64 s[42:43], s[{P_X}:{P_X+1}], s[42:43]
    s_add_u32 s8, s42, s40
    s_addc_u32 s9, s43, 0
    s_sub_u32 s8, s8, 2688
    s_subb_u32 s9, s9, 0
    """)
    for rh in range(2):
        for seg in range(9):
            if seg % 4 == 0:
                a(f"s_add_u32 m0, s{sl}, {9216*rh + 1024*seg}")
                a("s_nop 0")
            a(f"buffer_load_dwordx4 v{FV0+rh}, s[8:11], s{SSEG+seg} offen offset:{1024*(seg&3)}{BSC} lds")

WB2 = 9; PCW = 0
def fetch_stats(a, sf, src=PST, lg=None, tmp=T0):
    a(f"""
    v_add_f32 v{src}, v{src}, v{src+2}
    v_add_f32 v{src+1}, v{src+1}, v{src+3}
    """)
    for m in ("quad_perm:[1,0,3,2]", "quad_perm:[2,3,0,1]"):
        a(f"v_add_f32_dpp v{src}, v{src}, v{src} {m} row_mask:0xf bank_mask:0xf")
        a(f"v_add_f32_dpp v{src+1}, v{src+1}, v{src+1} {m} row_mask:0xf bank_mask:0xf")
    ln_params(a, src, src + 1, src + 2, src + 3)
    a(f"""
    v_mov_b32 v{src+2}, s33
    s_and_b32 s40, s{sf}, 3
    s_lshl_b32 s40, s40, 8
    v_add_u32 v{tmp}, s40, v{WB}
    """)
    t = f"ds_write_b128 v{tmp}, {vr(src,4)}"
    if lg: lg.issue(t, tag="w")
    else: a(t)
    a(f"""
    s_cmp_eq_u32 s{sf}, 7
    s_cselect_b32 s40, {STGS}, 0
    s_add_u32 s33, s33, s40
    s_add_u32 s33, s33, {STGS}
    s_sub_u32 s40, s33, {5*STGS}
    s_cmp_ge_u32 s33, {L_STG + 5*STGS}
    s_cselect_b32 s33, s40, s33
    """)

def w3_init(a):
    fetch_consts(a)
    a(f"""
    s_mov_b32 s36, 0
    s_mov_b32 s33, {L_STG}
    s_mov_b32 s34, {L_XS}
    s_lshl_b32 s52, s30, 8
    s_add_u32 s52, s52, s27
    s_add_u32 s52, s52, {FL_X2}
    v_lshlrev_b32 v{PFA}, 2, v2
    """)

def dma_setup(a, sf):
    a(f"""
    s_and_b32 s40, s{sf}, 7
    s_lshl_b32 s41, s23, 3
    s_add_u32 s41, s41, 7
    s_sub_u32 s40, s41, s40
    s_mul_i32 s40, s40, 18432
    s_add_u32 s42, s{P_WS}, {W5_X2}
    s_addc_u32 s43, s{P_WS+1}, 0
    s_cmp_lt_u32 s{sf}, 8
    s_cselect_b64 s[42:43], s[{P_X}:{P_X+1}], s[42:43]
    s_add_u32 s8, s42, s40
    s_addc_u32 s9, s43, 0
    s_sub_u32 s8, s8, 2688
    s_subb_u32 s9, s9, 0
    """)
def dma1(a, i, sl=34, m0=False):
    rh, seg = divmod(i, 9)
    if seg % 4 == 0 or m0:
        a(f"s_add_u32 m0, s{sl}, {9216*rh + 1024*(seg & ~3)}")
        a("s_nop 0")
    a(f"buffer_load_dwordx4 v{FV0+rh}, s[8:11], s{SSEG+seg} offen offset:{1024*(seg&3)}{BSC} lds")

NPRE = int(os.environ.get("NPRE", "10"))
PT0 = int(os.environ.get("PT0", "-1"))
def wstamp(a, k, sr=32):
    if not PROF or PT0 < 0: return
    a(f"""
    s_sub_u32 s40, s{sr}, {PT0}
    s_lshl_b32 s40, s40, 2
    s_add_u32 s40, s40, {24 + k}
    s_min_u32 s40, s40, 62
    """)
    stamp5(a, "s40")
XA = 72
class Rec:
    def __init__(self): self.L = []
    def __call__(self, text):
        for ln in text.strip("\n").split("\n"):
            if ln.strip(): self.L.append(ln.strip())
    def label(self, n): self.L.append(n + ":")

def sgroups(L):
    G = []
    for t in L:
        if G and t.startswith(("s_addc", "s_subb", "s_cselect", "s_cbranch")): G[-1].append(t)
        else: G.append([t])
    return G

def next_setup(a):
    a(f"""
    s_add_u32 s14, s36, 1
    s_and_b32 s40, s14, 7
    s_lshl_b32 s41, s23, 3
    s_add_u32 s41, s41, 7
    s_sub_u32 s40, s41, s40
    s_mul_i32 s40, s40, 18432
    s_add_u32 s42, s{P_WS}, {W5_X2 - 2688}
    s_addc_u32 s43, s{P_WS+1}, 0
    s_cmp_lt_u32 s14, 8
    s_cselect_b64 s[42:43], s[16:17], s[42:43]
    s_add_u32 s12, s42, s40
    s_addc_u32 s13, s43, 0
    s_lshr_b32 s40, s14, 3
    s_mul_i32 s40, s40, {16384 + 8192}
    s_lshl_b32 s41, s14, 10
    s_sub_u32 s40, s40, s41
    s_add_u32 s15, s40, s39
    """)

FST = int(os.environ.get("FST", "-1"))
def fs(a, k):
    if PROF and FST >= 0: a(f"s_memtime s[{66+2*k}:{67+2*k}]")
def fs_dump(a, n):
    if not (PROF and FST >= 0): return
    L = newlab("fsd")
    a(f"""
    s_waitcnt lgkmcnt(0)
    s_sub_u32 s40, s36, {FST}
    s_cmp_ge_u32 s40, 2
    s_cbranch_scc1 {L}
    s_mul_i32 s40, s40, 10
    s_add_u32 s40, s40, 40
    """)
    for k in range(n):
        a(f"s_sub_u32 s{66+2*k}, s{66+2*k}, s96")
        a(f"s_add_u32 m0, s40, {k}")
        a(f"v_writelane_b32 v{PV}, s{66+2*k}, m0")
    a.label(L)

def w3_win(a, fetch, comp):
    A0, A1 = 72, 76
    lg = Cnt(a, "lgkmcnt", 15)
    gaps = [[] for _ in range(19)]
    if comp:
        a(f"""
        v_add_u32 v{CP_}, s46, v{XE}
        v_add_u32 v{CP_+1}, s46, v{XO}
        v_mov_b32 v{WA}, s46
        s_and_b32 s40, s32, 3
        s_lshl_b32 s40, s40, 8
        v_add_u32 v{T1}, s40, v{VST}
        """)
        if fetch: fs(a, 0)
        a(f"""
        s_waitcnt vmcnt(0)
        ds_write_b32 v{VCD}, v{WA} offset:{4*C_XR}
        """)
        if fetch: fs(a, 1)
        if PROF:
            a("s_add_u32 s40, s32, 8")
            stamp5(a, "s40")
        for k in range(18): lg.issue(f"ds_read_b128 {vr(XA+4*k,4,'a')}, v{CP_+(k&1)} offset:{1024*(k>>1)}")
        lg.issue(f"ds_write_b8 v{VCB}, v{VONE} offset:{4*C_XF}", tag="w")
        lg.issue(f"ds_read_b128 {vr(STD,4)}, v{T1}")
        lg.issue(f"ds_read_b32 v{T0}, v{VCD} offset:{4*C_FR}")
        a(f"""
        s_add_u32 s46, s46, 18432
        s_cmp_ge_u32 s46, {L_XS + 3*18432}
        s_cselect_b32 s46, {L_XS}, s46
        """)
    if fetch:
        if comp: fs(a, 2)
        a(f"buffer_load_dword v{PFL}, v{PFA}, s[4:7], s52 offen sc1")
        a(f"buffer_load_dwordx4 {vr(PST,4)}, v3, s[4:7], s15 offen{BSC}")
        r = Rec(); next_setup(r)
        for i, t in enumerate(sgroups(r.L)): gaps[1 + i // 2] += t
        r = Rec(); fetch_stats(r, 36, tmp=WB2)
        g0 = 12
        gaps[g0] += [f"s_waitcnt vmcnt({g0 + 1})", f"v_cmp_eq_u32 s[44:45], s{SN}, v{PFL}"]
        G = sgroups(r.L)
        per = (len(G) + 5) // 6
        for i, gr in enumerate(G): gaps[g0 + i // per] += [("lds", t) if t.startswith("ds_") else t for t in gr]
        for g in range(18):
            dma1(a, g)
            if comp and g in (0, 4, 8, 12, 17): fs(a, 3 + (0, 4, 8, 12, 17).index(g) + (g == 17))
            for it in gaps[g]:
                if isinstance(it, str):
                    a(it)
                    if comp and it.startswith("v_cmp_eq_u32 s[44:45]"): fs(a, 7)
                elif it[0] == "lds": lg.issue(it[1], tag=(Ins(it[1]).dst or "w"))
        if comp: fs_dump(a, 9)
        wstamp(a, 1, 36)
        a(f"""
        s_mov_b64 s[8:9], s[12:13]
        v_add_u32 v{CQ_}, 4, v{CQ_}
        s_add_u32 s34, s34, 18432
        s_cmp_ge_u32 s34, {L_XS + 3*18432}
        s_cselect_b32 s34, {L_XS}, s34
        s_add_u32 s36, s36, 1
        """)
    if comp:
        for k in range(18):
            acc = A0 if k % 2 == 0 else A1
            lg.wait(rset(XA + 4 * k, 4, 'a'))
            a(f"v_mfma_f32_16x16x32_bf16 {vr(acc,4)}, {vr(4*k,4,'a')}, {vr(XA+4*k,4,'a')}, {'0' if k < 2 else vr(acc,4)}")
            if k == 15 and fetch: lg.issue(f"ds_read_b32 v{VPL}, v{CQ_} offset:{4*C_XF}")
    elif fetch: lg.issue(f"ds_read_b32 v{VPL}, v{CQ_} offset:{4*C_XF}")
    if comp:
        Lf = newlab("mfr")
        wstamp(a, 2)
        lg.wait(rset(T0) | rset(STD, 4))
        a(f"""
        v_readfirstlane_b32 s40, v{T0}
        s_cmp_ge_u32 s40, 2
        s_cbranch_scc1 {Lf}
        """)
        fr_spin(a, 4 * C_FR)
        a.label(Lf)
        for r in range(4): a(f"v_add_f32 v{A0+r}, v{A0+r}, v{A1+r}")
        for t in fold_ops(1, A0): a(t)
        a(f"""
        ds_write_b64 v{WA}, {vr(FT,2)}
        ds_write_b8 v{VCB}, v{VONE} offset:{4*C_QD}
        v_add_u32 v{VCD}, 4, v{VCD}
        v_add_u32 v{VCB}, 4, v{VCB}
        """)
        wstamp(a, 3)
        a("s_add_u32 s32, s32, 1")
    if fetch:
        a(f"s_waitcnt lgkmcnt({2 if comp else 0})")
        a("s_branch L5_m2")
    else: a("s_branch L5_m")

def w3_main(a):
    a(f"""
    s_sub_u32 s16, s{P_X}, 2688
    s_subb_u32 s17, s{P_X+1}, 0
    s_mov_b32 s36, 2
    """)
    next_setup(a)
    epi_alone(a, 1, ACA, 512, -1, fr=False)
    a(f"""
    s_mov_b32 s36, 3
    s_mov_b64 s[8:9], s[12:13]
    s_mov_b32 s32, 3
    s_mov_b32 s46, {L_XS}
    s_mov_b64 s[44:45], 0
    v_mov_b32 v{CQ_}, v{VM}
    v_mov_b32 v{PFL}, 0
    L5_m:
    ds_read_b32 v{VPL}, v{CQ_} offset:{4*C_XF}
    s_waitcnt lgkmcnt(0)
    L5_m2:
    s_lshl_b32 s40, s36, 3
    s_sub_u32 s40, 120, s40
    s_lshr_b64 s[42:43], s[44:45], s40
    s_cmp_lt_u32 s36, 8
    s_cselect_b32 s42, 0xff, s42
    s_and_b32 s42, s42, 0xff
    s_cmp_ge_u32 s36, 16
    s_cselect_b32 s42, 0, s42
    v_readfirstlane_b32 s40, v{VPL}
    s_cmp_lg_u32 s40, s51
    s_cselect_b32 s42, 0, s42
    s_cmp_lg_u32 s42, 0xff
    s_cbranch_scc1 L5_m_nf
    """)
    wstamp(a, 0, 36)
    a(f"""
    s_cmp_lt_u32 s32, s36
    s_cbranch_scc0 L5_m_f
    """)
    w3_win(a, True, True)
    a.label("L5_m_f")
    w3_win(a, True, False)
    a.label("L5_m_nf")
    a(f"""
    s_cmp_lt_u32 s32, s36
    s_cbranch_scc0 L5_m_idle
    PCW:
    """.replace("PCW:", newlab("pcw") + ":"))
    if PCW:
        pass
    w3_win(a, False, True)
    a(f"""
    L5_m_idle:
    s_cmp_ge_u32 s36, 16
    s_cbranch_scc1 L5_fin
    s_cmp_lt_u32 s36, 8
    s_cbranch_scc1 L5_m_np
    buffer_load_dword v{PFL}, v{PFA}, s[4:7], s52 offen sc1
    s_waitcnt vmcnt(0)
    v_cmp_eq_u32 s[44:45], s{SN}, v{PFL}
    L5_m_np:
    """)
    budget(a, "L5_fin")
    a("s_branch L5_m")

def q_main(a):
    a(f"""
    s_cmp_eq_u32 s3, 3
    s_cbranch_scc1 L5_q3
    s_mul_i32 s33, s3, 18432
    s_add_u32 s33, s33, {L_XS}
    """)
    fetch_consts(a)
    lds_wait(a, C_BG2, 3, 8, sleep=1)
    fetch_dma(a, 3, 33)
    q_consts(a, False)
    phase_k(a, 2)
    if STOP == 2: a("s_branch L5_fin")
    q_main2(a)
    a.label("L5_q3")
    a("""
    s_cmp_ge_u32 s21, 30
    s_cselect_b32 s42, 2, 1
    """)
    lds_wait(a, C_BG1, "s42", 8, sleep=1)
    x_rows_issue(a)
    a("s_waitcnt vmcnt(0)")
    x_stats(a)
    a("buffer_store_dwordx2 v[8:9], v10, s[4:7], s46 offen")
    q_consts(a, True)
    w3_init(a)
    phase_k(a, 1)
    if STOP == 2: a("s_branch L5_fin")
    w3_main(a)
```

```python
from gen_common import *
W5_G = 0x0
W5_YT = 0x500000
W5_X2 = 0x800000
W5_OS = 0xB00000
import os as _os
OALIAS = int(_os.environ.get("OALIAS", "1"))
O_L1 = 0 if OALIAS else 16 * 18432
OS_ST = O_L1 + 16 * 18432
OS_XS = OS_ST + 65536
OS_G = OS_XS + 32768
W5_HL = 0x1100000
W5_FL = 0x1300000
FL_G = 0
FL_XS0 = 128
FL_O = 256
FL_X2 = 1280
FL_WL = 1792
FL_U = 2048
W5_FG = 0x1310000
FG_R = 0
FG_W = 0
FG_Y = 4096
W5_MB = 0x1320000
HL_FLAG = 3968
W5_WQ = 0x1400000
WQ_HG = 18 * 7 * 1024
W5_WOQ = 0x1700000
WOQ_CG = 18 * 4608
W5_PROF = 0x2800000
W5_TOT = 0x3000000
CS_ = 4160; FREG = 4 * CS_
L_CV = 0; CH = FREG + 4608
L_XS = 82944
L_STG = 138240
L_KV = L_STG; KVS = 10080
RS = 240; STGS = 3840
L_MISC = 159744
L_STAB = L_MISC + 1024
LDS5 = 163840
C_TOK = 0; C_ROLE = 1; C_NON = 2; C_CVD = 3; C_GO = 4; C_WR = 5; C_KVL = 6; C_YD = 7; C_VGO = 8; C_BG1 = 9; C_BG2 = 10; C_WI = 11; C_WOD = 13; C_KVD = 14
C_XR = 16
C_XF = 36
C_QD = 56
C_FR = 76
NCNT = 112
```

```python
import sys
from gen_common import *
from gen import HEADER
from k5_base import *
from k5_conv import *
from k5_rp import *
from k5_q import *

VLATE = int(os.environ.get('VLATE', '0'))
def gen_k5(a):
    name = NAME + "_kernel"
    head(a, name)
    a(f"""
    s_sub_u32 s31, s3, 4
    s_cmp_eq_u32 s3, 7
    s_cbranch_scc1 L5_w7
    """)
    kv_weights(a)
    a(f"""
    s_cmp_ge_u32 s3, 4
    s_cbranch_scc1 L5_a
    s_cmp_eq_u32 s3, 3
    s_cbranch_scc1 L5_w3
    """)
    a(f"""
    s_mov_b32 s32, -1
    s_mov_b32 s33, {L_XS + 2*18432}
    s_cmp_eq_u32 s3, 2
    s_cbranch_scc1 L5_rp_no
    """)
    rp_issue(a)
    a(f"""
    s_barrier
    s_cmp_eq_u32 s32, -1
    s_cbranch_scc1 L5_q_nou
    """)
    rp_process(a)
    a(f"""
    v_mov_b32 v8, 1
    ds_write_b32 v{VM}, v8 offset:{4*C_VGO}
    s_cmp_lg_u32 s3, 0
    s_cbranch_scc1 L5_kv
    """)
    stamp5(a, 1)
    non_wait(a)
    a("s_waitcnt vmcnt(0)")
    rp_flag(a)
    stamp5(a, 8)
    a("s_branch L5_kvx2")
    a.label("L5_w3")
    a("s_barrier")
    a.label("L5_q_nou")
    a("s_waitcnt vmcnt(0)")
    a("s_branch L5_kv")
    a.label("L5_w7")
    nonce_write(a)
    a("s_barrier")
    poller(a)
    a("s_branch L5_aux")
    a.label("L5_a")
    a(f"""
    s_cmp_eq_u32 s3, 6
    s_cbranch_scc1 L5_w6
    """)
    a("s_barrier")
    if VLATE:
        a(f"""
        s_cmp_lt_u32 s3, {VLATE}
        s_cbranch_scc1 L5_vgo
        """)
        lds_wait(a, C_VGO, 1, 8, sleep=1)
        a.label("L5_vgo")
    kv_issue(a)
    a(f"""
    s_cmp_ge_u32 s21, 24
    s_cbranch_scc1 L5_a_nc
    """)
    d_load(a)
    conv_pads(a)
    a(f"""
    L5_a_nc:
    s_waitcnt vmcnt(0)
    """)
    lds_sig(a, C_KVL, (8,))
    a("s_branch L5_kv")
    a.label("L5_w6")
    a(f"""
    s_cmp_ge_u32 s21, 24
    s_cbranch_scc1 L5_a_nc6
    """)
    d_load(a)
    conv_pads(a)
    a(f"""
    L5_a_nc6:
    s_barrier
    """)
    if GPF:
        a(f"s_sleep {GPF}")
        g_prefetch(a)
        a("s_waitcnt vmcnt(3)")
    else: a("s_waitcnt vmcnt(0)")
    a.label("L5_kv")
    def mid(a):
        a("s_waitcnt vmcnt(0)")
        non_wait(a)
        a(f"""
        s_cmp_lg_u32 s3, 1
        s_cbranch_scc1 L5_mdx
        s_cmp_eq_u32 s32, -1
        s_cbranch_scc1 L5_mdx
        """)
        rp_flag(a)
        a.label("L5_mdx")
    kv_section(a, mid)
    a.label("L5_kvx2")
    a(f"""
    s_cmp_lt_u32 s3, 4
    s_cbranch_scc1 L5_q
    s_cmp_ge_u32 s21, 24
    s_cbranch_scc1 L5_aux
    """)
    conv(a)
    if STOP <= 2: conv_flag(a)
    a.label("L5_aux")
    if STOP > 2:
        from k5_aux import aux_main
        aux_main(a)
    else: tok_wait(a)
    a("s_branch L5_fin")
    a.label("L5_q")
    q_main(a)
    a.label("L5_fin")
    stamp_dump(a)
    a.label("L5_end")
    a.label("L5_codeend")
    a("s_endpgm")
    return dict(name=name, vgpr=256, accum=112, grid=256, block=512, lds=LDS5)

def build1(path):
    a = Asm()
    i = gen_k5(a)
    body = a.finish()
    s = HEADER
    s += f"; @launch grid=({i['grid']},1,1) block=({i['block']},1,1) lds={i['lds']}\n"
    s += '.amdgcn_target "amdgcn-amd-amdhsa--gfx950"\n.text\n'
    s += body
    s += '.section .rodata,"a"\n'
    s += kernel_desc(i["name"], i["vgpr"], i.get("accum"))
    open(path, "w").write(s)
    print("wrote", path, len(s), "bytes; nops inserted:", a.nnop)

if __name__ == "__main__":
    build1(sys.argv[1] if len(sys.argv) > 1 else "v5.s")
```

```python
import os
from m5_common import *
from k_qkv import xlane_sum, ln_params, f2u
from k_prep import round_pairs

BUDGET = 200000
BSC = os.environ.get('BSC', ' sc1')
STOP = int(os.environ.get("STOP", "99"))
CPF = int(os.environ.get("CPF", "1"))
FORCEFB = int(os.environ.get("FORCEFB", "0"))
P_X, P_WQKV, P_WO, P_BQ, P_K, P_V, P_SHK, P_SSMK, P_SSMD, P_OUT, P_DBG, P_WS = [64 + 2 * i for i in range(12)]
VM = 1
PV = 111

_lab = [0]
def newlab(p):
    _lab[0] += 1
    return f"L_{p}{_lab[0]}"

def stamp5(a, i):
    if not PROF: return
    a("s_memtime s[98:99]")
    a("s_waitcnt lgkmcnt(0)")
    a("s_sub_u32 s98, s98, s96")
    if isinstance(i, int): a(f"v_writelane_b32 v{PV}, s98, {i}")
    else:
        a(f"s_mov_b32 m0, {i}")
        a(f"v_writelane_b32 v{PV}, s98, m0")

def stamp_dump(a):
    if not PROF: return
    a(f"""
    s_mov_b64 exec, -1
    s_lshl_b32 s40, s21, 3
    s_add_u32 s40, s40, s20
    s_lshl_b32 s40, s40, 3
    s_add_u32 s40, s40, s3
    s_lshl_b32 s40, s40, 8
    s_add_u32 s40, s40, {W5_PROF}
    v_writelane_b32 v{PV}, s97, 63
    v_lshlrev_b32 v0, 2, v2
    buffer_store_dword v{PV}, v0, s[4:7], s40 offen
    """)

def budget(a, X):
    a(f"""
    s_cmp_eq_u32 s28, 0
    s_cbranch_scc1 {X}
    s_sub_u32 s28, s28, 1
    """)

def lds_sig(a, idx, t=(0,), vaddr=None, rtn=None):
    va = VM if vaddr is None else vaddr
    a(f"""
    v_mov_b32 v{t[0]}, 1
    s_mov_b64 exec, 1
    ds_add_u32 v{va}, v{t[0]} offset:{4*idx}
    s_mov_b64 exec, -1
    """)

def lds_wait(a, idx, val, t=0, vaddr=None, sleep=0):
    va = VM if vaddr is None else vaddr
    L = newlab("lw"); X = newlab("lwx")
    a.label(L)
    a(f"""
    ds_read_b32 v{t}, v{va} offset:{4*idx}
    s_waitcnt lgkmcnt(0)
    v_readfirstlane_b32 s40, v{t}
    s_cmp_ge_u32 s40, {val}
    s_cbranch_scc1 {X}
    """)
    budget(a, X)
    if sleep: a(f"s_sleep {sleep}")
    a(f"s_branch {L}")
    a.label(X)

def gpoll(a, vaddr, soff, val, t, sleep=0):
    L = newlab("gp"); X = newlab("gpx")
    a.label(L)
    a(f"""
    buffer_load_dword v{t}, v{vaddr}, s[4:7], s{soff} offen sc1
    s_waitcnt vmcnt(0)
    v_cmp_ne_u32 vcc, {val}, v{t}
    s_cbranch_vccz {X}
    """)
    budget(a, X)
    if sleep: a(f"s_sleep {sleep}")
    a(f"s_branch {L}")
    a.label(X)

def tok_wait(a, t=8):
    L = newlab("tok"); X = newlab("tokx")
    a.label(L)
    a(f"""
    ds_read_b64 v[{t}:{t+1}], v{VM}
    s_waitcnt lgkmcnt(0)
    v_readfirstlane_b32 s40, v{t}
    v_readfirstlane_b32 s41, v{t+1}
    s_cmp_eq_u32 s40, 2
    s_cbranch_scc1 L5_fallback
    s_cmp_eq_u32 s40, 1
    s_cbranch_scc1 {X}
    """)
    budget(a, X)
    a("s_sleep 1")
    a(f"s_branch {L}")
    a.label(X)

def head(a, name):
    kernel_head(a, name)
    a(f"""
    s_cmp_ge_u32 s2, 256
    s_cbranch_scc1 L5_end
    """)
    if PROF:
        a("s_memtime s[96:97]")
        a("s_memrealtime s[98:99]")
    a(f"""
    s_load_dwordx16 s[64:79], s[0:1], 0
    s_load_dwordx8 s[80:87], s[0:1], 64
    """)
    if CPF:
        a(f"""
        s_getpc_b64 s[92:93]
        L5_pc:
        s_bfe_u32 s40, s2, 0x30003
        s_lshl_b32 s40, s40, 13
        v_lshlrev_b32 v4, 7, v0
        v_add_u32 v4, s40, v4
        v_min_u32 v4, L5_codeend-L5_pc, v4
        v_cmp_gt_u32 vcc, 64, v0
        s_mov_b64 exec, vcc
        global_load_dword a143, v4, s[92:93]
        s_mov_b64 exec, -1
        """)
    a(f"""
    v_lshrrev_b32 v1, 6, v0
    v_and_b32 v2, 63, v0
    s_getreg_b32 s20, hwreg(HW_REG_XCC_ID, 0, 3)
    v_readfirstlane_b32 s3, v1
    s_lshr_b32 s21, s2, 3
    v_lshlrev_b32 v3, 4, v2
    s_mov_b32 s28, {BUDGET}
    s_mov_b32 s29, 0
    v_mov_b32 v{VM}, {L_MISC}
    """)
    if PROF: a(f"v_mov_b32 v{PV}, 0")
    a(f"""
    s_branch L5_restart
    L5_fallback:
    s_mov_b32 s21, s41
    s_mov_b32 s29, 1
    s_mov_b32 s28, {BUDGET}
    s_waitcnt lgkmcnt(0)
    s_load_dwordx16 s[64:79], s[0:1], 0
    s_load_dwordx8 s[80:87], s[0:1], 64
    s_waitcnt vmcnt(0) lgkmcnt(0)
    s_barrier
    L5_restart:
    s_and_b32 s22, s21, 15
    s_lshr_b32 s30, s21, 4
    s_lshl_b32 s23, s20, 1
    s_add_u32 s23, s23, s30
    s_and_b32 s24, s21, 7
    s_bfe_u32 s25, s21, 0x10003
    s_mul_i32 s26, s20, {OS_G}
    s_add_u32 s26, s26, {W5_OS}
    s_lshl_b32 s27, s20, 12
    s_add_u32 s27, s27, {W5_FL}
    s_cmp_lg_u32 s3, 7
    s_cbranch_scc1 L5_nz
    """)
    a(f"""
    v_mov_b32 v8, 0
    v_mov_b32 v9, 0
    v_lshl_add_u32 v12, v2, 3, v{VM}
    v_lshl_add_u32 v13, v2, 2, v{VM}
    ds_write_b64 v12, v[8:9]
    v_mov_b32 v14, 2
    s_mov_b64 exec, 0x1f
    ds_write_b32 v13, v14 offset:{4*C_FR}
    s_mov_b64 exec, -1
    """)
    a.label("L5_nz")
    a("s_waitcnt lgkmcnt(0)")
    if PROF: a("s_mov_b32 s97, s98")
    srd(a, 4, P_WS, W5_TOT)


SN = 94
def non_wait(a, t=8):
    L = newlab("nw"); X = newlab("nwx")
    a(f"""
    {L}:
    ds_read_b32 v{t}, v{VM} offset:{4*C_NON}
    s_waitcnt lgkmcnt(0)
    v_readfirstlane_b32 s{SN}, v{t}
    s_cmp_lg_u32 s{SN}, 0
    s_cbranch_scc1 {X}
    """)
    budget(a, X)
    a("s_sleep 1")
    a(f"s_branch {L}")
    a.label(X)
    a(f"s_mov_b32 s{SN+1}, s{SN}")

def vpoll(a, vaddr, soff, t, sleep=0, imm=0):
    L = newlab("vp"); X = newlab("vpx")
    a(f"""
    {L}:
    buffer_load_dword v{t}, v{vaddr}, s[4:7], s{soff} offen offset:{imm} sc1
    s_waitcnt vmcnt(0)
    v_cmp_ne_u32 vcc, s{SN}, v{t}
    s_cbranch_vccz {X}
    """)
    budget(a, X)
    if sleep: a(f"s_sleep {sleep}")
    a(f"s_branch {L}")
    a.label(X)

def flag_store(a, soff, imm=0, sc1=False, t=8):
    a(f"""
    v_mov_b32 v{t}, 0
    v_mov_b32 v{t+1}, s{SN}
    s_mov_b64 exec, 1
    buffer_store_dword v{t+1}, v{t}, s[4:7], s{soff} offen offset:{imm}{" sc1" if sc1 else ""}
    s_mov_b64 exec, -1
    """)

def nonce_write(a):
    a(f"""
    s_lshl_b32 s40, s29, 1
    s_or_b32 s40, s2, s40
    s_cmp_lg_u32 s40, 1
    s_cbranch_scc1 L5_nnw
    s_memrealtime s[40:41]
    """)
    srd(a, 88, P_DBG, 256)
    a(f"""
    v_mov_b32 v8, 0
    s_waitcnt lgkmcnt(0)
    s_or_b32 s40, s40, 1
    v_mov_b32 v10, s40
    v_mov_b32 v11, 0
    s_mov_b64 exec, 1
    buffer_atomic_cmpswap v[10:11], v8, s[88:91], 0 offen sc1
    s_mov_b64 exec, -1
    L5_nnw:
    """)

def reload_ptrs(a):
    a(f"""
    s_load_dwordx16 s[64:79], s[0:1], 0
    s_load_dwordx8 s[80:87], s[0:1], 64
    """)

PSL = int(os.environ.get("PSL", "2"))
PDEP = int(os.environ.get("PDEP", "6"))
NSL = int(os.environ.get("NSL", "3"))
def poller(a):
    srd(a, 88, P_DBG, 256)
    a(f"""
    v_mov_b32 v8, 0
    v_mov_b32 v10, 0
    v_lshlrev_b32 v12, 8, v2
    s_lshl_b32 s40, s20, 5
    s_add_u32 s40, s40, s21
    s_lshl_b32 s40, s40, 8
    s_add_u32 s40, s40, {W5_MB}
    s_add_u32 s14, s{P_WS}, s40
    s_addc_u32 s15, s{P_WS+1}, 0
    s_add_u32 s10, s14, 128
    s_addc_u32 s11, s15, 0
    s_add_u32 s40, s27, {FL_WL}
    s_cmp_eq_u32 s21, 30
    s_cselect_b32 s41, 128, 0
    s_add_u32 s40, s40, s41
    s_add_u32 s8, s{P_WS}, s40
    s_addc_u32 s9, s{P_WS+1}, 0
    s_sub_u32 s12, 32, s21
    s_cmp_ge_u32 s21, 30
    s_cselect_b32 s12, s12, 0
    s_cselect_b64 s[8:9], s[8:9], s[14:15]
    s_add_u32 s40, s20, 7
    s_and_b32 s40, s40, 7
    s_add_u32 s41, s20, 8
    s_cmp_eq_u32 s21, 31
    s_cselect_b32 s18, s40, s41
    s_lshl_b32 s18, s18, 2
    s_add_u32 s18, s18, {W5_MB + 128}
    L5_pn:
    buffer_load_dword v8, v10, s[88:91], 0 offen sc1
    s_sleep {NSL}
    s_waitcnt vmcnt(30)
    v_readfirstlane_b32 s{SN}, v8
    s_cmp_lg_u32 s{SN}, 0
    s_cbranch_scc1 L5_pnx
    """)
    budget(a, "L5_pnx")
    a(f"""
    s_branch L5_pn
    L5_pnx:
    v_mov_b32 v9, s{SN}
    ds_write_b32 v{VM}, v9 offset:{4*C_NON}
    s_mov_b32 s{SN+1}, s{SN}
    s_lshl_b32 s40, s2, 2
    s_add_u32 s40, s40, s27
    s_mov_b64 exec, 1
    buffer_store_dword v9, v10, s[4:7], s40 offen offset:{FL_U}
    s_mov_b64 exec, -1
    s_mov_b32 s16, 0
    s_mov_b32 s17, 0
    """)
    stamp5(a, 8)
    if FORCEFB:
        a(f"""
        s_cmp_eq_u32 s29, 0
        s_cbranch_scc1 L5_pu
        """)
    a(f"""
    L5_pl:
    s_cmp_eq_u32 s12, 3
    s_cbranch_scc1 L5_pl1
    s_load_dwordx16 s[32:47], s[8:9], 0 glc
    s_load_dwordx16 s[48:63], s[8:9], 64 glc
    L5_pl1:
    s_load_dwordx16 s[64:79], s[10:11], 0 glc
    s_cmp_eq_u32 s12, 3
    s_waitcnt lgkmcnt(0)
    s_cbranch_scc1 L5_pw
    """)
    for i in range(4):
        a(f"s_cmp_eq_u64 s[{32+2*i}:{33+2*i}], s[{SN}:{SN+1}]")
        a("s_cbranch_scc0 L5_pw")
    a(f"""
    s_cmp_eq_u32 s40, s{SN}
    s_cbranch_scc0 L5_pw
    s_cmp_eq_u32 s12, 2
    s_cbranch_scc1 L5_pld
    """)
    for i in range(4, 13):
        a(f"s_cmp_eq_u64 s[{32+2*i}:{33+2*i}], s[{SN}:{SN+1}]")
        a("s_cbranch_scc0 L5_pw")
    a(f"""
    s_cmp_eq_u32 s58, s{SN}
    s_cbranch_scc0 L5_pw
    s_cmp_eq_u32 s12, 1
    s_cbranch_scc1 L5_pld
    """)
    for i in range(13, 16):
        a(f"s_cmp_eq_u64 s[{32+2*i}:{33+2*i}], s[{SN}:{SN+1}]")
        a("s_cbranch_scc0 L5_pw")
    a(f"""
    v_mov_b32 v9, 1
    ds_write_b32 v{VM}, v9
    s_mov_b32 s12, 3
    s_cmp_lt_u32 s21, 24
    s_cbranch_scc1 L5_ptk
    v_mov_b32 v9, 3
    ds_write_b32 v{VM}, v9 offset:{4*C_BG2}
    L5_ptk:
    """)
    stamp5(a, 9)
    a(f"""
    s_branch L5_pw
    L5_pld:
    v_mov_b32 v9, s{SN}
    """)
    for i in range(4):
        a(f"buffer_store_dword v9, v12, s[4:7], s18 offen sc1")
        if i < 3: a("s_add_u32 s18, s18, 16384")
    a(f"""
    s_mov_b32 s12, 0
    s_mov_b64 s[8:9], s[14:15]
    """)
    lds_sig(a, C_BG1, (9,))
    stamp5(a, 11)
    a(f"""
    L5_pw:
    s_mov_b32 s13, 0
    """)
    for i in range(8):
        a(f"""
        s_cmp_eq_u32 s{64+i}, s{SN}
        s_cbranch_scc0 L5_pw2
        s_mov_b32 s13, {i+1}
        """)
    a(f"""
    L5_pw2:
    s_cmp_le_u32 s13, s16
    s_cbranch_scc1 L5_pg
    s_mov_b32 s16, s13
    s_mul_i32 s40, s13, 27
    v_mov_b32 v9, s40
    ds_write_b32 v{VM}, v9 offset:{4*C_WR}
    """)
    if PROF:
        a("s_add_u32 s41, s16, 20")
        stamp5(a, "s41")
    a(f"""
    L5_pg:
    s_cmp_lg_u32 s12, 3
    s_cbranch_scc1 L5_pf
    s_cmp_lg_u32 s16, 8
    s_cbranch_scc1 L5_pf2
    """)
    for i in range(4):
        a(f"s_cmp_eq_u64 s[{72+2*i}:{73+2*i}], s[{SN}:{SN+1}]")
        a("s_cbranch_scc0 L5_pf2")
    a(f"""
    s_branch L5_px
    L5_pf2:
    """)
    budget(a, "L5_px")
    a(f"""
    s_branch L5_pl
    L5_pf:
    s_add_u32 s17, s17, 1
    s_and_b32 s40, s17, 15
    s_or_b32 s40, s40, s29
    s_cmp_lg_u32 s40, 0
    s_cbranch_scc1 L5_pf2
    L5_pu:
    buffer_load_dwordx4 v[20:23], v3, s[4:7], s27 offen offset:{FL_U} sc1
    v_lshlrev_b32 v24, 2, v2
    s_mov_b32 s43, 0
    s_mov_b64 s[44:45], 0
    s_mov_b32 s41, 0
    s_waitcnt vmcnt(0)
    """)
    for k in range(4):
        a(f"""
        v_cmp_eq_u32 s[50:51], s{SN}, v{20+k}
        s_bcnt1_i32_b64 s42, s[50:51]
        s_add_u32 s43, s43, s42
        s_or_b64 s[44:45], s[44:45], s[50:51]
        v_add_u32 v25, {k}, v24
        v_cmp_gt_u32 vcc, s2, v25
        s_and_b64 s[48:49], vcc, s[50:51]
        s_bcnt1_i32_b64 s48, s[48:49]
        s_add_u32 s41, s41, s48
        """)
    if FORCEFB:
        a(f"""
        s_cmp_ge_u32 s43, 32
        s_cbranch_scc1 L5_pu2
        """)
        budget(a, "L5_px")
        a(f"""
        s_branch L5_pu
        L5_pu2:
        s_sub_u32 s41, 31, s41
        """)
    else:
        a(f"""
        s_cmp_lt_u32 s43, 32
        s_cbranch_scc1 L5_pf2
        s_lshr_b64 s[48:49], s[44:45], 1
        s_or_b64 s[44:45], s[44:45], s[48:49]
        s_mov_b32 s48, 0x55555555
        s_mov_b32 s49, 0x55555555
        s_and_b64 s[44:45], s[44:45], s[48:49]
        s_cmp_eq_u64 s[44:45], s[48:49]
        s_cbranch_scc1 L5_pf2
        """)
    a(f"""
    s_and_b32 s41, s41, 31
    v_mov_b32 v8, 2
    v_mov_b32 v9, s41
    ds_write_b64 v{VM}, v[8:9]
    v_mov_b32 v9, 216
    ds_write_b32 v{VM}, v9 offset:{4*C_WR}
    ds_write_b32 v{VM}, v9 offset:{4*C_BG1}
    ds_write_b32 v{VM}, v9 offset:{4*C_BG2}
    s_branch L5_fallback
    L5_px:
    """)
    reload_ptrs(a)
    lds_sig(a, C_CVD, (8,))
    stamp5(a, 10)
    lds_wait(a, C_WI, 4, 8, sleep=2)
    l2_prefetch(a)

def l2_prefetch(a):
    n = OS_G // 32 // 128
    assert OS_G % 4096 == 0 and n == 96
    a(f"""
    v_lshlrev_b32 v4, 7, v2
    s_mul_i32 s40, s21, {OS_G // 32}
    s_add_u32 s40, s40, s26
    s_add_u32 s42, s40, 8192
    s_lshl_b32 s41, s20, 5
    s_add_u32 s41, s41, s21
    s_mul_i32 s41, s41, 9216
    s_add_u32 s41, s41, {W5_X2}
    s_add_u32 s43, s41, 8192
    buffer_load_dword a136, v4, s[4:7], s40 offen
    buffer_load_dword a137, v4, s[4:7], s41 offen
    s_mov_b32 exec_hi, 0
    buffer_load_dword a138, v4, s[4:7], s42 offen
    s_mov_b64 exec, 0xff
    buffer_load_dword a139, v4, s[4:7], s43 offen
    s_mov_b64 exec, -1
    """)
```

```python
from k5_base import *
from k5_rp import *

XE, XO = 4, 5
CP_, CQ_ = 6, 8
VCD, VCB, VONE = 10, 11, 12
VST = 13; SGA, SGB = 14, 15; WA, WB = 16, 17; T0, T1 = 18, 19
STD = 20; CSR = 24
ACA, ACB, AX0, AX1 = 32, 40, 48, 56
PST3 = 36
FT = 64; XR_ = 72; ONES = 96; VPL, VPA = 100, 101
LAG = int(os.environ.get('LAG', '18'))
WBT = int(os.environ.get('WBT', '0'))
WBE = int(os.environ.get('WBE', '0'))

XROW = [16, 20, 24, 28, 32, 36, 46, 50, 54]
def x_stats(a):
    a("s_mov_b32 s40, 0x3f803f80")
    for i in range(36):
        x = XROW[i >> 2] + (i & 3)
        c = "0" if i < 4 else f"v{8+(i&3)}"
        c2 = "0" if i < 4 else f"v{12+(i&3)}"
        a(f"v_dot2_f32_bf16 v{8+(i&3)}, v{x}, s40, {c}")
        a(f"v_dot2_f32_bf16 v{12+(i&3)}, v{x}, v{x}, {c2}")
    a(f"""
    v_add_f32 v8, v8, v9
    v_add_f32 v10, v10, v11
    v_add_f32 v12, v12, v13
    v_add_f32 v14, v14, v15
    v_add_f32 v8, v8, v10
    v_add_f32 v9, v12, v14
    """)
    for m in ("quad_perm:[1,0,3,2]", "quad_perm:[2,3,0,1]", "row_half_mirror"):
        a(f"v_add_f32_dpp v8, v8, v8 {m} row_mask:0xf bank_mask:0xf")
        a(f"v_add_f32_dpp v9, v9, v9 {m} row_mask:0xf bank_mask:0xf")
    a(f"""
    v_and_b32 v11, 7, v2
    v_cmp_eq_u32 vcc, 0, v11
    v_cndmask_b32 v8, 0, v8, vcc
    v_cndmask_b32 v9, 0, v9, vcc
    v_lshrrev_b32 v10, 3, v2
    v_and_b32 v12, 1, v10
    v_lshrrev_b32 v10, 1, v10
    v_lshl_add_u32 v10, v12, 3, v10
    v_lshlrev_b32 v10, 6, v10
    v_lshl_add_u32 v10, v11, 3, v10
    s_lshr_b32 s40, s21, 1
    s_lshl_b32 s40, s40, 10
    s_and_b32 s41, s21, 1
    s_lshl_b32 s41, s41, 8
    s_add_u32 s40, s40, s41
    s_add_u32 s40, s40, s26
    s_add_u32 s46, s40, {OS_XS}
    """)

def x_rows_issue(a):
    srd(a, 8, P_X, XB)
    a(f"""
    v_lshrrev_b32 v4, 3, v2
    v_mul_u32_u24 v4, 1152, v4
    v_and_b32 v5, 7, v2
    v_lshl_add_u32 v4, v5, 4, v4
    s_lshl_b32 s40, s20, 5
    s_add_u32 s40, s40, s21
    s_mul_i32 s40, s40, {8*1152}
    """)
    for t in range(9):
        a(f"buffer_load_dwordx4 {vr(XROW[t],4)}, v4, s[8:11], s40 offen offset:{128*t}")

def q_consts(a, m):
    a(f"""
    v_and_b32 v{T0}, 7, v2
    v_lshrrev_b32 v{T1}, 4, v2
    v_xor_b32 v{XE}, v{T0}, v{T1}
    v_lshlrev_b32 v{XE}, 4, v{XE}
    v_lshl_add_u32 v{XE}, v{T0}, 7, v{XE}
    v_bfe_u32 v{T0}, v2, 3, 1
    v_mul_u32_u24 v{T0}, 9216, v{T0}
    v_add_u32 v{XE}, v{XE}, v{T0}
    v_xor_b32 v{XO}, 64, v{XE}
    v_add_u32 v{CP_}, {L_XS}, v{XE}
    v_add_u32 v{CP_+1}, {L_XS}, v{XO}
    v_mov_b32 v{VONE}, 1
    v_add_u32 v{VCD}, 12, v{VM}
    v_add_u32 v{VCB}, s3, v{VCD}
    v_and_b32 v{T0}, 15, v2
    v_lshlrev_b32 v{VST}, 4, v{T0}
    v_add_u32 v{VST}, {L_STAB}, v{VST}
    v_mul_u32_u24 v{SGA}, {RS}, v{T0}
    v_mov_b32 v{ONES}, 0x3f803f80
    v_mov_b32 v{ONES+1}, 0x3f803f80
    v_mov_b32 v{ONES+2}, 0x3f803f80
    v_mov_b32 v{ONES+3}, 0x3f803f80
    s_mov_b32 s51, 0x01010101
    s_mov_b32 s50, 0
    s_mul_i32 s35, s22, {WQ_HG}
    """)
    if m:
        a(f"""
        v_lshlrev_b32 v{T0}, 3, v{T1}
        v_add_u32 v{T0}, 128, v{T0}
        v_mul_u32_u24 v{SGB}, 40, v{T1}
        v_add_u32 v{SGB}, 96, v{SGB}
        v_cmp_gt_u32 vcc, 32, v2
        v_cndmask_b32 v{T0}, v{SGB}, v{T0}, vcc
        v_add_u32 v{SGA}, v{SGA}, v{T0}
        s_add_u32 s35, s35, {W5_WQ + 4096}
        v_and_b32 v{T0}, 15, v2
        v_cmp_gt_u32 vcc, 12, v{T0}
        v_mov_b32 v{SGB}, 0x7fffffff
        v_cndmask_b32 v{SGB}, v{SGB}, v3, vcc
        """)
    else:
        a(f"""
        v_lshl_add_u32 v{SGA}, v{T1}, 3, v{SGA}
        s_lshl_b32 s40, s3, 6
        s_lshr_b32 s41, s3, 1
        s_lshl_b32 s42, s41, 4
        s_add_u32 s40, s40, s42
        s_lshl_b32 s42, s41, 3
        s_add_u32 s42, s42, 32
        v_add_u32 v{SGA}, s40, v{SGA}
        v_add_u32 v{SGB}, s42, v{SGA}
        s_lshl_b32 s40, s3, 11
        s_lshl_b32 s41, s41, 10
        s_add_u32 s35, s35, s40
        s_add_u32 s35, s35, s41
        s_add_u32 s35, s35, {W5_WQ}
        """)

def gate(a, need):
    L = newlab("gt"); X = newlab("gtx")
    a(f"""
    s_cmp_ge_u32 s50, {need}
    s_cbranch_scc1 {X}
    {L}:
    ds_read_b32 v{VPL}, v{VM} offset:{4*C_WR}
    s_waitcnt lgkmcnt(0)
    v_readfirstlane_b32 s50, v{VPL}
    s_cmp_ge_u32 s50, {need}
    s_cbranch_scc1 {X}
    """)
    budget(a, X)
    a("s_sleep 1")
    a(f"s_branch {L}")
    a.label(X)

def fold_ops(NT, acc):
    R = []
    for t in range(NT):
        for r in range(4): R.append(f"v_fma_f32 v{FT+4*t+r}, v{CSR+4*t+r}, v{STD}, v{acc+4*t+r}")
        for r in range(4): R.append(f"v_mul_f32 v{FT+4*t+r}, v{FT+4*t+r}, v{STD+1}")
        R.append(f"v_cvt_pk_bf16_f32 v{FT+4*t}, v{FT+4*t}, v{FT+4*t+1}")
        R.append(f"v_cvt_pk_bf16_f32 v{FT+4*t+1}, v{FT+4*t+2}, v{FT+4*t+3}")
    R.append(f"v_add_u32 v{WA}, v{SGA}, v{STD+2}")
    if NT == 2: R.append(f"v_add_u32 v{WB}, v{SGB}, v{STD+2}")
    return R

def fr_spin(a, off):
    L = newlab("fr"); X = newlab("frx")
    a(f"""
    {L}:
    ds_read_b32 v{T0}, v{VCD} offset:{off}
    s_waitcnt lgkmcnt(0)
    v_readfirstlane_b32 s40, v{T0}
    s_cmp_ge_u32 s40, 2
    s_cbranch_scc1 {X}
    """)
    budget(a, X)
    a(f"s_branch {L}")
    a.label(X)

def epi_alone(a, NT, acc, stoff, dn, fr=True):
    a(f"ds_read_b128 {vr(STD,4)}, v{VST} offset:{stoff}")
    if fr: fr_spin(a, 4 * (C_FR + dn))
    else: a("s_waitcnt lgkmcnt(0)")
    for t in fold_ops(NT, acc): a(t)
    a(f"ds_write_b64 v{WA}, {vr(FT,2)}")
    if NT == 2: a(f"ds_write_b64 v{WB}, {vr(FT+4,2)}")
    a(f"ds_write_b8 v{VCB}, v{VONE} offset:{4*(C_QD+dn)}")

def phase_k(a, NT):
    vm = Cnt(a, "vmcnt", 63); lg = Cnt(a, "lgkmcnt", 15)
    accs = (AX0, AX1, ACA)
    wl = 3 if NT == 2 else SGB
    vm.q.append("xs")
    def xreads(s):
        for i in range(3):
            lg.issue(f"ds_read_b128 {vr(XR_+12*(s&1)+4*i,4)}, v{CP_+(s&1)} offset:{18432*i + 1024*(s>>1)}")
    def mma(s):
        if s + 1 < 18: xreads(s + 1)
        vm.wait(rset(4 * NT * s, 4 * NT, 'a'))
        for t in range(NT):
            w = vr(4 * NT * s + 4 * t, 4, 'a')
            c = CSR + 4 * t
            a(f"v_mfma_f32_16x16x32_bf16 {vr(c,4)}, {w}, {vr(ONES,4)}, {'0' if s == 0 else vr(c,4)}")
        for i in range(3):
            lg.wait(rset(XR_ + 12 * (s & 1) + 4 * i, 4))
            for t in range(NT):
                w = vr(4 * NT * s + 4 * t, 4, 'a')
                c = accs[i] + 4 * t
                a(f"v_mfma_f32_16x16x32_bf16 {vr(c,4)}, {w}, {vr(XR_+12*(s&1)+4*i,4)}, {'0' if s == 0 else vr(c,4)}")
    if NT == 1:
        vm.wait("xs")
        a(f"""
        s_lshl_b32 s40, s21, 2
        s_add_u32 s40, s40, s27
        """)
        flag_store(a, 40, FL_XS0, t=64)
        a(f"""
        s_lshl_b32 s42, s30, 6
        s_add_u32 s42, s42, s27
        s_add_u32 s42, s42, {FL_XS0}
        v_and_b32 v64, 15, v2
        v_lshlrev_b32 v64, 2, v64
        L5_xp:
        buffer_load_dword v65, v64, s[4:7], s42 offen sc1
        ds_read_b64 v[66:67], v{VM}
        s_waitcnt vmcnt(0) lgkmcnt(0)
        v_readfirstlane_b32 s40, v66
        v_readfirstlane_b32 s41, v67
        v_cmp_ne_u32 vcc, s{SN}, v65
        s_cmp_eq_u32 s40, 2
        s_cbranch_scc1 L5_fallback
        s_cbranch_vccz L5_xpx
        """)
        budget(a, "L5_xpx")
        a("s_branch L5_xp")
        a.label("L5_xpx")
        vm.q = []
        a("s_sub_u32 s42, s39, 2048")
        for i in range(3):
            vm.issue(f"buffer_load_dwordx4 {vr(PST3+4*i,4)}, v3, s[4:7], s42 offen offset:{2048-1024*i}{BSC}")
    for s in range(18 + LAG):
        if s < 18:
            gate(a, 12 * (s + 1))
            for t in range(NT):
                vm.issue(f"buffer_load_dwordx4 {vr(4*NT*s+4*t,4,'a')}, v{wl}, s[4:7], s35 offen offset:{1024*t}{BSC}")
            if s < 17: a("s_add_u32 s35, s35, 7168")
            else: lds_sig(a, C_WI, (T0,))
        if NT == 1 and s == min(LAG, 17):
            vm.wait(rset(PST3, 12))
            for i in range(3):
                fetch_stats(a, 36, PST3 + 4 * i, lg)
                a("s_add_u32 s36, s36, 1")
            lg.issue(f"ds_write_b32 v{VM}, v{VONE} offset:{4*(C_XR+1)}", tag="w")
            lg.wait_all()
        if s == LAG:
            if NT == 2:
                vm.wait("xs")
                lds_sig(a, C_XR + 2, (T0,))
            lds_wait(a, C_XR + 2, 3, T0)
            xreads(0)
        if s >= LAG: mma(s - LAG)
        if s == LAG: stamp5(a, 5)
    for i in range(3): a(f"ds_write_b8 v{VCB}, v{VONE} offset:{4*(C_XF+i-3)}")
    stamp5(a, 6)
    tok_wait(a, T0)
    if NT == 2: lds_wait(a, C_XR + 1, 1, T0)
    epi_alone(a, NT, AX0, 0, -3, fr=False)
    epi_alone(a, NT, AX1, 256, -2, fr=False)
    stamp5(a, 7)

def body(a, lg, odd):
    acc, pacc = (ACB, ACA) if odd else (ACA, ACB)
    cur, nxt = (CQ_, CP_) if odd else (CP_, CQ_)
    dn = 0 if odd else 1
    fo = fold_ops(2, pacc)
    Ls = newlab("frs"); Lb = newlab("frb")
    fill = {k: [] for k in range(18)}
    fill[0] = [("lds", f"ds_read_b32 v{T0}, v{VCD} offset:{4*(C_FR+dn-1)}"), ("lds", f"ds_read_b128 {vr(STD,4)}, v{VST} offset:{256*dn}")]
    fill[2] = [("wait", rset(T0) | rset(STD, 4)), ("i", f"v_readfirstlane_b32 s40, v{T0}"), ("i", fo.pop(0)), ("i", "s_cmp_lt_u32 s40, 2")]
    fill[3] = [("i", f"s_cbranch_scc1 {Ls}"), ("lab", Lb)]
    for k in range(3, 10):
        for _ in range(3):
            if fo: fill[k].append(("i", fo.pop(0)))
    fill[8].append(("lds", f"ds_read_b32 v{T1}, v{VCD} offset:{4*(C_XR+dn+1)}"))
    assert not fo or len(fo) <= 2, len(fo)
    fill[10] = [("i", t) for t in fo] + [("lds", f"ds_write_b64 v{WA}, {vr(FT,2)}"), ("lds", f"ds_write_b64 v{WB}, {vr(FT+4,2)}"),
                 ("lds", f"ds_write_b8 v{VCB}, v{VONE} offset:{4*(C_QD+dn-1)}")]
    fill[11] = [("wait", rset(T1)), ("i", f"v_add_u32 v{nxt}, v{XE}, v{T1}"), ("i", f"v_add_u32 v{nxt+1}, v{XO}, v{T1}"), ("i", f"v_readfirstlane_b32 s37, v{T1}")]
    fill[12] = [("lds", f"ds_write_b8 v{VCB}, v{VONE} offset:{4*(C_XF+dn)}")]
    if not odd:
        fill[14] = [("i", f"v_xor_b32 v{VST}, 512, v{VST}"), ("i", f"v_add_u32 v{VCD}, 8, v{VCD}"), ("i", f"v_add_u32 v{VCB}, 8, v{VCB}")]
    for k in range(18):
        x = XR_ + 4 * (k % 6)
        if k % 2 == 0: lg.wait(rset(x, 4) | rset(XR_ + 4 * ((k + 1) % 6), 4))
        f = fill[k]
        def emit(n):
            while f and n > 0:
                kind, v = f.pop(0)
                if kind == "i": a(v)
                elif kind == "lds": lg.issue(v, tag=(Ins(v).dst or "w"))
                elif kind == "wait": lg.wait(v)
                elif kind == "lab": a.label(v); continue
                n -= 1
        for t in range(2):
            a(f"v_mfma_f32_16x16x32_bf16 {vr(acc+4*t,4)}, {vr(8*k+4*t,4,'a')}, {vr(x,4)}, {'0' if k == 0 else vr(acc+4*t,4)}")
            if t == 0: emit(2)
        kk = k + 6
        if kk < 18: lg.issue(f"ds_read_b128 {vr(x,4)}, v{cur+(kk&1)} offset:{1024*(kk>>1)}")
        else: lg.issue(f"ds_read_b128 {vr(x,4)}, v{nxt+(kk&1)} offset:{1024*((kk-18)>>1)}")
        emit(99)
    return (Ls, Lb, 4 * (C_FR + dn - 1))

def xr_spin(a, off, nxt):
    L = newlab("xr"); X = newlab("xrx")
    a(f"""
    {L}:
    ds_read_b32 v{T1}, v{VCD} offset:{off}
    s_waitcnt lgkmcnt(0)
    v_readfirstlane_b32 s37, v{T1}
    s_cmp_lg_u32 s37, 0
    s_cbranch_scc1 {X}
    """)
    budget(a, X)
    a(f"s_branch {L}")
    a.label(X)
    a(f"v_add_u32 v{nxt}, v{XE}, v{T1}")
    a(f"v_add_u32 v{nxt+1}, v{XO}, v{T1}")
    for k in range(6):
        a(f"ds_read_b128 {vr(XR_+4*k,4)}, v{nxt+(k&1)} offset:{1024*(k>>1)}")
    a("s_waitcnt lgkmcnt(0)")

def q_main2(a):
    a(f"""
    v_xor_b32 v{VST}, 512, v{VST}
    s_mov_b32 s32, 3
    s_or_b32 s40, s21, s3
    s_cmp_eq_u32 s40, 0
    s_cselect_b32 s36, {WBT}, 99
    """)
    xr_spin(a, 4 * C_XR, CQ_)
    lg = Cnt(a, "lgkmcnt", 15)
    a.label("L5_qo")
    if WBT:
        a(f"""
        s_cmp_lg_u32 s32, s36
        s_cbranch_scc1 L5_qnw
        buffer_wbl2 sc1
        L5_qnw:
        """)
    if PROF:
        a("s_add_u32 s38, s32, 8")
        stamp5(a, "s38")
    lg.q = [rset(XR_ + 4 * k, 4) for k in range(6)]
    s1 = body(a, lg, True)
    a(f"""
    s_cmp_eq_u32 s37, 0
    s_cbranch_scc1 L5_qo_slow
    L5_qe:
    """)
    if PROF:
        a("s_add_u32 s38, s32, 9")
        stamp5(a, "s38")
    lg.q = [rset(XR_ + 4 * k, 4) for k in range(6)]
    s2 = body(a, lg, False)
    a(f"""
    s_add_u32 s32, s32, 2
    s_cmp_lg_u32 s37, 0
    s_cbranch_scc1 L5_qo
    """)
    epi_alone(a, 2, ACA, 0, -1)
    xr_spin(a, 4 * C_XR, CQ_)
    a("s_branch L5_qo")
    a.label("L5_qo_slow")
    epi_alone(a, 2, ACB, 256, 0)
    a(f"""
    s_cmp_ge_u32 s32, 15
    s_cbranch_scc1 L5_qfin
    """)
    xr_spin(a, 4 * (C_XR + 1), CP_)
    a("s_branch L5_qe")
    for Ls, Lb, off in (s1, s2):
        a.label(Ls)
        fr_spin(a, off)
        a(f"s_branch {Lb}")
    a.label("L5_qfin")
    if WBE:
        a(f"""
        s_cmp_eq_u32 s36, 99
        s_cbranch_scc1 L5_fin
        s_sleep {WBE}
        buffer_wbl2 sc1
        """)
    a("s_branch L5_fin")

FV0, FV1 = 102, 103; PST = 104
SSEG = 54
def fetch_consts(a):
    a(f"""
    v_lshrrev_b32 v{T0}, 3, v2
    v_and_b32 v{T1}, 7, v2
    v_xor_b32 v{T1}, v{T1}, v{T0}
    v_mul_u32_u24 v{FV0}, 2304, v{T0}
    v_lshl_add_u32 v{FV0}, v{T1}, 4, v{FV0}
    v_add_u32 v{FV1}, 1152, v{FV0}
    v_lshrrev_b32 v{WB}, 2, v2
    v_lshlrev_b32 v{WB}, 4, v{WB}
    v_add_u32 v{WB}, {L_STAB}, v{WB}
    s_mov_b32 s10, 32768
    s_mov_b32 s11, 0x00020000
    s_lshl_b32 s39, s30, 13
    s_add_u32 s39, s39, s26
    s_add_u32 s39, s39, {OS_XS + 7*1024}
    """)
    for seg in range(9):
        a(f"s_movk_i32 s{SSEG+seg}, {2688 + 128*seg - 1024*(seg&3)}")

def stats_load(a, sf, dst=PST):
    a(f"""
    s_lshr_b32 s40, s{sf}, 3
    s_mul_i32 s40, s40, {16384 + 8192}
    s_lshl_b32 s41, s{sf}, 10
    s_sub_u32 s40, s40, s41
    s_add_u32 s40, s40, s39
    buffer_load_dwordx4 {vr(dst,4)}, v3, s[4:7], s40 offen{BSC}
    """)

PFL, PFA = 108, 109
def poll_issue(a, sf):
    a(f"""
    s_lshl_b32 s40, s{sf}, 5
    s_sub_u32 s40, s52, s40
    buffer_load_dword v{PFL}, v{PFA}, s[4:7], s40 offen sc1
    """)

def fetch_dma(a, sf, sl=34):
    a(f"""
    s_and_b32 s40, s{sf}, 7
    s_lshl_b32 s41, s23, 3
    s_add_u32 s41, s41, 7
    s_sub_u32 s40, s41, s40
    s_mul_i32 s40, s40, 18432
    s_add_u32 s42, s{P_WS}, {W5_X2}
    s_addc_u32 s43, s{P_WS+1}, 0
    s_cmp_lt_u32 s{sf}, 8
    s_cselect_b64 s[42:43], s[{P_X}:{P_X+1}], s[42:43]
    s_add_u32 s8, s42, s40
    s_addc_u32 s9, s43, 0
    s_sub_u32 s8, s8, 2688
    s_subb_u32 s9, s9, 0
    """)
    for rh in range(2):
        for seg in range(9):
            if seg % 4 == 0:
                a(f"s_add_u32 m0, s{sl}, {9216*rh + 1024*seg}")
                a("s_nop 0")
            a(f"buffer_load_dwordx4 v{FV0+rh}, s[8:11], s{SSEG+seg} offen offset:{1024*(seg&3)}{BSC} lds")

WB2 = 9; PCW = 0
def fetch_stats(a, sf, src=PST, lg=None, tmp=T0):
    a(f"""
    v_add_f32 v{src}, v{src}, v{src+2}
    v_add_f32 v{src+1}, v{src+1}, v{src+3}
    """)
    for m in ("quad_perm:[1,0,3,2]", "quad_perm:[2,3,0,1]"):
        a(f"v_add_f32_dpp v{src}, v{src}, v{src} {m} row_mask:0xf bank_mask:0xf")
        a(f"v_add_f32_dpp v{src+1}, v{src+1}, v{src+1} {m} row_mask:0xf bank_mask:0xf")
    ln_params(a, src, src + 1, src + 2, src + 3)
    a(f"""
    v_mov_b32 v{src+2}, s33
    s_and_b32 s40, s{sf}, 3
    s_lshl_b32 s40, s40, 8
    v_add_u32 v{tmp}, s40, v{WB}
    """)
    t = f"ds_write_b128 v{tmp}, {vr(src,4)}"
    if lg: lg.issue(t, tag="w")
    else: a(t)
    a(f"""
    s_cmp_eq_u32 s{sf}, 7
    s_cselect_b32 s40, {STGS}, 0
    s_add_u32 s33, s33, s40
    s_add_u32 s33, s33, {STGS}
    s_sub_u32 s40, s33, {5*STGS}
    s_cmp_ge_u32 s33, {L_STG + 5*STGS}
    s_cselect_b32 s33, s40, s33
    """)

def w3_init(a):
    fetch_consts(a)
    a(f"""
    s_mov_b32 s36, 0
    s_mov_b32 s33, {L_STG}
    s_mov_b32 s34, {L_XS}
    s_lshl_b32 s52, s30, 8
    s_add_u32 s52, s52, s27
    s_add_u32 s52, s52, {FL_X2}
    v_lshlrev_b32 v{PFA}, 2, v2
    """)

def dma_setup(a, sf):
    a(f"""
    s_and_b32 s40, s{sf}, 7
    s_lshl_b32 s41, s23, 3
    s_add_u32 s41, s41, 7
    s_sub_u32 s40, s41, s40
    s_mul_i32 s40, s40, 18432
    s_add_u32 s42, s{P_WS}, {W5_X2}
    s_addc_u32 s43, s{P_WS+1}, 0
    s_cmp_lt_u32 s{sf}, 8
    s_cselect_b64 s[42:43], s[{P_X}:{P_X+1}], s[42:43]
    s_add_u32 s8, s42, s40
    s_addc_u32 s9, s43, 0
    s_sub_u32 s8, s8, 2688
    s_subb_u32 s9, s9, 0
    """)
def dma1(a, i, sl=34, m0=False):
    rh, seg = divmod(i, 9)
    if seg % 4 == 0 or m0:
        a(f"s_add_u32 m0, s{sl}, {9216*rh + 1024*(seg & ~3)}")
        a("s_nop 0")
    a(f"buffer_load_dwordx4 v{FV0+rh}, s[8:11], s{SSEG+seg} offen offset:{1024*(seg&3)}{BSC} lds")

NPRE = int(os.environ.get("NPRE", "10"))
PT0 = int(os.environ.get("PT0", "-1"))
def wstamp(a, k, sr=32):
    if not PROF or PT0 < 0: return
    a(f"""
    s_sub_u32 s40, s{sr}, {PT0}
    s_lshl_b32 s40, s40, 2
    s_add_u32 s40, s40, {24 + k}
    s_min_u32 s40, s40, 62
    """)
    stamp5(a, "s40")
XA = 72
class Rec:
    def __init__(self): self.L = []
    def __call__(self, text):
        for ln in text.strip("\n").split("\n"):
            if ln.strip(): self.L.append(ln.strip())
    def label(self, n): self.L.append(n + ":")

def sgroups(L):
    G = []
    for t in L:
        if G and t.startswith(("s_addc", "s_subb", "s_cselect", "s_cbranch")): G[-1].append(t)
        else: G.append([t])
    return G

def next_setup(a):
    a(f"""
    s_add_u32 s14, s36, 1
    s_and_b32 s40, s14, 7
    s_lshl_b32 s41, s23, 3
    s_add_u32 s41, s41, 7
    s_sub_u32 s40, s41, s40
    s_mul_i32 s40, s40, 18432
    s_add_u32 s42, s{P_WS}, {W5_X2 - 2688}
    s_addc_u32 s43, s{P_WS+1}, 0
    s_cmp_lt_u32 s14, 8
    s_cselect_b64 s[42:43], s[16:17], s[42:43]
    s_add_u32 s12, s42, s40
    s_addc_u32 s13, s43, 0
    s_lshr_b32 s40, s14, 3
    s_mul_i32 s40, s40, {16384 + 8192}
    s_lshl_b32 s41, s14, 10
    s_sub_u32 s40, s40, s41
    s_add_u32 s15, s40, s39
    """)

FST = int(os.environ.get("FST", "-1"))
def fs(a, k):
    if PROF and FST >= 0: a(f"s_memtime s[{66+2*k}:{67+2*k}]")
def fs_dump(a, n):
    if not (PROF and FST >= 0): return
    L = newlab("fsd")
    a(f"""
    s_waitcnt lgkmcnt(0)
    s_sub_u32 s40, s36, {FST}
    s_cmp_ge_u32 s40, 2
    s_cbranch_scc1 {L}
    s_mul_i32 s40, s40, 10
    s_add_u32 s40, s40, 40
    """)
    for k in range(n):
        a(f"s_sub_u32 s{66+2*k}, s{66+2*k}, s96")
        a(f"s_add_u32 m0, s40, {k}")
        a(f"v_writelane_b32 v{PV}, s{66+2*k}, m0")
    a.label(L)

def w3_win(a, fetch, comp):
    A0, A1 = 72, 76
    lg = Cnt(a, "lgkmcnt", 15)
    gaps = [[] for _ in range(19)]
    if comp:
        a(f"""
        v_add_u32 v{CP_}, s46, v{XE}
        v_add_u32 v{CP_+1}, s46, v{XO}
        v_mov_b32 v{WA}, s46
        s_and_b32 s40, s32, 3
        s_lshl_b32 s40, s40, 8
        v_add_u32 v{T1}, s40, v{VST}
        """)
        if fetch: fs(a, 0)
        a(f"""
        s_waitcnt vmcnt(0)
        ds_write_b32 v{VCD}, v{WA} offset:{4*C_XR}
        """)
        if fetch: fs(a, 1)
        if PROF:
            a("s_add_u32 s40, s32, 8")
            stamp5(a, "s40")
        for k in range(18): lg.issue(f"ds_read_b128 {vr(XA+4*k,4,'a')}, v{CP_+(k&1)} offset:{1024*(k>>1)}")
        lg.issue(f"ds_write_b8 v{VCB}, v{VONE} offset:{4*C_XF}", tag="w")
        lg.issue(f"ds_read_b128 {vr(STD,4)}, v{T1}")
        lg.issue(f"ds_read_b32 v{T0}, v{VCD} offset:{4*C_FR}")
        a(f"""
        s_add_u32 s46, s46, 18432
        s_cmp_ge_u32 s46, {L_XS + 3*18432}
        s_cselect_b32 s46, {L_XS}, s46
        """)
    if fetch:
        if comp: fs(a, 2)
        a(f"buffer_load_dword v{PFL}, v{PFA}, s[4:7], s52 offen sc1")
        a(f"buffer_load_dwordx4 {vr(PST,4)}, v3, s[4:7], s15 offen{BSC}")
        r = Rec(); next_setup(r)
        for i, t in enumerate(sgroups(r.L)): gaps[1 + i // 2] += t
        r = Rec(); fetch_stats(r, 36, tmp=WB2)
        g0 = 12
        gaps[g0] += [f"s_waitcnt vmcnt({g0 + 1})", f"v_cmp_eq_u32 s[44:45], s{SN}, v{PFL}"]
        G = sgroups(r.L)
        per = (len(G) + 5) // 6
        for i, gr in enumerate(G): gaps[g0 + i // per] += [("lds", t) if t.startswith("ds_") else t for t in gr]
        for g in range(18):
            dma1(a, g)
            if comp and g in (0, 4, 8, 12, 17): fs(a, 3 + (0, 4, 8, 12, 17).index(g) + (g == 17))
            for it in gaps[g]:
                if isinstance(it, str):
                    a(it)
                    if comp and it.startswith("v_cmp_eq_u32 s[44:45]"): fs(a, 7)
                elif it[0] == "lds": lg.issue(it[1], tag=(Ins(it[1]).dst or "w"))
        if comp: fs_dump(a, 9)
        wstamp(a, 1, 36)
        a(f"""
        s_mov_b64 s[8:9], s[12:13]
        v_add_u32 v{CQ_}, 4, v{CQ_}
        s_add_u32 s34, s34, 18432
        s_cmp_ge_u32 s34, {L_XS + 3*18432}
        s_cselect_b32 s34, {L_XS}, s34
        s_add_u32 s36, s36, 1
        """)
    if comp:
        for k in range(18):
            acc = A0 if k % 2 == 0 else A1
            lg.wait(rset(XA + 4 * k, 4, 'a'))
            a(f"v_mfma_f32_16x16x32_bf16 {vr(acc,4)}, {vr(4*k,4,'a')}, {vr(XA+4*k,4,'a')}, {'0' if k < 2 else vr(acc,4)}")
            if k == 15 and fetch: lg.issue(f"ds_read_b32 v{VPL}, v{CQ_} offset:{4*C_XF}")
    elif fetch: lg.issue(f"ds_read_b32 v{VPL}, v{CQ_} offset:{4*C_XF}")
    if comp:
        Lf = newlab("mfr")
        wstamp(a, 2)
        lg.wait(rset(T0) | rset(STD, 4))
        a(f"""
        v_readfirstlane_b32 s40, v{T0}
        s_cmp_ge_u32 s40, 2
        s_cbranch_scc1 {Lf}
        """)
        fr_spin(a, 4 * C_FR)
        a.label(Lf)
        for r in range(4): a(f"v_add_f32 v{A0+r}, v{A0+r}, v{A1+r}")
        for t in fold_ops(1, A0): a(t)
        a(f"""
        ds_write_b64 v{WA}, {vr(FT,2)}
        ds_write_b8 v{VCB}, v{VONE} offset:{4*C_QD}
        v_add_u32 v{VCD}, 4, v{VCD}
        v_add_u32 v{VCB}, 4, v{VCB}
        """)
        wstamp(a, 3)
        a("s_add_u32 s32, s32, 1")
    if fetch:
        a(f"s_waitcnt lgkmcnt({2 if comp else 0})")
        a("s_branch L5_m2")
    else: a("s_branch L5_m")

def w3_main(a):
    a(f"""
    s_sub_u32 s16, s{P_X}, 2688
    s_subb_u32 s17, s{P_X+1}, 0
    s_mov_b32 s36, 2
    """)
    next_setup(a)
    epi_alone(a, 1, ACA, 512, -1, fr=False)
    a(f"""
    s_mov_b32 s36, 3
    s_mov_b64 s[8:9], s[12:13]
    s_mov_b32 s32, 3
    s_mov_b32 s46, {L_XS}
    s_mov_b64 s[44:45], 0
    v_mov_b32 v{CQ_}, v{VM}
    v_mov_b32 v{PFL}, 0
    L5_m:
    ds_read_b32 v{VPL}, v{CQ_} offset:{4*C_XF}
    s_waitcnt lgkmcnt(0)
    L5_m2:
    s_lshl_b32 s40, s36, 3
    s_sub_u32 s40, 120, s40
    s_lshr_b64 s[42:43], s[44:45], s40
    s_cmp_lt_u32 s36, 8
    s_cselect_b32 s42, 0xff, s42
    s_and_b32 s42, s42, 0xff
    s_cmp_ge_u32 s36, 16
    s_cselect_b32 s42, 0, s42
    v_readfirstlane_b32 s40, v{VPL}
    s_cmp_lg_u32 s40, s51
    s_cselect_b32 s42, 0, s42
    s_cmp_lg_u32 s42, 0xff
    s_cbranch_scc1 L5_m_nf
    """)
    wstamp(a, 0, 36)
    a(f"""
    s_cmp_lt_u32 s32, s36
    s_cbranch_scc0 L5_m_f
    """)
    w3_win(a, True, True)
    a.label("L5_m_f")
    w3_win(a, True, False)
    a.label("L5_m_nf")
    a(f"""
    s_cmp_lt_u32 s32, s36
    s_cbranch_scc0 L5_m_idle
    PCW:
    """.replace("PCW:", newlab("pcw") + ":"))
    if PCW:
        pass
    w3_win(a, False, True)
    a(f"""
    L5_m_idle:
    s_cmp_ge_u32 s36, 16
    s_cbranch_scc1 L5_fin
    s_cmp_lt_u32 s36, 8
    s_cbranch_scc1 L5_m_np
    buffer_load_dword v{PFL}, v{PFA}, s[4:7], s52 offen sc1
    s_waitcnt vmcnt(0)
    v_cmp_eq_u32 s[44:45], s{SN}, v{PFL}
    L5_m_np:
    """)
    budget(a, "L5_fin")
    a("s_branch L5_m")

def q_main(a):
    a(f"""
    s_cmp_eq_u32 s3, 3
    s_cbranch_scc1 L5_q3
    s_mul_i32 s33, s3, 18432
    s_add_u32 s33, s33, {L_XS}
    """)
    fetch_consts(a)
    lds_wait(a, C_BG2, 3, 8, sleep=1)
    fetch_dma(a, 3, 33)
    q_consts(a, False)
    phase_k(a, 2)
    if STOP == 2: a("s_branch L5_fin")
    q_main2(a)
    a.label("L5_q3")
    a("""
    s_cmp_ge_u32 s21, 30
    s_cselect_b32 s42, 2, 1
    """)
    lds_wait(a, C_BG1, "s42", 8, sleep=1)
    x_rows_issue(a)
    a("s_waitcnt vmcnt(0)")
    x_stats(a)
    a("buffer_store_dwordx2 v[8:9], v10, s[4:7], s46 offen")
    q_consts(a, True)
    w3_init(a)
    phase_k(a, 1)
    if STOP == 2: a("s_branch L5_fin")
    w3_main(a)
```

```python
from k5_base import *
from k5_rp import *

XE, XO = 4, 5
CP_, CQ_ = 6, 8
VCD, VCB, VONE = 10, 11, 12
VST = 13; SGA, SGB = 14, 15; WA, WB = 16, 17; T0, T1 = 18, 19
STD = 20; CSR = 24
ACA, ACB, AX0, AX1 = 32, 40, 48, 56
PST3 = 36
FT = 64; XR_ = 72; ONES = 96; VPL, VPA = 100, 101
LAG = int(os.environ.get('LAG', '18'))
WBT = int(os.environ.get('WBT', '0'))
WBE = int(os.environ.get('WBE', '0'))

XROW = [16, 20, 24, 28, 32, 36, 46, 50, 54]
def x_stats(a):
    a("s_mov_b32 s40, 0x3f803f80")
    for i in range(36):
        x = XROW[i >> 2] + (i & 3)
        c = "0" if i < 4 else f"v{8+(i&3)}"
        c2 = "0" if i < 4 else f"v{12+(i&3)}"
        a(f"v_dot2_f32_bf16 v{8+(i&3)}, v{x}, s40, {c}")
        a(f"v_dot2_f32_bf16 v{12+(i&3)}, v{x}, v{x}, {c2}")
    a(f"""
    v_add_f32 v8, v8, v9
    v_add_f32 v10, v10, v11
    v_add_f32 v12, v12, v13
    v_add_f32 v14, v14, v15
    v_add_f32 v8, v8, v10
    v_add_f32 v9, v12, v14
    """)
    for m in ("quad_perm:[1,0,3,2]", "quad_perm:[2,3,0,1]", "row_half_mirror"):
        a(f"v_add_f32_dpp v8, v8, v8 {m} row_mask:0xf bank_mask:0xf")
        a(f"v_add_f32_dpp v9, v9, v9 {m} row_mask:0xf bank_mask:0xf")
    a(f"""
    v_and_b32 v11, 7, v2
    v_cmp_eq_u32 vcc, 0, v11
    v_cndmask_b32 v8, 0, v8, vcc
    v_cndmask_b32 v9, 0, v9, vcc
    v_lshrrev_b32 v10, 3, v2
    v_and_b32 v12, 1, v10
    v_lshrrev_b32 v10, 1, v10
    v_lshl_add_u32 v10, v12, 3, v10
    v_lshlrev_b32 v10, 6, v10
    v_lshl_add_u32 v10, v11, 3, v10
    s_lshr_b32 s40, s21, 1
    s_lshl_b32 s40, s40, 10
    s_and_b32 s41, s21, 1
    s_lshl_b32 s41, s41, 8
    s_add_u32 s40, s40, s41
    s_add_u32 s40, s40, s26
    s_add_u32 s46, s40, {OS_XS}
    """)

def x_rows_issue(a):
    srd(a, 8, P_X, XB)
    a(f"""
    v_lshrrev_b32 v4, 3, v2
    v_mul_u32_u24 v4, 1152, v4
    v_and_b32 v5, 7, v2
    v_lshl_add_u32 v4, v5, 4, v4
    s_lshl_b32 s40, s20, 5
    s_add_u32 s40, s40, s21
    s_mul_i32 s40, s40, {8*1152}
    """)
    for t in range(9):
        a(f"buffer_load_dwordx4 {vr(XROW[t],4)}, v4, s[8:11], s40 offen offset:{128*t}")

def q_consts(a, m):
    a(f"""
    v_and_b32 v{T0}, 7, v2
    v_lshrrev_b32 v{T1}, 4, v2
    v_xor_b32 v{XE}, v{T0}, v{T1}
    v_lshlrev_b32 v{XE}, 4, v{XE}
    v_lshl_add_u32 v{XE}, v{T0}, 7, v{XE}
    v_bfe_u32 v{T0}, v2, 3, 1
    v_mul_u32_u24 v{T0}, 9216, v{T0}
    v_add_u32 v{XE}, v{XE}, v{T0}
    v_xor_b32 v{XO}, 64, v{XE}
    v_add_u32 v{CP_}, {L_XS}, v{XE}
    v_add_u32 v{CP_+1}, {L_XS}, v{XO}
    v_mov_b32 v{VONE}, 1
    v_add_u32 v{VCD}, 12, v{VM}
    v_add_u32 v{VCB}, s3, v{VCD}
    v_and_b32 v{T0}, 15, v2
    v_lshlrev_b32 v{VST}, 4, v{T0}
    v_add_u32 v{VST}, {L_STAB}, v{VST}
    v_mul_u32_u24 v{SGA}, {RS}, v{T0}
    v_mov_b32 v{ONES}, 0x3f803f80
    v_mov_b32 v{ONES+1}, 0x3f803f80
    v_mov_b32 v{ONES+2}, 0x3f803f80
    v_mov_b32 v{ONES+3}, 0x3f803f80
    s_mov_b32 s51, 0x01010101
    s_mov_b32 s50, 0
    s_mul_i32 s35, s22, {WQ_HG}
    """)
    if m:
        a(f"""
        v_lshlrev_b32 v{T0}, 3, v{T1}
        v_add_u32 v{T0}, 128, v{T0}
        v_mul_u32_u24 v{SGB}, 40, v{T1}
        v_add_u32 v{SGB}, 96, v{SGB}
        v_cmp_gt_u32 vcc, 32, v2
        v_cndmask_b32 v{T0}, v{SGB}, v{T0}, vcc
        v_add_u32 v{SGA}, v{SGA}, v{T0}
        s_add_u32 s35, s35, {W5_WQ + 4096}
        v_and_b32 v{T0}, 15, v2
        v_cmp_gt_u32 vcc, 12, v{T0}
        v_mov_b32 v{SGB}, 0x7fffffff
        v_cndmask_b32 v{SGB}, v{SGB}, v3, vcc
        """)
    else:
        a(f"""
        v_lshl_add_u32 v{SGA}, v{T1}, 3, v{SGA}
        s_lshl_b32 s40, s3, 6
        s_lshr_b32 s41, s3, 1
        s_lshl_b32 s42, s41, 4
        s_add_u32 s40, s40, s42
        s_lshl_b32 s42, s41, 3
        s_add_u32 s42, s42, 32
        v_add_u32 v{SGA}, s40, v{SGA}
        v_add_u32 v{SGB}, s42, v{SGA}
        s_lshl_b32 s40, s3, 11
        s_lshl_b32 s41, s41, 10
        s_add_u32 s35, s35, s40
        s_add_u32 s35, s35, s41
        s_add_u32 s35, s35, {W5_WQ}
        """)

def gate(a, need):
    L = newlab("gt"); X = newlab("gtx")
    a(f"""
    s_cmp_ge_u32 s50, {need}
    s_cbranch_scc1 {X}
    {L}:
    ds_read_b32 v{VPL}, v{VM} offset:{4*C_WR}
    s_waitcnt lgkmcnt(0)
    v_readfirstlane_b32 s50, v{VPL}
    s_cmp_ge_u32 s50, {need}
    s_cbranch_scc1 {X}
    """)
    budget(a, X)
    a("s_sleep 1")
    a(f"s_branch {L}")
    a.label(X)

def fold_ops(NT, acc):
    R = []
    for t in range(NT):
        for r in range(4): R.append(f"v_fma_f32 v{FT+4*t+r}, v{CSR+4*t+r}, v{STD}, v{acc+4*t+r}")
        for r in range(4): R.append(f"v_mul_f32 v{FT+4*t+r}, v{FT+4*t+r}, v{STD+1}")
        R.append(f"v_cvt_pk_bf16_f32 v{FT+4*t}, v{FT+4*t}, v{FT+4*t+1}")
        R.append(f"v_cvt_pk_bf16_f32 v{FT+4*t+1}, v{FT+4*t+2}, v{FT+4*t+3}")
    R.append(f"v_add_u32 v{WA}, v{SGA}, v{STD+2}")
    if NT == 2: R.append(f"v_add_u32 v{WB}, v{SGB}, v{STD+2}")
    return R

def fr_spin(a, off):
    L = newlab("fr"); X = newlab("frx")
    a(f"""
    {L}:
    ds_read_b32 v{T0}, v{VCD} offset:{off}
    s_waitcnt lgkmcnt(0)
    v_readfirstlane_b32 s40, v{T0}
    s_cmp_ge_u32 s40, 2
    s_cbranch_scc1 {X}
    """)
    budget(a, X)
    a(f"s_branch {L}")
    a.label(X)

def epi_alone(a, NT, acc, stoff, dn, fr=True):
    a(f"ds_read_b128 {vr(STD,4)}, v{VST} offset:{stoff}")
    if fr: fr_spin(a, 4 * (C_FR + dn))
    else: a("s_waitcnt lgkmcnt(0)")
    for t in fold_ops(NT, acc): a(t)
    a(f"ds_write_b64 v{WA}, {vr(FT,2)}")
    if NT == 2: a(f"ds_write_b64 v{WB}, {vr(FT+4,2)}")
    a(f"ds_write_b8 v{VCB}, v{VONE} offset:{4*(C_QD+dn)}")

def phase_k(a, NT):
    vm = Cnt(a, "vmcnt", 63); lg = Cnt(a, "lgkmcnt", 15)
    accs = (AX0, AX1, ACA)
    wl = 3 if NT == 2 else SGB
    vm.q.append("xs")
    def xreads(s):
        for i in range(3):
            lg.issue(f"ds_read_b128 {vr(XR_+12*(s&1)+4*i,4)}, v{CP_+(s&1)} offset:{18432*i + 1024*(s>>1)}")
    def mma(s):
        if s + 1 < 18: xreads(s + 1)
        vm.wait(rset(4 * NT * s, 4 * NT, 'a'))
        for t in range(NT):
            w = vr(4 * NT * s + 4 * t, 4, 'a')
            c = CSR + 4 * t
            a(f"v_mfma_f32_16x16x32_bf16 {vr(c,4)}, {w}, {vr(ONES,4)}, {'0' if s == 0 else vr(c,4)}")
        for i in range(3):
            lg.wait(rset(XR_ + 12 * (s & 1) + 4 * i, 4))
            for t in range(NT):
                w = vr(4 * NT * s + 4 * t, 4, 'a')
                c = accs[i] + 4 * t
                a(f"v_mfma_f32_16x16x32_bf16 {vr(c,4)}, {w}, {vr(XR_+12*(s&1)+4*i,4)}, {'0' if s == 0 else vr(c,4)}")
    if NT == 1:
        vm.wait("xs")
        a(f"""
        s_lshl_b32 s40, s21, 2
        s_add_u32 s40, s40, s27
        """)
        flag_store(a, 40, FL_XS0, t=64)
        a(f"""
        s_lshl_b32 s42, s30, 6
        s_add_u32 s42, s42, s27
        s_add_u32 s42, s42, {FL_XS0}
        v_and_b32 v64, 15, v2
        v_lshlrev_b32 v64, 2, v64
        L5_xp:
        buffer_load_dword v65, v64, s[4:7], s42 offen sc1
        ds_read_b64 v[66:67], v{VM}
        s_waitcnt vmcnt(0) lgkmcnt(0)
        v_readfirstlane_b32 s40, v66
        v_readfirstlane_b32 s41, v67
        v_cmp_ne_u32 vcc, s{SN}, v65
        s_cmp_eq_u32 s40, 2
        s_cbranch_scc1 L5_fallback
        s_cbranch_vccz L5_xpx
        """)
        budget(a, "L5_xpx")
        a("s_branch L5_xp")
        a.label("L5_xpx")
        vm.q = []
        a("s_sub_u32 s42, s39, 2048")
        for i in range(3):
            vm.issue(f"buffer_load_dwordx4 {vr(PST3+4*i,4)}, v3, s[4:7], s42 offen offset:{2048-1024*i}{BSC}")
    for s in range(18 + LAG):
        if s < 18:
            gate(a, 12 * (s + 1))
            for t in range(NT):
                vm.issue(f"buffer_load_dwordx4 {vr(4*NT*s+4*t,4,'a')}, v{wl}, s[4:7], s35 offen offset:{1024*t}{BSC}")
            if s < 17: a("s_add_u32 s35, s35, 7168")
            else: lds_sig(a, C_WI, (T0,))
        if NT == 1 and s == min(LAG, 17):
            vm.wait(rset(PST3, 12))
            for i in range(3):
                fetch_stats(a, 36, PST3 + 4 * i, lg, ent=(5, 6, 2)[i])
                a("s_add_u32 s36, s36, 1")
            lg.issue(f"ds_write_b32 v{VM}, v{VONE} offset:{4*(C_XR+1)}", tag="w")
            lg.wait_all()
        if s == LAG:
            if NT == 2:
                vm.wait("xs")
                lds_sig(a, C_XR + 2, (T0,))
            lds_wait(a, C_XR + 2, 3, T0)
            xreads(0)
        if s >= LAG: mma(s - LAG)
        if s == LAG: stamp5(a, 5)
    for i in range(3): a(f"ds_write_b8 v{VCB}, v{VONE} offset:{4*(C_XF+i-3)}")
    stamp5(a, 6)
    tok_wait(a, T0)
    if NT == 2: lds_wait(a, C_XR + 1, 1, T0)
    epi_alone(a, NT, AX0, 1280, -3, fr=False)
    epi_alone(a, NT, AX1, 1536, -2, fr=False)
    stamp5(a, 7)

def body(a, lg, odd):
    acc, pacc = (ACB, ACA) if odd else (ACA, ACB)
    cur, nxt = (CQ_, CP_) if odd else (CP_, CQ_)
    dn = 0 if odd else 1
    fo = fold_ops(2, pacc)
    Ls = newlab("frs"); Lb = newlab("frb")
    fill = {k: [] for k in range(18)}
    fill[0] = [("lds", f"ds_read_b32 v{T0}, v{VCD} offset:{4*(C_FR+dn-1)}"), ("lds", f"ds_read_b128 {vr(STD,4)}, v{VST} offset:{256*dn}")]
    fill[2] = [("wait", rset(T0) | rset(STD, 4)), ("i", f"v_readfirstlane_b32 s40, v{T0}"), ("i", fo.pop(0)), ("i", "s_cmp_lt_u32 s40, 2")]
    fill[3] = [("i", f"s_cbranch_scc1 {Ls}"), ("lab", Lb)]
    for k in range(3, 10):
        for _ in range(3):
            if fo: fill[k].append(("i", fo.pop(0)))
    fill[8].append(("lds", f"ds_read_b32 v{T1}, v{VCD} offset:{4*(C_XR+dn+1)}"))
    assert not fo or len(fo) <= 2, len(fo)
    fill[10] = [("i", t) for t in fo] + [("lds", f"ds_write_b64 v{WA}, {vr(FT,2)}"), ("lds", f"ds_write_b64 v{WB}, {vr(FT+4,2)}"),
                 ("lds", f"ds_write_b8 v{VCB}, v{VONE} offset:{4*(C_QD+dn-1)}")]
    fill[11] = [("wait", rset(T1)), ("i", f"v_add_u32 v{nxt}, v{XE}, v{T1}"), ("i", f"v_add_u32 v{nxt+1}, v{XO}, v{T1}"), ("i", f"v_readfirstlane_b32 s37, v{T1}")]
    fill[12] = [("lds", f"ds_write_b8 v{VCB}, v{VONE} offset:{4*(C_XF+dn)}")]
    if not odd:
        fill[14] = [("i", f"v_xor_b32 v{VST}, 512, v{VST}"), ("i", f"v_add_u32 v{VCD}, 8, v{VCD}"), ("i", f"v_add_u32 v{VCB}, 8, v{VCB}")]
    for k in range(18):
        x = XR_ + 4 * (k % 6)
        if k % 2 == 0: lg.wait(rset(x, 4) | rset(XR_ + 4 * ((k + 1) % 6), 4))
        f = fill[k]
        def emit(n):
            while f and n > 0:
                kind, v = f.pop(0)
                if kind == "i": a(v)
                elif kind == "lds": lg.issue(v, tag=(Ins(v).dst or "w"))
                elif kind == "wait": lg.wait(v)
                elif kind == "lab": a.label(v); continue
                n -= 1
        for t in range(2):
            a(f"v_mfma_f32_16x16x32_bf16 {vr(acc+4*t,4)}, {vr(8*k+4*t,4,'a')}, {vr(x,4)}, {'0' if k == 0 else vr(acc+4*t,4)}")
            if t == 0: emit(2)
        kk = k + 6
        if kk < 18: lg.issue(f"ds_read_b128 {vr(x,4)}, v{cur+(kk&1)} offset:{1024*(kk>>1)}")
        else: lg.issue(f"ds_read_b128 {vr(x,4)}, v{nxt+(kk&1)} offset:{1024*((kk-18)>>1)}")
        emit(99)
    return (Ls, Lb, 4 * (C_FR + dn - 1))

def xr_spin(a, off, nxt):
    L = newlab("xr"); X = newlab("xrx")
    a(f"""
    {L}:
    ds_read_b32 v{T1}, v{VCD} offset:{off}
    s_waitcnt lgkmcnt(0)
    v_readfirstlane_b32 s37, v{T1}
    s_cmp_lg_u32 s37, 0
    s_cbranch_scc1 {X}
    """)
    budget(a, X)
    a(f"s_branch {L}")
    a.label(X)
    a(f"v_add_u32 v{nxt}, v{XE}, v{T1}")
    a(f"v_add_u32 v{nxt+1}, v{XO}, v{T1}")
    for k in range(6):
        a(f"ds_read_b128 {vr(XR_+4*k,4)}, v{nxt+(k&1)} offset:{1024*(k>>1)}")
    a("s_waitcnt lgkmcnt(0)")

def q_main2(a):
    a(f"""
    v_xor_b32 v{VST}, 512, v{VST}
    s_mov_b32 s32, 3
    s_or_b32 s40, s21, s3
    s_cmp_eq_u32 s40, 0
    s_cselect_b32 s36, {WBT}, 99
    """)
    xr_spin(a, 4 * C_XR, CQ_)
    lg = Cnt(a, "lgkmcnt", 15)
    a.label("L5_qo")
    if WBT:
        a(f"""
        s_cmp_lg_u32 s32, s36
        s_cbranch_scc1 L5_qnw
        buffer_wbl2 sc1
        L5_qnw:
        """)
    if PROF:
        a("s_add_u32 s38, s32, 8")
        stamp5(a, "s38")
    lg.q = [rset(XR_ + 4 * k, 4) for k in range(6)]
    s1 = body(a, lg, True)
    if PROF:
        a("s_add_u32 s38, s32, 28")
        stamp5(a, "s38")
    a(f"""
    s_cmp_eq_u32 s37, 0
    s_cbranch_scc1 L5_qo_slow
    L5_qe:
    """)
    if PROF:
        a("s_add_u32 s38, s32, 9")
        stamp5(a, "s38")
    lg.q = [rset(XR_ + 4 * k, 4) for k in range(6)]
    s2 = body(a, lg, False)
    if PROF:
        a("s_add_u32 s38, s32, 29")
        stamp5(a, "s38")
    a(f"""
    s_add_u32 s32, s32, 2
    s_cmp_lg_u32 s37, 0
    s_cbranch_scc1 L5_qo
    """)
    epi_alone(a, 2, ACA, 0, -1)
    xr_spin(a, 4 * C_XR, CQ_)
    a("s_branch L5_qo")
    a.label("L5_qo_slow")
    epi_alone(a, 2, ACB, 256, 0)
    a(f"""
    s_cmp_ge_u32 s32, 15
    s_cbranch_scc1 L5_qfin
    """)
    xr_spin(a, 4 * (C_XR + 1), CP_)
    a("s_branch L5_qe")
    for Ls, Lb, off in (s1, s2):
        a.label(Ls)
        fr_spin(a, off)
        a(f"s_branch {Lb}")
    a.label("L5_qfin")
    if WBE:
        a(f"""
        s_cmp_eq_u32 s36, 99
        s_cbranch_scc1 L5_fin
        s_sleep {WBE}
        buffer_wbl2 sc1
        """)
    a("s_branch L5_fin")

FV0, FV1 = 102, 103; PST = 104
SSEG = 54
def fetch_consts(a):
    a(f"""
    v_lshrrev_b32 v{T0}, 3, v2
    v_and_b32 v{T1}, 7, v2
    v_xor_b32 v{T1}, v{T1}, v{T0}
    v_mul_u32_u24 v{FV0}, 2304, v{T0}
    v_lshl_add_u32 v{FV0}, v{T1}, 4, v{FV0}
    v_add_u32 v{FV1}, 1152, v{FV0}
    v_lshrrev_b32 v{WB}, 2, v2
    v_lshlrev_b32 v{WB}, 4, v{WB}
    v_add_u32 v{WB}, {L_STAB}, v{WB}
    s_mov_b32 s10, 32768
    s_mov_b32 s11, 0x00020000
    s_lshl_b32 s39, s30, 13
    s_add_u32 s39, s39, s26
    s_add_u32 s39, s39, {OS_XS + 7*1024}
    """)
    for seg in range(9):
        a(f"s_movk_i32 s{SSEG+seg}, {2688 + 128*seg - 1024*(seg&3)}")

def stats_load(a, sf, dst=PST):
    a(f"""
    s_lshr_b32 s40, s{sf}, 3
    s_mul_i32 s40, s40, {16384 + 8192}
    s_lshl_b32 s41, s{sf}, 10
    s_sub_u32 s40, s40, s41
    s_add_u32 s40, s40, s39
    buffer_load_dwordx4 {vr(dst,4)}, v3, s[4:7], s40 offen{BSC}
    """)

PFL, PFA = 108, 109
def poll_issue(a, sf):
    a(f"""
    s_lshl_b32 s40, s{sf}, 5
    s_sub_u32 s40, s52, s40
    buffer_load_dword v{PFL}, v{PFA}, s[4:7], s40 offen sc1
    """)

def fetch_dma(a, sf, sl=34):
    a(f"""
    s_and_b32 s40, s{sf}, 7
    s_lshl_b32 s41, s23, 3
    s_add_u32 s41, s41, 7
    s_sub_u32 s40, s41, s40
    s_mul_i32 s40, s40, 18432
    s_add_u32 s42, s{P_WS}, {W5_X2}
    s_addc_u32 s43, s{P_WS+1}, 0
    s_cmp_lt_u32 s{sf}, 8
    s_cselect_b64 s[42:43], s[{P_X}:{P_X+1}], s[42:43]
    s_add_u32 s8, s42, s40
    s_addc_u32 s9, s43, 0
    s_sub_u32 s8, s8, 2688
    s_subb_u32 s9, s9, 0
    """)
    for rh in range(2):
        for seg in range(9):
            if seg % 4 == 0:
                a(f"s_add_u32 m0, s{sl}, {9216*rh + 1024*seg}")
                a("s_nop 0")
            a(f"buffer_load_dwordx4 v{FV0+rh}, s[8:11], s{SSEG+seg} offen offset:{1024*(seg&3)}{BSC} lds")

WB2 = 9; PCW = 0
def fetch_stats(a, sf, src=PST, lg=None, tmp=T0, ent=0):
    a(f"""
    v_add_f32 v{src}, v{src}, v{src+2}
    v_add_f32 v{src+1}, v{src+1}, v{src+3}
    """)
    for m in ("quad_perm:[1,0,3,2]", "quad_perm:[2,3,0,1]"):
        a(f"v_add_f32_dpp v{src}, v{src}, v{src} {m} row_mask:0xf bank_mask:0xf")
        a(f"v_add_f32_dpp v{src+1}, v{src+1}, v{src+1} {m} row_mask:0xf bank_mask:0xf")
    ln_params(a, src, src + 1, src + 2, src + 3)
    a(f"""
    v_mov_b32 v{src+2}, s33
    """)
    t = f"ds_write_b128 v{WB}, {vr(src,4)} offset:{256*ent}"
    if lg: lg.issue(t, tag="w")
    else: a(t)
    a(f"""
    s_cmp_eq_u32 s{sf}, 7
    s_cselect_b32 s40, {STGS}, 0
    s_add_u32 s33, s33, s40
    s_add_u32 s33, s33, {STGS}
    s_sub_u32 s40, s33, {5*STGS}
    s_cmp_ge_u32 s33, {L_STG + 5*STGS}
    s_cselect_b32 s33, s40, s33
    """)

def w3_init(a):
    fetch_consts(a)
    a(f"""
    s_mov_b32 s36, 0
    s_mov_b32 s33, {L_STG}
    s_mov_b32 s34, {L_XS}
    s_lshl_b32 s52, s30, 8
    s_add_u32 s52, s52, s27
    s_add_u32 s52, s52, {FL_X2}
    v_lshlrev_b32 v{PFA}, 2, v2
    """)

def dma_setup(a, sf):
    a(f"""
    s_and_b32 s40, s{sf}, 7
    s_lshl_b32 s41, s23, 3
    s_add_u32 s41, s41, 7
    s_sub_u32 s40, s41, s40
    s_mul_i32 s40, s40, 18432
    s_add_u32 s42, s{P_WS}, {W5_X2}
    s_addc_u32 s43, s{P_WS+1}, 0
    s_cmp_lt_u32 s{sf}, 8
    s_cselect_b64 s[42:43], s[{P_X}:{P_X+1}], s[42:43]
    s_add_u32 s8, s42, s40
    s_addc_u32 s9, s43, 0
    s_sub_u32 s8, s8, 2688
    s_subb_u32 s9, s9, 0
    """)
def dma1(a, i, sl=34, m0=False):
    rh, seg = divmod(i, 9)
    if seg % 4 == 0 or m0:
        a(f"s_add_u32 m0, s{sl}, {9216*rh + 1024*(seg & ~3)}")
        a("s_nop 0")
    a(f"buffer_load_dwordx4 v{FV0+rh}, s[8:11], s{SSEG+seg} offen offset:{1024*(seg&3)}{BSC} lds")

NPRE = int(os.environ.get("NPRE", "10"))
PT0 = int(os.environ.get("PT0", "-1"))
def wstamp(a, k, sr=32):
    if not PROF or PT0 < 0: return
    a(f"""
    s_sub_u32 s40, s{sr}, {PT0}
    s_lshl_b32 s40, s40, 2
    s_add_u32 s40, s40, {24 + k}
    s_min_u32 s40, s40, 62
    """)
    stamp5(a, "s40")
XA = 72
class Rec:
    def __init__(self): self.L = []
    def __call__(self, text):
        for ln in text.strip("\n").split("\n"):
            if ln.strip(): self.L.append(ln.strip())
    def label(self, n): self.L.append(n + ":")

def sgroups(L):
    G = []
    for t in L:
        if G and t.startswith(("s_addc", "s_subb", "s_cselect", "s_cbranch")): G[-1].append(t)
        else: G.append([t])
    return G

def next_setup(a):
    a(f"""
    s_add_u32 s14, s36, 1
    s_and_b32 s40, s14, 7
    s_lshl_b32 s41, s23, 3
    s_add_u32 s41, s41, 7
    s_sub_u32 s40, s41, s40
    s_mul_i32 s40, s40, 18432
    s_add_u32 s42, s{P_WS}, {W5_X2 - 2688}
    s_addc_u32 s43, s{P_WS+1}, 0
    s_cmp_lt_u32 s14, 8
    s_cselect_b64 s[42:43], s[16:17], s[42:43]
    s_add_u32 s12, s42, s40
    s_addc_u32 s13, s43, 0
    s_lshr_b32 s40, s14, 3
    s_mul_i32 s40, s40, {16384 + 8192}
    s_lshl_b32 s41, s14, 10
    s_sub_u32 s40, s40, s41
    s_add_u32 s15, s40, s39
    """)

FST = int(os.environ.get("FST", "-1"))
def fs(a, k):
    if PROF and FST >= 0: a(f"s_memtime s[{64+2*k}:{65+2*k}]")
def fs_dump(a, n):
    if not (PROF and FST >= 0): return
    L = newlab("fsd")
    a(f"""
    s_waitcnt lgkmcnt(0)
    s_sub_u32 s40, s32, {FST+1}
    s_cmp_ge_u32 s40, 2
    s_cbranch_scc1 {L}
    s_mul_i32 s40, s40, 10
    s_add_u32 s40, s40, 40
    """)
    for k in range(n):
        a(f"s_sub_u32 s{64+2*k}, s{64+2*k}, s96")
        a(f"s_add_u32 m0, s40, {k}")
        a(f"v_writelane_b32 v{PV}, s{64+2*k}, m0")
    a.label(L)

ST2, VXP, VT1, VT2 = 80, 84, 86, 87
PUBG = int(os.environ.get("PUBG", "9"))
def w3_win(a, fetch, comp):
    A0 = 72
    lg = Cnt(a, "lgkmcnt", 15)
    nv = [0]
    def vmem(t): a(t); nv[0] += 1
    if comp: fs(a, 0)
    if fetch: a(f"v_readlane_b32 s34, v{VT2}, s36")
    if comp: a(f"v_readlane_b32 s46, v{VT2}, s32")
    a(f"""
    s_waitcnt vmcnt(18)
    v_add_f32 v{ST2}, v{PST}, v{PST+2}
    v_add_f32 v{ST2+1}, v{PST+1}, v{PST+3}
    """)
    vmem(f"buffer_load_dword v{PFL}, v{PFA}, s[4:7], s52 offen sc1")
    if fetch:
        a("s_mov_b32 m0, s34")
        vmem(f"buffer_load_dwordx4 {vr(PST,4)}, v3, s[4:7], s15 offen{BSC}")
    QL = []; QM = []; QE = []
    if comp:
        a(f"""
        v_add_u32 v{CP_}, s46, v{XE}
        v_add_u32 v{CP_+1}, s46, v{XO}
        """)
        if PROF and FST < 0:
            a("s_add_u32 s40, s32, 8")
            stamp5(a, "s40")
            if fetch: a("s_mov_b32 m0, s34")
        for k in range(18): QL.append([("lds", f"ds_read_b128 {vr(XA+4*k,4,'a')}, v{CP_+(k&1)} offset:{1024*(k>>1)}")])
        QL.append([("lds", f"ds_write_b8 v{VCB}, v{VONE} offset:{4*C_XF}")])
        QL.append([f"s_and_b32 s49, s32, 3", "s_lshl_b32 s49, s49, 8", f"v_add_u32 v{T1}, s49, v{VST}", ("lds", f"ds_read_b128 {vr(STD,4)}, v{T1}")])
        QL.append([("lds", f"ds_read_b32 v{T0}, v{VCD} offset:{4*C_FR}")])
        for k in range(18):
            w = [("lw", rset(XA + 4 * k, 4 * min(3, 18 - k), 'a'))] if k % 3 == 0 else []
            QM.append(w + [f"v_mfma_f32_16x16x32_bf16 {vr(A0,4)}, {vr(4*k,4,'a')}, {vr(XA+4*k,4,'a')}, {'0' if k < 1 else vr(A0,4)}"])
        QE.append([("fr",)])
        for t in fold_ops(1, A0): QE.append([t])
        QE.append([f"ds_write_b64 v{WA}, {vr(FT,2)}", f"ds_write_b8 v{VCB}, v{VONE} offset:{4*C_QD}", f"v_add_u32 v{VCD}, 4, v{VCD}", f"v_add_u32 v{VCB}, 4, v{VCB}", "s_add_u32 s32, s32, 1"])
    r = Rec()
    r(f"v_readlane_b32 s33, v{VT1}, s37")
    for m in ("quad_perm:[1,0,3,2]", "quad_perm:[2,3,0,1]"):
        r(f"v_add_f32_dpp v{ST2}, v{ST2}, v{ST2} {m} row_mask:0xf bank_mask:0xf")
        r(f"v_add_f32_dpp v{ST2+1}, v{ST2+1}, v{ST2+1} {m} row_mask:0xf bank_mask:0xf")
        if "1,0" in m:
            r(f"""
            s_and_b32 s48, s37, 3
            s_cmp_lt_u32 s37, s36
            s_cselect_b32 s90, 1, 0
            s_cselect_b32 s48, s48, 4
            s_cselect_b32 s47, s37, 17
            """)
    r(f"""
    s_lshl_b32 s48, s48, 8
    s_lshl_b64 s[92:93], 1, s47
    v_add_u32 v{WB2}, s48, v{WB}
    """)
    ln_params(r, ST2, ST2 + 1, ST2 + 2, ST2 + 3)
    r(f"v_mov_b32 v{ST2+2}, s33")
    QS = sgroups(r.L)
    QS.append([("lds", f"ds_write_b128 v{WB2}, {vr(ST2,4)}")])
    QP = [("vw",), "s_mov_b64 exec, s[92:93]", ("lds", f"ds_write_b32 v{VXP}, v{VT2} offset:{4*C_XR}"), "s_mov_b64 exec, -1"]
    def emit(g):
        for it in g:
            if isinstance(it, str): a(it)
            elif it[0] == "lds": lg.issue(it[1], tag=(Ins(it[1]).dst or "w"))
            elif it[0] == "lw": lg.wait(it[1])
            elif it[0] == "vw": a(f"s_waitcnt vmcnt({nv[0]})")
            elif it[0] == "fr":
                Lf = newlab("mfr")
                lg.wait(rset(T0) | rset(STD, 4))
                a(f"""
                v_readfirstlane_b32 s40, v{T0}
                s_cmp_ge_u32 s40, 2
                s_cbranch_scc1 {Lf}
                """)
                fr_spin(a, 4 * C_FR)
                a.label(Lf)
                a("s_nop 2")
    def take(Q, n):
        for _ in range(n):
            if Q: emit(Q.pop(0))
    pub = False
    for g in range(18):
        if fetch:
            rh, seg = divmod(g, 9)
            vmem(f"buffer_load_dwordx4 v{FV0+rh}, s[8:11], s{SSEG+seg} offen offset:{1024*(seg&3)}{BSC} lds")
            rh, seg = divmod(g + 1, 9)
            if seg % 4 == 0 and g < 17: a(f"s_add_u32 m0, s34, {9216*rh + 1024*seg}")
        if comp and g in (0, 3, 6, 12, 15, 17): fs(a, {0: 1, 3: 2, 6: 3, 12: 6, 15: 7, 17: 8}[g])
        take(QL, 3 if g < 4 else 2)
        take(QS, 3)
        if not QS and not pub and g >= PUBG:
            if comp: fs(a, 4)
            emit(QP); pub = True
            if comp: fs(a, 5)
            if PROF and FST < 0:
                a("s_mul_i32 s49, s90, 44")
                a("s_add_u32 s49, s49, s37")
                a("s_mov_b32 s53, m0")
                stamp5(a, "s49")
                a("s_mov_b32 m0, s53")
                lg.q = []
            a("s_add_u32 s37, s37, s90")
        if g >= 3: take(QM, 1 if g < 9 else 2)
        if g == 16: lg.issue(f"ds_read_b32 v{VPL}, v{CQ_} offset:{4*(C_XF + (1 if fetch else 0))}")
        if g >= 15: take(QE, 1 if g == 15 else 5)
        if fetch and g == 12:
            a(f"""
            v_subrev_u32 v{FV0}, 18432, v{FV0}
            s_sub_u32 s15, s15, 1024
            s_sub_u32 s38, s38, 8
            s_add_u32 s36, s36, 1
            """)
    assert pub and not QL and not QM and not QS
    if fetch:
        a(f"""
        v_subrev_u32 v{FV1}, 18432, v{FV1}
        v_add_u32 v{CQ_}, 4, v{CQ_}
        """)
    take(QE, 99)
    if PROF and comp and FST < 0:
        a("s_add_u32 s40, s32, 27")
        stamp5(a, "s40")
    if comp:
        fs(a, 9)
        fs_dump(a, 10)
    if fetch: a("s_and_b32 s40, s36, 7")
    a(f"""
    s_waitcnt vmcnt({nv[0]-1}) lgkmcnt({2 if comp else 0})
    v_cmp_eq_u32 s[44:45], s{SN}, v{PFL}
    """)
    if fetch: a("s_cbranch_scc0 L5_m_fix")
    a("s_branch L5_m2")

def w3_main(a):
    a(f"""
    s_mul_i32 s40, s23, {8*18432}
    s_add_u32 s8, s{P_X}, s40
    s_addc_u32 s9, s{P_X+1}, 0
    s_sub_u32 s8, s8, 2688
    s_subb_u32 s9, s9, 0
    s_mov_b32 s10, {8*18432 + 4096}
    s_add_u32 s40, s40, {W5_X2 - 2688}
    s_add_u32 s12, s{P_WS}, s40
    s_addc_u32 s13, s{P_WS+1}, 0
    s_sub_u32 s15, s39, 3072
    v_add_u32 v{FV0}, {4*18432}, v{FV0}
    v_add_u32 v{FV1}, {4*18432}, v{FV1}
    v_mul_u32_u24 v{VT2}, 86, v2
    v_lshrrev_b32 v{VT2}, 8, v{VT2}
    v_mul_u32_u24 v{VT2}, 3, v{VT2}
    v_sub_u32 v{VT2}, v2, v{VT2}
    v_mul_u32_u24 v{VT2}, 18432, v{VT2}
    v_add_u32 v{VT2}, {L_XS}, v{VT2}
    v_lshrrev_b32 v{VXP}, 3, v2
    v_add_u32 v{VXP}, v2, v{VXP}
    v_mul_u32_u24 v{VT1}, 205, v{VXP}
    v_lshrrev_b32 v{VT1}, 10, v{VT1}
    v_mul_u32_u24 v{VT1}, 5, v{VT1}
    v_sub_u32 v{VT1}, v{VXP}, v{VT1}
    v_mul_u32_u24 v{VT1}, {STGS}, v{VT1}
    v_add_u32 v{VT1}, {L_STG}, v{VT1}
    v_lshl_add_u32 v{VXP}, v2, 2, v{VM}
    """)
    epi_alone(a, 1, ACA, 512, -1, fr=False)
    a(f"""
    s_mov_b32 s36, 3
    s_mov_b32 s32, 3
    s_mov_b32 s37, 3
    s_mov_b32 s38, {56 - 24}
    s_mov_b32 s91, 0
    s_mov_b64 s[44:45], 0
    s_mov_b64 s[18:19], -1
    v_mov_b32 v{CQ_}, v{VM}
    v_mov_b32 v{PFL}, 0
    s_branch L5_m
    L5_m_fix:
    s_mov_b64 s[8:9], s[12:13]
    s_mov_b64 s[18:19], 0
    s_mov_b32 s38, 56
    s_add_u32 s15, s15, {16384 + 8192}
    v_add_u32 v{FV0}, {8*18432}, v{FV0}
    v_add_u32 v{FV1}, {8*18432}, v{FV1}
    s_cmp_eq_u32 s36, 16
    s_cselect_b32 s51, -1, s51
    s_branch L5_m2
    L5_m:
    ds_read_b32 v{VPL}, v{CQ_} offset:{4*C_XF}
    s_waitcnt lgkmcnt(0)
    L5_m2:
    v_readfirstlane_b32 s40, v{VPL}
    s_or_b64 s[42:43], s[44:45], s[18:19]
    s_lshr_b64 s[42:43], s[42:43], s38
    s_andn2_b32 s42, 0xff, s42
    s_xor_b32 s40, s40, s51
    s_or_b32 s40, s40, s42
    s_cbranch_scc1 L5_m_nf
    s_cmp_lt_u32 s32, s37
    s_cbranch_scc0 L5_m_f
    """)
    w3_win(a, True, True)
    a.label("L5_m_f")
    w3_win(a, True, False)
    a.label("L5_m_nf")
    a(f"""
    s_cmp_lt_u32 s32, s37
    s_cbranch_scc0 L5_m_idle
    """)
    w3_win(a, False, True)
    a(f"""
    L5_m_idle:
    s_cmp_lt_u32 s37, s36
    s_cbranch_scc0 L5_m_id2
    """)
    w3_win(a, False, False)
    a(f"""
    L5_m_id2:
    s_cmp_ge_u32 s36, 16
    s_cbranch_scc1 L5_fin
    s_cmp_lt_u32 s36, 8
    s_cbranch_scc1 L5_m_np
    buffer_load_dword v{PFL}, v{PFA}, s[4:7], s52 offen sc1
    s_waitcnt vmcnt(0)
    v_cmp_eq_u32 s[44:45], s{SN}, v{PFL}
    L5_m_np:
    """)
    budget(a, "L5_fin")
    a("s_branch L5_m")

def q_main(a):
    a(f"""
    s_cmp_eq_u32 s3, 3
    s_cbranch_scc1 L5_q3
    s_mul_i32 s33, s3, 18432
    s_add_u32 s33, s33, {L_XS}
    """)
    fetch_consts(a)
    lds_wait(a, C_BG2, 3, 8, sleep=1)
    fetch_dma(a, 3, 33)
    q_consts(a, False)
    phase_k(a, 2)
    if STOP == 2: a("s_branch L5_fin")
    q_main2(a)
    a.label("L5_q3")
    a("""
    s_cmp_ge_u32 s21, 30
    s_cselect_b32 s42, 2, 1
    """)
    lds_wait(a, C_BG1, "s42", 8, sleep=1)
    x_rows_issue(a)
    a("s_waitcnt vmcnt(0)")
    x_stats(a)
    a("buffer_store_dwordx2 v[8:9], v10, s[4:7], s46 offen")
    q_consts(a, True)
    w3_init(a)
    phase_k(a, 1)
    if STOP == 2: a("s_branch L5_fin")
    w3_main(a)
```
